```python
import torch

def _softmax(x, axis=-1):
    return torch.softmax(x, dim=axis)

def _gelu(x):
    return torch.nn.functional.gelu(x, approximate='tanh')

def _silu(x):
    return torch.nn.functional.silu(x)

def _sigmoid(x):
    return torch.sigmoid(x)

def _layernorm(x, axis=-1, eps=1e-05):
    m = x.mean(dim=axis, keepdim=True)
    v = x.var(dim=axis, keepdim=True, unbiased=False)
    return (x - m) / torch.sqrt(v + eps)

def _scatter_add(tgt, idx, src, axis=0):
    return tgt.clone().index_add_(axis, idx, src)

def _segment_sum(src, seg, n):
    out = torch.zeros((n,) + src.shape[1:], dtype=src.dtype)
    return out.index_add_(0, seg, src)

def _pad(x, pw):
    flat = tuple((v for pair in reversed(pw) for v in pair))
    return torch.nn.functional.pad(x, flat)
kernel_name = 'interleave_layers__sliding_local_dilated__mixer_gmlp__prompt'

def setup_inputs():

    _w = lambda a: (lambda t: t.to(torch.bfloat16) if t.is_floating_point() else t)(torch.as_tensor(a))

    def _A_setup():
        B, S, D = (1, 2048, 576)
        return {'x': _w((lambda *s: torch.randn(*s, dtype=torch.bfloat16) * 0.05)(B, S, D)), 'wqkv': _w((lambda *s: torch.randn(*s, dtype=torch.bfloat16) * 0.05)(D, 3 * D)), 'wo': _w((lambda *s: torch.randn(*s, dtype=torch.bfloat16) * 0.05)(D, D))}
    _A_in = _A_setup()

    def _B_setup():
        B, S, D, F = (1, 2048, 576, 4608)
        Fh = F // 2
        return {'x': _w((lambda *s: torch.randn(*s, dtype=torch.bfloat16) * 0.05)(B, S, D)), 'w_in': _w((lambda *s: torch.randn(*s, dtype=torch.bfloat16) * 0.2)(D, 2 * Fh)), 'w_sp': _w(0.01 * (lambda *s: torch.randn(*s, dtype=torch.bfloat16) * 0.2)(S, S)), 'b_sp': _w(1.0 + 0.01 * (lambda *s: torch.randn(*s, dtype=torch.bfloat16) * 0.05)(S)), 'w_out': _w((lambda *s: torch.randn(*s, dtype=torch.bfloat16) * 0.05)(Fh, D))}
    _B_in = _B_setup()
    return {'A_x': _A_in['x'], 'A_wqkv': _A_in['wqkv'], 'A_wo': _A_in['wo'], 'B_x': _B_in['x'], 'B_w_in': _B_in['w_in'], 'B_w_sp': _B_in['w_sp'], 'B_b_sp': _B_in['b_sp'], 'B_w_out': _B_in['w_out']}

def reference(A_x, A_wqkv, A_wo, B_x, B_w_in, B_w_sp, B_b_sp, B_w_out):

    def _A_ref(x, wqkv, wo):
        B, S, D = x.shape
        H = 32
        Dh = D // H
        W, dil = (8, 2)
        qkv = (lambda x, *d: x.permute(*d))((x @ wqkv).reshape(B, S, 3, H, Dh), 2, 0, 3, 1, 4)
        q, k, v = (qkv[0], qkv[1], qkv[2])
        scale = Dh ** (-0.5)
        pos = torch.arange(S)
        off = torch.arange(W) * dil
        idx = pos[:, None] - off[None, :]
        mask = idx >= 0
        idx_c = torch.where(mask, idx, 0).reshape(-1)
        kg = k[:, :, idx_c, :].reshape(B, H, S, W, Dh)
        vg = v[:, :, idx_c, :].reshape(B, H, S, W, Dh)
        logits = torch.einsum('bhsd,bhswd->bhsw', q, kg) * scale
        logits = torch.where(mask[None, None, :, :], logits, -1000000000.0)
        attn = _softmax(logits, axis=-1)
        o = torch.einsum('bhsw,bhswd->bhsd', attn, vg)
        return (lambda x, *d: x.permute(*d))(o, 0, 2, 1, 3).reshape(B, S, D) @ wo

    def _B_ref(x, w_in, w_sp, b_sp, w_out):
        B, S, D = x.shape
        F = w_in.shape[-1]
        Fh = F // 2
        z = _gelu(torch.einsum('bsd,df->bsf', x, w_in))
        z1 = z[..., :Fh].clone()
        z2 = _layernorm(z[..., Fh:], axis=-1)
        g = torch.einsum('ts,bsf->btf', w_sp, z2) + b_sp[None, :, None]
        return torch.einsum('bsf,fd->bsd', z1 * g, w_out)
    x = A_x
    x = x + _A_ref(_layernorm(x, axis=-1), A_wqkv, A_wo)
    x = x + _B_ref(_layernorm(x, axis=-1), B_w_in, B_w_sp, B_b_sp, B_w_out)
    x = x + _A_ref(_layernorm(x, axis=-1), A_wqkv, A_wo)
    x = x + _B_ref(_layernorm(x, axis=-1), B_w_in, B_w_sp, B_b_sp, B_w_out)
    return x
```

```python
class Kern:
    def __init__(self, name, grid, block, lds=0, vgpr=256, agpr=0, sgpr=102):
        self.name = name; self.grid = grid; self.block = block; self.lds = lds
        self.vgpr = vgpr; self.agpr = agpr; self.sgpr = sgpr
        self.L = []
    def __call__(self, s):
        for ln in s.split("\n"):
            ln = ln.strip()
            if not ln: continue
            self.L.append(ln if ln.endswith(":") else "    " + ln)
    def lab(self, l): self.L.append(l + ":")
    def launch_line(self):
        return "; @launch kernel=%s grid=(%d,1,1) block=(%d,1,1) lds=%d" % (self.name, self.grid, self.block, self.lds)
    def text(self):
        return "\n".join([".globl %s" % self.name, ".p2align 8", ".type %s,@function" % self.name, "%s:" % self.name] + self.L) + "\n"
    def desc(self):
        acc = (self.vgpr + 3) // 4 * 4
        nfv = acc + self.agpr if self.agpr else self.vgpr
        return "\n".join([".p2align 6", ".amdhsa_kernel %s" % self.name,
            "  .amdhsa_next_free_vgpr %d" % nfv, "  .amdhsa_next_free_sgpr %d" % self.sgpr,
            "  .amdhsa_accum_offset %d" % acc, "  .amdhsa_group_segment_fixed_size 0",
            "  .amdhsa_kernarg_size 88", "  .amdhsa_user_sgpr_count 2",
            "  .amdhsa_user_sgpr_kernarg_segment_ptr 1", "  .amdhsa_system_sgpr_workgroup_id_x 1",
            "  .amdhsa_float_denorm_mode_32 3",
            ".end_amdhsa_kernel"]) + "\n"

def build(launches, header=""):
    out = [header] if header else []
    for k in launches: out.append(k.launch_line())
    out.append('.amdgcn_target "amdgcn-amd-amdhsa--gfx950"')
    out.append(".text")
    seen = []
    for k in launches:
        if k not in seen: seen.append(k)
    for k in seen: out.append(k.text())
    out.append('.section .rodata,"a"')
    for k in seen: out.append(k.desc())
    return "\n".join(out)

def srd(k, d, base, nbytes, off=0):
    if off:
        k("s_add_u32 s%d, s%d, 0x%x" % (d, base, off)); k("s_addc_u32 s%d, s%d, 0" % (d+1, base+1))
    else:
        k("s_mov_b32 s%d, s%d" % (d, base)); k("s_mov_b32 s%d, s%d" % (d+1, base+1))
    k("s_mov_b32 s%d, 0x%x" % (d+2, nbytes)); k("s_mov_b32 s%d, 0x20000" % (d+3))
```

```python
from asmlib import *
from layout import *
KA_X, KA_WQKV, KA_WO, KA_BX, KA_WIN, KA_WSP, KA_BSP, KA_WOUT, KA_OUT, KA_DBG, KA_WS = [8*i for i in range(11)]
import struct
def f2u(x): return struct.unpack("<I", struct.pack("<f", x))[0]

def interleave(main, extras):
    out = []
    byp = {}
    for p, s in extras: byp.setdefault(p, []).append(s)
    out += byp.get(-1, [])
    for i, m in enumerate(main):
        out.append(m); out += byp.get(i, [])
    for p in byp: assert -1 <= p < len(main), p
    return out

class Stream:
    def __init__(self): self.L = []; self.vm = []; self.nbar = 0
    def __call__(self, s):
        for ln in s.split("\n"):
            ln = ln.strip()
            if not ln: continue
            if ln == "s_barrier": self.nbar += 1
            self.L.append(ln if ln.endswith(":") else "    " + ln)
    def lab(self, l): self.L.append(l + ":")
    def issue(self, tag): self.vm.append(tag)
    def vmn(self, *tags):
        last = max([i for i, t in enumerate(self.vm) if t in tags], default=-1)
        n = len(self.vm) - 1 - last
        self.vm = self.vm[last+1:]
        return min(n, 63)

def vr(a, n=4): return "v[%d:%d]" % (a, a+n-1)
def mfma(d, a, b, c=None):
    return "v_mfma_f32_16x16x32_bf16 %s, %s, %s, %s" % (vr(d), vr(a), vr(b), vr(d) if c is None else (vr(c) if c != 'z' else "0"))

WS, WSP, BSP, OUT = "s[4:7]", "s[8:11]", "s[12:15]", "s[16:19]"
sW, sLB, sLAY = 20, 21, 22
LDS_CNT = 163832
NSTAMP = 12
def stamp(k, on, n):
    if on: k("s_memrealtime s[%d:%d]" % (72 + 2*n, 73 + 2*n))
def stamp_flush(k, on, slot_expr_sgpr, uid, vt=2):
    if not on: return
    lab = "L_st_%s" % uid
    k("s_waitcnt lgkmcnt(0)")
    k("s_lshl_b32 s70, s%d, 16\ns_lshl_b32 s71, s2, 8\ns_add_u32 s70, s70, s71\ns_lshl_b32 s71, s%d, 6\ns_add_u32 s70, s70, s71\ns_add_u32 s70, s70, 0x%x" % (slot_expr_sgpr, sW, WS_STAMP))
    for i in range(NSTAMP): k("v_mov_b32 v%d, s%d" % (vt+i, 72+2*i))
    k("v_mov_b32 v%d, 0\ns_mov_b64 exec, 1" % (vt+12))
    for i in range(3): k("buffer_store_dwordx4 %s, v%d, %s, s70 offen offset:%d" % (vr(vt+4*i), vt+12, WS, 16*i))
    k("s_mov_b64 exec, -1\ns_waitcnt vmcnt(0)")
```

```python
import numpy as np
S, D, FH = 2048, 576, 2304
MB = 1 << 20
LAYER_STRIDE = 40*MB
WS_XA  = 0*MB
WS_XB  = 3*MB
WS_O   = 6*MB
WS_Z1  = 9*MB
WS_Z2  = 18*MB
WS_H   = 27*MB
WS_STA = 36*MB
WS_STB = 36*MB + 2*65536
WS_ZS  = 36*MB + 4*65536
WS_W0  = 3*LAYER_STRIDE
WS_WQ  = WS_W0 + 0*MB
WS_WO  = WS_W0 + 2*MB
WS_WI  = WS_W0 + 3*MB
WS_WU  = WS_W0 + 9*MB
WS_CSQ = WS_W0 + 12*MB
WS_CSI = WS_W0 + 12*MB + 65536
WS_FLAG = WS_W0 + 13*MB
WS_STAMP = 160*MB
WS_BYTES = 268435456

cqi = lambda nc: np.meshgrid(np.arange(nc), np.arange(4), np.arange(8), indexing="ij")
def dmap():
    c, q, i = cqi(18)
    d = np.where(c < 16, 72*(c >> 1) + 32*(c & 1) + 8*q + i, 72*(4*(c-16) + q) + 64 + i)
    assert sorted(d.ravel()) == list(range(576)); return d
def omap():
    c, q, i = cqi(18)
    hp = 8*(c-16) + 2*q + (i >> 2)
    e = np.where(c < 16, 36*c + 20*(i >> 2) + 4*q + (i & 3), 36*hp + 16 + (i & 3))
    assert sorted(e.ravel()) == list(range(576)); return e
def hmap():
    c, q, i = cqi(72)
    g = c // 9; u = c % 9
    fb = np.where(u < 8, 2*g + (u >> 2), 2*g + (i >> 2))
    tile = np.where(u < 8, 2*(u & 3) + (i >> 2), 8)
    f = 144*fb + 16*tile + 4*q + (i & 3)
    assert sorted(f.ravel()) == list(range(2304)); return f
def prow():
    p = np.arange(2048); a = (p >> 4) & 1; r = p & 15
    return (p & ~31) + 8*(r >> 2) + 4*a + (r & 3)
def pack_rows(a, kmap, porder=False):
    if porder: a = a[prow()]
    a = a.reshape(128, 16, -1)
    o = a[:, :, kmap]
    return np.ascontiguousarray(o.transpose(0, 2, 3, 1, 4))
def unpack_rows(p, kmap, porder=False):
    nc = kmap.shape[0]; K = nc*32
    p = p.reshape(128, nc, 4, 16, 8).transpose(0, 3, 1, 2, 4)
    a = np.empty((128, 16, K), p.dtype)
    a[:, :, kmap] = p
    a = a.reshape(2048, K)
    if porder:
        b = np.empty_like(a); b[prow()] = a; a = b
    return a
def pack_stats(x, porder=False):
    if porder: x = x[prow()]
    b = x.reshape(128, 16, 4, 2, 72).astype(np.float32)
    st = np.stack([b.sum(-1), (b*b).sum(-1)], -1)
    return np.ascontiguousarray(st.transpose(0, 2, 1, 3, 4))
def unpack_stats(p, porder=False):
    p = p.reshape(128, 4, 16, 2, 2).sum((1, 3)).reshape(2048, 2)
    if porder:
        b = np.empty_like(p); b[prow()] = p; p = b
    return p
def pack_z2(z):
    z = z.reshape(64, 4, 8, 16, 9, 16)
    return np.ascontiguousarray(z.transpose(3, 0, 4, 1, 5, 2))
def unpack_z2(p):
    p = p.reshape(16, 64, 9, 4, 16, 8)
    return np.ascontiguousarray(p.transpose(1, 3, 5, 0, 2, 4)).reshape(2048, 2304)
def qkv_cols():
    m = -np.ones((16, 7, 16), int)
    for hp in range(16):
        for part in range(3):
            base = part*576 + 36*hp
            m[hp, 2*part, :] = base + np.arange(16)
            m[hp, 2*part + 1, :] = base + 20 + np.arange(16)
            m[hp, 6, 4*part: 4*part + 4] = base + 16 + np.arange(4)
    return m
def pack_wq(w):
    m = qkv_cols(); d = dmap()
    wz = np.concatenate([w, np.zeros((576, 1), w.dtype)], 1)
    o = wz[d[:, :, :, None, None, None], m[None, None, None]]
    return np.ascontiguousarray(o.transpose(3, 0, 4, 1, 5, 2))
def pack_csq(wf):
    m = qkv_cols(); o = np.zeros((16, 2, 8, 16), np.float32)
    for h in range(2):
        cs = np.concatenate([wf[288*h:288*h+288].sum(0), [0]]).astype(np.float32)
        o[:, h, :7] = cs[m]
    return o
def pack_wo(w, kmap):
    nc = kmap.shape[0]
    o = np.empty((8, nc//2, 9, 4, 16, 8), w.dtype)
    r = np.arange(16)
    for cb in range(8):
        for e in range(2):
            for a in range(4):
                dcol = 72*cb + 32*(a >> 1) + 8*(r >> 2) + 4*(a & 1) + (r & 3)
                o[cb, :, 4*e + a] = w[kmap[e::2][:, :, None, :], dcol[None, None, :, None]]
            dcol = 72*cb + 64 + np.arange(8)
            o[cb, :, 8, :, 8*e:8*e+8, :] = w[kmap[e::2][:, :, None, :], dcol[None, None, :, None]]
    return o
def win_cols():
    cb, ps, ft, r = np.meshgrid(np.arange(16), np.arange(2), np.arange(9), np.arange(16), indexing="ij")
    return 2304*(1-ps) + 144*cb + 16*ft + r
def pack_wi(w):
    m = win_cols(); d = dmap()
    o = w[d[None, None, :, None, :, None, :], m[:, :, None, :, None, :, None]]
    return np.ascontiguousarray(o)
def pack_csi(wf):
    m = win_cols()
    o = np.zeros((16, 1024), np.float32)
    o[:, :576] = np.stack([wf[288*h:288*h+288].sum(0).astype(np.float32)[m] for h in range(2)], 1).reshape(16, 576)
    return o
if __name__ == "__main__":
    dmap(); omap(); hmap()
    w = np.arange(576*1728).reshape(576, 1728); print(pack_wq(w).shape)
    w = np.arange(2304*576).reshape(2304, 576); p = pack_wo(w, hmap()); print(p.shape, len(np.unique(p)) == w.size)
    w = np.arange(576*4608).reshape(576, 4608); p = pack_wi(w); print(p.shape, len(np.unique(p)) == w.size)
    a = np.arange(2048*2304).reshape(2048, 2304); assert (unpack_rows(pack_rows(a, hmap(), True), hmap(), True) == a).all(); assert (unpack_z2(pack_z2(a)) == a).all()
```

```python
from ph_sync import *
L_HALO, L_EX, L_CS = 131072, 149504, 161792
def attn_coords(k, o):
    k("s_and_b32 s25, s2, 7\ns_lshr_b32 s26, s2, 3")
    m = o.get("amap", 0)
    if m == 0:
        k("s_lshl_b32 s23, s25, 1\ns_lshr_b32 s27, s26, 4\ns_add_u32 s23, s23, s27\ns_and_b32 s24, s26, 15")
    elif m == 1:
        k("s_lshr_b32 s23, s25, 1\ns_lshl_b32 s23, s23, 2\ns_lshr_b32 s27, s26, 3\ns_add_u32 s23, s23, s27")
        k("s_and_b32 s24, s25, 1\ns_lshl_b32 s24, s24, 3\ns_and_b32 s27, s26, 7\ns_add_u32 s24, s24, s27")
def row_stats(raw, dst, tmp):
    k = Stream(); n = len(raw)
    for r_, d in zip(raw, dst): k("v_add_f32 v%d, v%d, v%d\nv_add_f32 v%d, v%d, v%d" % (d, r_, r_+2, d+1, r_+1, r_+3))
    vs = [d+i for d in dst for i in range(2)]; ts = [r_+i for r_ in raw for i in range(2)]
    xsum_q_multi(k, vs, ts)
    for d in dst: k("v_mul_f32 v%d, 0x%x, v%d\nv_mul_f32 v%d, 0x%x, v%d" % (d, f2u(1/576), d, d+1, f2u(1/576), d+1))
    for d in dst: k("v_fma_f32 v%d, -v%d, v%d, v%d" % (d+1, d, d, d+1))
    for d in dst: k("v_max_f32 v%d, 0, v%d" % (d+1, d+1))
    for d in dst: k("v_add_f32 v%d, 0x%x, v%d" % (d+1, f2u(1e-5), d+1))
    for d in dst: k("v_rsq_f32 v%d, v%d" % (d+1, d+1))
    k("s_nop 0")
    return [l.strip() for l in k.L]
def attn(C, L, first, last, o, pre_dep=None, diag=False, st0=0):
    ld = o.get("ld", ""); stf = o.get("st", "")
    bars = [0, 2, 4, 6, 9, 11, 13, 16] if first else [0, 6]
    attn_coords(L, o)
    L("s_mul_i32 s29, s24, %d\ns_lshl_b32 s30, s%d, 12\ns_add_u32 s29, s29, s30\ns_add_u32 s29, s29, 0x%x" % (18*7168, sW, WS_WQ))
    L("s_lshl_b32 s31, s23, 3\ns_max_u32 s31, s31, 1\ns_sub_u32 s31, s31, 1\ns_mul_i32 s31, s31, 18432\ns_add_u32 s31, s31, s%d\ns_add_u32 s31, s31, 0x%x" % (sLB, WS_XA))
    L("s_lshl_b32 s32, s%d, 10\ns_and_b32 s33, s32, 1024" % sW)
    def lg(g):
        L("s_add_u32 m0, s30, %d\ns_add_u32 s34, s29, %d" % (g*16384, g*16384))
        for j in range(4): L("buffer_load_dwordx4 v1, %s, s34 offen offset:%d lds" % (WS, j*1024)); L.issue(("g", g))
    def lh(i):
        sr = 32 if i < 4 else 33
        L("s_add_u32 m0, s%d, %d\ns_add_u32 s34, s31, s%d\ns_add_u32 s34, s34, %d" % (sr, L_HALO + i*4096, sr, i*4096))
        L("buffer_load_dwordx4 v1, %s, s34 offen %s lds" % (WS, ld)); L.issue(("h", i))
    def lcs():
        L("s_mov_b32 m0, %d\ns_lshl_b32 s34, s24, 10\ns_add_u32 s34, s34, 0x%x" % (L_CS, WS_CSQ))
        L("buffer_load_dwordx4 v1, %s, s34 offen lds" % WS); L.issue("cs")
    def need(bi):
        cl = (bars[bi+1] if bi + 1 < len(bars) else 18) - 1
        return [("g", g) for g in range((7*(cl+1) + 15)//16)] + [("h", i) for i in range(cl//4 + 1)] + (["cs"] if bi + 1 == len(bars) else [])
    done = []
    def lissue(tags):
        for t in sorted([t for t in tags if t not in done], key=lambda t: (99, 0) if t == "cs" else ((16*t[1]/7, 1) if t[0] == "g" else (4*t[1], 0))):
            done.append(t)
            if t == "cs": lcs()
            elif t[0] == "g": lg(t[1])
            else: lh(t[1])
    if not first:
        lissue([("g", g) for g in range(8)] + ["cs"])
        L("s_barrier")
    for bi in range(len(bars)):
        lissue(need(min(bi + (1 if bi == 0 else 2), len(bars)-1)))
        L("s_waitcnt vmcnt(%d)\ns_barrier" % L.vmn(*need(bi)))
    if not last: L("s_barrier")
    ACC, HX, HY, BF, AW = 16, 80, 84, 88, 168
    MR = 240
    vW0, vW1, vH, vX0, vX1, vY0, vY1 = 246, 247, 248, 249, 250, 251, 252
    attn_coords(C, o)
    C("s_lshl_b32 s30, s23, 3\ns_lshl_b32 s31, s%d, 1\ns_add_u32 s31, s30, s31" % sW)
    C("s_mul_i32 s29, s31, 18432\ns_add_u32 s29, s29, s%d\ns_add_u32 s35, s29, 0x%x\ns_add_u32 s29, s29, 0x%x" % (sLB, WS_O, WS_XA))
    C("s_max_u32 s30, s30, 1\ns_sub_u32 s30, s30, 1\ns_lshl_b32 s30, s30, 10\ns_add_u32 s30, s30, s%d\ns_add_u32 s30, s30, 0x%x" % (sLB, WS_STA))
    C("s_lshl_b32 s32, s31, 10\ns_add_u32 s32, s32, s%d\ns_add_u32 s32, s32, 0x%x" % (sLB, WS_STA))
    C("v_and_b32 v2, 15, v0\nv_bfe_u32 v3, v0, 4, 2")
    C("s_add_u32 s33, s%d, 2\ns_add_u32 s34, s%d, 4\ns_cmp_ge_u32 s%d, 2\ns_cselect_b32 s33, 6, s33\ns_cselect_b32 s34, 6, s34" % (sW, sW, sW))
    C("s_lshl_b32 s36, s33, 10\ns_lshl_b32 s37, s34, 10")
    C("v_mov_b32 v%d, v1\nv_add_u32 v%d, 64512, v1\nv_add_u32 v%d, %d, v1" % (vW0, vW1, vH, L_HALO))
    C("v_add_u32 v%d, s36, v1\nv_add_u32 v%d, s36, v%d\nv_add_u32 v%d, s37, v1\nv_add_u32 v%d, s37, v%d" % (vX0, vX1, vW1, vY0, vY1, vW1))
    C("v_add_u32 v253, 18432, v1")
    for i in range(72): C("v_mov_b32 v%d, 0" % (ACC+i))
    if pre_dep: pre_dep()
    if not first: C("s_barrier")
    def aload(c):
        return [("buffer_load_dwordx4 %s, v%d, %s, s%d offen offset:%d %s" % (vr(AW + (c % 9)*8 + 4*a), 253 if a else 1, WS, 38 + c//4, (c % 4)*1024, ld), ("a", c)) for a in range(2)]
    for i in range(5): C("s_add_u32 s%d, s29, %d" % (38+i, 4096*i))
    for s, t in aload(0): C(s); C.issue(t)
    C("buffer_load_dwordx4 v[4:7], v1, %s, s30 offen %s" % (WS, ld)); C.issue("st")
    for a in range(2): C("buffer_load_dwordx4 %s, v1, %s, s32 offen offset:%d %s" % (vr(8+4*a), WS, 1024*a, ld)); C.issue("st")
    for c in range(1, o.get("a_pre", 5)):
        for s, t in aload(c): C(s); C.issue(t)
    nxt_a = o.get("a_pre", 5)
    def reads(c):
        b = BF + (c % 2)*40; hi = c >= 9; off = (c - 9*hi)*7168
        r_ = ["ds_read_b128 %s, v%d offset:%d" % (vr(b+4*t), vW1 if hi else vW0, off + 1024*t) for t in range(7)]
        r_.append("ds_read_b128 %s, v%d offset:%d" % (vr(b+28), vH, c*1024))
        r_.append("ds_read_b128 %s, v%d offset:%d" % (vr(b+32), vX1 if hi else vX0, off))
        r_.append("ds_read_b128 %s, v%d offset:%d" % (vr(b+36), vY1 if hi else vY0, off))
        return r_
    C("s_barrier")
    stamp(C, diag, st0)
    for s in reads(0): C(s)
    acc = lambda a, t: ACC + (a*8 + t)*4
    fill = row_stats([4, 8, 12], [MR, MR+2, MR+4], None)
    CSA, CSB, CSV, IDX, MV, RV = 88, 168, 112, 120, 192, 204
    KOP, QOP, VOP, TQ, T = 128, 152, 168, 186, 216
    for c in range(18):
        b = BF + (c % 2)*40; x = lambda a: AW + (c % 9)*8 + 4*a
        mm = []
        for t in range(4):
            for a in range(2): mm.append(mfma(acc(a, t), b+4*t, x(a)))
        for t in range(2):
            for a in range(2): mm.append(mfma(acc(a, 5+t), x(a), b+16+4*t))
        for a in range(2): mm.append(mfma(acc(a, 4), b+24, x(a)))
        for a in range(2): mm.append(mfma(acc(a, 7), x(a), b+24))
        mm.append(mfma(HX, b+32, b+28)); mm.append(mfma(HY, b+28, b+36))
        n = C.vmn(("a", c)) if c != 1 else C.vmn(("a", c), "st")
        ex = []
        if c == 17:
            ex.append((-1, "s_waitcnt vmcnt(%d) lgkmcnt(0)" % n))
            rd = []
            for i, t in enumerate([2, 3, 6, None, 0, 1]):
                for h in range(2):
                    rd.append("ds_read_b128 %s, v%d offset:%d" % (vr((CSB if h else CSA) + 4*i), 5 if t is None else 4, h*512 + (t or 0)*64))
            for i, t in enumerate([4, 5, 6, None]):
                for h in range(2):
                    rd.append("ds_read_b32 v%d, v%d offset:%d" % (CSV + 4*h + i, 7 if t is None else 6, h*512 + (t or 0)*64))
            for tl in (2, 0, 1):
                for j in range(4):
                    rd.append("ds_bpermute_b32 v%d, v%d, v%d" % (MV + 4*tl + j, 8 + j, MR + 2*tl))
                    rd.append("ds_bpermute_b32 v%d, v%d, v%d" % (RV + 4*tl + j, 8 + j, MR + 2*tl + 1))
            for i, s in enumerate(rd): ex.append((i*18//len(rd), s))
        else:
            ex.append((-1, "s_waitcnt vmcnt(%d) lgkmcnt(6)" % n))
            if c + 1 in bars: ex.append((-1, "s_barrier"))
            for i, s in enumerate(reads(c+1)): ex.append((i, s))
            ex.append((7, "s_waitcnt lgkmcnt(8)"))
        pos = 10
        while nxt_a < 18 and nxt_a - 9 < c and pos < 17:
            for s, t in aload(nxt_a): ex.append((pos, s)); C.issue(t); pos += 2
            nxt_a += 1
        if 1 <= c <= 8:
            for i in range(8):
                if fill: ex.append((10 + i, fill.pop(0)))
        if c == 12:
            for i, s in enumerate(["v_lshlrev_b32 v4, 4, v3", "v_add_u32 v4, %d, v4" % L_CS, "s_lshl_b32 s36, s33, 6", "v_add_u32 v5, s36, v4",
                                   "v_lshlrev_b32 v6, 2, v2", "v_add_u32 v6, %d, v6" % L_CS, "s_lshl_b32 s37, s34, 6", "v_add_u32 v7, s37, v6"]): ex.append((10 + i, s))
        if c == 13:
            for i, s in enumerate(["v_lshlrev_b32 v8, 4, v3", "v_add_u32 v9, 4, v8", "v_add_u32 v10, 8, v8", "v_add_u32 v11, 12, v8"]): ex.append((10 + i, s))
        for s in interleave(mm, ex): C(s)
    assert not fill and nxt_a == 18
    stamp(C, diag, st0+1)
    C("v_and_b32 v4, 1, v2\nv_lshl_add_u32 v5, v3, 2, v4\nv_add_u32 v6, 2, v5")
    C("v_cmp_eq_u32 s[40:41], 1, v4\nv_cmp_le_u32 s[42:43], v5, v2\nv_cmp_le_u32 s[44:45], v6, v2\nv_cmp_eq_u32 s[46:47], 0, v3")
    C("v_mov_b32 v4, 0xffff\nv_mov_b32 v5, 0xffff0000\nv_cndmask_b32 v4, v4, v5, s[40:41]")
    C("v_cndmask_b32 v12, v4, 0, s[42:43]\nv_cndmask_b32 v13, v4, 0, s[44:45]\nv_cndmask_b32 v14, 0, v4, s[42:43]\nv_cndmask_b32 v15, 0, v4, s[44:45]")
    C("s_cmp_eq_u32 s31, 0\ns_cselect_b64 s[48:49], s[42:43], -1\ns_cselect_b64 s[50:51], s[44:45], -1")
    C("v_lshrrev_b32 v8, 1, v1\ns_mul_i32 s36, s%d, 3072\ns_add_u32 s36, s36, %d\nv_add_u32 v9, s36, v8" % (sW, L_EX))
    C("s_lshl_b32 s37, s%d, 9\ns_add_u32 s37, s37, %d\nv_add_u32 v10, s37, v8" % (sW, L_EX))
    C("s_waitcnt lgkmcnt(0)")
    for i in range(12): C("v_pk_add_f32 %s, %s, %s" % (vr(CSA+2*i, 2), vr(CSA+2*i, 2), vr(CSB+2*i, 2)))
    for i in range(2): C("v_pk_add_f32 %s, %s, %s" % (vr(CSV+2*i, 2), vr(CSV+2*i, 2), vr(CSV+4+2*i, 2)))
    def conv(items):
        for a_, kd, ci, tl, d in items:
            for p in range(2):
                if kd == 'q': C("v_pk_fma_f32 %s, %s, %s, %s op_sel_hi:[0,1,1] neg_lo:[1,0,0] neg_hi:[1,0,0]" % (vr(a_+2*p, 2), vr(MR+2*tl, 2), vr(CSA+4*ci+2*p, 2), vr(a_+2*p, 2)))
                else: C("v_pk_fma_f32 %s, %s, %s, %s op_sel:[0,%d,0] op_sel_hi:[1,%d,1] neg_lo:[1,0,0] neg_hi:[1,0,0]" % (vr(a_+2*p, 2), vr(MV+4*tl+2*p, 2), vr(CSV+(ci & 2), 2), vr(a_+2*p, 2), ci & 1, ci & 1))
        for a_, kd, ci, tl, d in items:
            for p in range(2):
                if kd == 'q': C("v_pk_mul_f32 %s, %s, %s op_sel:[0,1] op_sel_hi:[1,1]" % (vr(a_+2*p, 2), vr(a_+2*p, 2), vr(MR+2*tl, 2)))
                else: C("v_pk_mul_f32 %s, %s, %s" % (vr(a_+2*p, 2), vr(a_+2*p, 2), vr(RV+4*tl+2*p, 2)))
        for a_, kd, ci, tl, d in items:
            for p in range(2): C("v_cvt_pk_bf16_f32 v%d, v%d, v%d" % (d+p, a_+2*p, a_+2*p+1))
    kop = lambda tl, h: KOP + (tl*2 + h)*4
    def kv_items(a):
        tl = a + 1
        return [(acc(a, 2), 'q', 0, tl, kop(tl, 0)), (acc(a, 3), 'q', 1, tl, kop(tl, 1)), (acc(a, 4), 'q', 2, tl, TQ + 2*tl),
                (acc(a, 5), 'v', 0, tl, VOP + 2*tl), (acc(a, 6), 'v', 1, tl, VOP + 6 + 2*tl), (acc(a, 7), 'v', 2, tl, VOP + 12 + 2*tl)]
    it = kv_items(1)
    conv(it + [(HX, 'q', 3, 0, T), (HY, 'v', 3, 0, T+2)])
    C("s_cmp_eq_u32 s%d, 3\ns_cbranch_scc1 L_a_nw" % sW)
    for i, x_ in enumerate(it): C("ds_write_b64 v9, %s offset:%d" % (vr(x_[4], 2), 3072 + 512*i))
    C("ds_write_b64 v10, %s\nds_write_b64 v10, %s offset:1536" % (vr(T, 2), vr(T+2, 2)))
    C.lab("L_a_nw")
    conv(kv_items(0))
    C("s_waitcnt lgkmcnt(0)\ns_barrier")
    for i, d in enumerate([kop(0, 0), kop(0, 1), TQ, VOP, VOP+6, VOP+12]): C("ds_read_b64 %s, v9 offset:%d" % (vr(d, 2), 512*i))
    qop = lambda a, h: QOP + (a*2 + h)*4
    conv([(acc(a, h), 'q', 4+h, a+1, qop(a, h)) for a in range(2) for h in range(2)])
    for a in range(2):
        for h in range(2): C("v_cndmask_b32 v%d, 0, v%d, s[46:47]\nv_mov_b32 v%d, 0" % (qop(a, h)+2, TQ+2*(a+1)+h, qop(a, h)+3))
    for tl in range(3):
        for h in range(2): C("v_mov_b32 v%d, 0" % (kop(tl, h)+3))
    C("s_waitcnt lgkmcnt(0)")
    for tl in (1, 2, 0):
        for h in range(2): C("v_permlane16_swap_b32 v%d, v%d" % (TQ+2*tl+h, kop(tl, h)+2))
    for tl in (1, 2, 0):
        for h in range(2): C("v_cndmask_b32 v%d, 0, v%d, s[46:47]" % (kop(tl, h)+2, kop(tl, h)+2))
    C("s_nop 1")
    cmb = [(1, 0), (1, 1), (0, 0), (0, 1)]
    S = lambda i, cur: ACC + (i*2 + cur)*4
    for i, (a, h) in enumerate(cmb):
        C(mfma(S(i, 1), kop(a+1, h), qop(a, h), 'z')); C(mfma(S(i, 0), kop(a, h), qop(a, h), 'z'))
    C("s_lshl_b32 s36, s24, 10\nv_add_u32 v4, s36, v1\nv_add_u32 v5, 18432, v4")
    C("s_lshr_b32 s36, s24, 3\ns_lshl_b32 s36, s36, 10\ns_bfe_u32 s37, s24, 0x20001\ns_lshl_b32 s37, s37, 8\ns_add_u32 s36, s36, s37\ns_and_b32 s37, s24, 1\ns_lshl_b32 s37, s37, 3\ns_add_u32 s36, s36, s37\ns_add_u32 s36, s36, 16384")
    C("v_cmp_eq_u32 vcc, 2, v3\nv_lshl_add_u32 v6, v2, 4, s36\nv_bfrev_b32 v7, 1\nv_cndmask_b32 v6, v7, v6, vcc\nv_add_u32 v7, 18432, v6")
    C("v_mov_b32 v8, 0x%x\ns_mov_b32 s52, 0x%x" % (f2u(-1e30), f2u(18**-0.5 * 1.4426950408889634)))
    VAL, MX, TT, P = 48, 56, 60, 64
    for i in range(4):
        for jj in range(2):
            C("v_cndmask_b32 v%d, v%d, v%d, s[40:41]" % (S(i, 1)+2*jj, S(i, 1)+2*jj, S(i, 1)+2*jj+1))
            C("v_cndmask_b32 v%d, v%d, v%d, s[40:41]" % (S(i, 0)+2*jj, S(i, 0)+2*jj, S(i, 0)+2*jj+1))
            C("v_cndmask_b32 v%d, v%d, v%d, s[%d:%d]" % (VAL+2*i+jj, S(i, 0)+2*jj, S(i, 1)+2*jj, 42+2*jj, 43+2*jj))
            if cmb[i][0] == 0: C("v_cndmask_b32 v%d, v8, v%d, s[%d:%d]" % (VAL+2*i+jj, VAL+2*i+jj, 48+2*jj, 49+2*jj))
        C("v_max_f32 v%d, v%d, v%d" % (MX+i, VAL+2*i, VAL+2*i+1))
    xsum_q_multi(C, [MX+i for i in range(4)], [TT+i for i in range(4)], "v_max_f32")
    for i in range(4): C("v_mul_f32 v%d, s52, v%d" % (MX+i, MX+i))
    for i in range(4):
        for jj in range(2): C("v_fma_f32 v%d, v%d, s52, -v%d" % (VAL+2*i+jj, VAL+2*i+jj, MX+i))
    for i in range(8): C("v_exp_f32 v%d, v%d" % (VAL+i, VAL+i))
    for i in range(4): C("v_add_f32 v%d, v%d, v%d" % (MX+i, VAL+2*i, VAL+2*i+1))
    xsum_q_multi(C, [MX+i for i in range(4)], [TT+i for i in range(4)])
    for i in range(4): C("v_rcp_f32 v%d, v%d" % (MX+i, MX+i))
    for i in range(4):
        for jj in range(2): C("v_mul_f32 v%d, v%d, v%d" % (VAL+2*i+jj, VAL+2*i+jj, MX+i))
    for i in range(8): C("v_cvt_pk_bf16_f32 v%d, v%d, v%d" % (VAL+i, VAL+i, VAL+i))
    for i in range(4):
        for e in range(4): C("v_and_b32 v%d, v%d, v%d" % (P+4*i+e, VAL+2*i+(e & 1), 12+e))
    C("s_nop 1")
    for i, (a, h) in enumerate(cmb):
        C(mfma(S(i, 0), VOP + 6*h + 2*a, P+4*i, 'z')); C(mfma(S(i, 1), VOP + 12 + 2*a, P+4*i, 'z'))
    C("s_nop 3")
    for ii, a in enumerate((1, 0)):
        d = T + 8*ii; i0 = 2*ii
        if ii: C("s_nop 0")
        C("v_cvt_pk_bf16_f32 v%d, v%d, v%d\nv_cvt_pk_bf16_f32 v%d, v%d, v%d" % (d, S(i0, 0), S(i0, 0)+1, d+1, S(i0, 0)+2, S(i0, 0)+3))
        C("v_cvt_pk_bf16_f32 v%d, v%d, v%d" % (d+4, S(i0, 1), S(i0, 1)+1))
        C("v_cvt_pk_bf16_f32 v%d, v%d, v%d\nv_cvt_pk_bf16_f32 v%d, v%d, v%d" % (d+2, S(i0+1, 0), S(i0+1, 0)+1, d+3, S(i0+1, 0)+2, S(i0+1, 0)+3))
        C("v_cvt_pk_bf16_f32 v%d, v%d, v%d" % (d+5, S(i0+1, 1)+2, S(i0+1, 1)+3))
        C("buffer_store_dwordx4 %s, v%d, %s, s35 offen %s" % (vr(d), 4+a, WS, stf))
        C("buffer_store_dwordx2 %s, v%d, %s, s35 offen %s" % (vr(d+4, 2), 6+a, WS, stf))
    if not last: flag_addr(C, 45, F_P1, 23)
```

```python
from ph_sync import *
from ph_attn import row_stats
import math
LW, L_CS3 = 73728, 139264
def gmlp_coords(k, o):
    k("s_and_b32 s25, s2, 7\ns_lshr_b32 s26, s2, 3")
    a, b = (23, 24) if o.get("gmap", 0) == 0 else (24, 23)
    k("s_and_b32 s%d, s25, 1\ns_lshl_b32 s%d, s%d, 3\ns_and_b32 s27, s26, 7\ns_add_u32 s%d, s%d, s27" % (a, a, a, a, a))
    k("s_lshr_b32 s%d, s25, 1\ns_lshl_b32 s%d, s%d, 2\ns_lshr_b32 s27, s26, 3\ns_add_u32 s%d, s%d, s27" % (b, b, b, b, b))
    k("s_add_u32 s28, s23, s24\ns_and_b32 s28, s28, 3")
def gmlp(C, L, first, last, o, pre_dep=None, diag=False, st0=0):
    ld = o.get("ld", ""); stf = o.get("st", "")
    ho3 = o.get("hoist3", 1); ho4 = o.get("hoist4", 1)
    gmlp_coords(L, o)
    L("s_lshl_b32 s30, s%d, 12" % sW)
    L("s_lshr_b32 s33, s%d, 1\ns_mul_i32 s31, s33, 18432\ns_and_b32 s33, s%d, 1\ns_lshl_b32 s33, s33, 10\ns_add_u32 s33, s33, 16384\ns_add_u32 s31, s31, s33\ns_sub_u32 s49, s33, s30" % (sW, sW))
    L("s_mul_i32 s34, s24, %d\ns_add_u32 s34, s34, s30\ns_add_u32 s34, s34, 0x%x" % (18*18432, WS_WI))
    L("s_lshl_b32 s35, s23, 3\ns_lshl_b32 s33, s%d, 1\ns_add_u32 s35, s35, s33\ns_mul_i32 s35, s35, 18432\ns_add_u32 s35, s35, s%d\ns_add_u32 s35, s35, 0x%x" % (sW, sLB, WS_XB))
    L("s_mul_i32 s36, s24, %d\ns_add_u32 s36, s36, s30\ns_add_u32 s36, s36, s%d\ns_add_u32 s36, s36, 0x%x" % (64*9216, sLB, WS_Z2))
    L("v_add_u32 v2, %d, v1" % (18432 - 2048))
    def col(sg, sn, base, add, fl):
        sl = sg % 4
        L("s_mul_i32 s50, s%d, 18432\ns_add_u32 s50, s50, s%d" % (sn, base))
        if add: L("s_add_u32 s50, s50, %d" % add)
        if sg % 2 == 1:
            L("s_cmp_ge_u32 s%d, 2\ns_cselect_b32 s52, s50, s53\ns_add_u32 m0, s31, %d\ns_add_u32 s52, s52, s49" % (sW, (sl-1)*18432))
            L("buffer_load_dwordx4 v1, %s, s52 offen %s lds" % (WS, fl)); L.issue(("f", sg))
        L("s_add_u32 m0, s30, %d\ns_mov_b32 s53, s50" % (sl*18432))
        for j in range(4): L("buffer_load_dwordx4 v1, %s, s50 offen offset:%d %s lds" % (WS, 1024*j, fl)); L.issue(("c", sg))
    def col3(sg):
        L("\n".join(hoist_sel(L, 48, sg % 9, 9, 28, ho3))); col(sg, 48, 34, (sg // 9)*9*18432, "")
    def row3(sg):
        L("\n".join(hoist_sel(L, 48, sg % 9, 9, 28, ho3)))
        L("s_lshl_b32 s51, s48, 11\ns_add_u32 m0, s30, %d\ns_add_u32 s51, s51, s35" % (LW + (sg % 4)*16384))
        for j in range(4): L("buffer_load_dwordx4 v%d, %s, s51 offen offset:%d %s lds" % (1 + j//2, WS, 1024*j, ld)); L.issue(("r", sg))
    def col4(sg):
        sn = 44 + (sg - 18) % 4
        col(sg, sn, 36, 0, "sc1")
    def row4(sg):
        sn = 44 + (sg - 18) % 4
        L("s_add_u32 m0, s30, %d\ns_lshl_b32 s51, s%d, 7" % (LW + (sg % 4)*16384, sn))
        for j in range(4): L("buffer_load_dwordx4 v%d, %s, s51 offen offset:%d lds" % (8+j, WSP, 1024*j)); L.issue(("r", sg))
    def adv4(sg):
        sn = 44 + (sg - 18) % 4
        L("s_add_u32 s%d, s%d, 4\ns_and_b32 s%d, s%d, 31" % (sn, sn, sn, sn))
    def lcs():
        L("s_lshl_b32 s33, s%d, 10\ns_add_u32 m0, s33, %d\ns_lshl_b32 s51, s24, 12\ns_add_u32 s51, s51, s33\ns_add_u32 s51, s51, 0x%x" % (sW, L_CS3, WS_CSI))
        L("buffer_load_dwordx4 v1, %s, s51 offen lds" % WS); L.issue("cs")
    nd = lambda m: [("c", m), ("r", m), ("f", m | 1)]
    if first:
        col3(0); row3(0); col3(1); row3(1)
        L("s_waitcnt vmcnt(%d)\ns_barrier" % L.vmn(*nd(0)))
        col3(2); row3(2); col3(3); row3(3); lcs()
    else:
        for sg in range(4): col3(sg)
        lcs()
        L("s_barrier")
        row3(0); row3(1)
        L("s_waitcnt vmcnt(%d)\ns_barrier" % L.vmn(*nd(0)))
        row3(2); row3(3)
    L("s_lshl_b32 s33, s23, 7\ns_lshl_b32 s37, s%d, 5\ns_add_u32 s33, s33, s37" % sW)
    L("v_bfe_u32 v8, v0, 5, 1\nv_bfe_u32 v9, v0, 3, 2\nv_lshl_add_u32 v8, v8, 3, v9\nv_add_u32 v8, s33, v8\nv_lshlrev_b32 v8, 12, v8")
    L("v_bfe_u32 v9, v0, 4, 2\nv_and_b32 v10, 7, v0\nv_xor_b32 v9, v9, v10\nv_lshl_add_u32 v8, v9, 4, v8")
    L("v_xor_b32 v9, 64, v8\nv_add_u32 v9, %d, v9" % (16*4096 - 1024))
    L("v_add_u32 v10, %d, v8\nv_add_u32 v11, %d, v9" % (4*4096 - 2048, 4*4096 - 2048))
    for m in range(4): L("s_cmp_eq_u32 s28, %d\ns_cselect_b32 s%d, %d, %d" % (m, 44+m, m + 4*ho4, m))
    flag_addr(L, 54, F_Z2, 24)
    L("v_mov_b32 v3, 0")
    for m in range(1, 18):
        L("s_waitcnt vmcnt(%d)\ns_barrier" % L.vmn(*(nd(m) + (["cs"] if m == 5 else []))))
        if m + 3 < 18: col3(m+3); row3(m+3)
        else: row4(m+3)
    L("s_barrier")
    row4(21)
    poll(L, "z2", 54, 3, 4, 16, 60, sleep=o.get("sleep_z2", 8)); L.vm = []
    for sg in range(18, 22): col4(sg); adv4(sg)
    L("s_waitcnt vmcnt(%d)\ns_barrier" % L.vmn(*nd(18)))
    for m in range(19, 23):
        L("s_waitcnt vmcnt(%d)\ns_barrier" % L.vmn(*nd(m)))
        col4(m+3); row4(m+3); adv4(m+3)
    L("s_mov_b32 s41, 6")
    L.lab("L_g_ll")
    for m in range(23, 27):
        n = L.vmn(*nd(m)); assert n == (16 if m % 2 == 0 else 17)
        L("s_waitcnt vmcnt(%d)\ns_barrier" % n)
        col4(m+3); row4(m+3); adv4(m+3)
    L("s_sub_u32 s41, s41, 1\ns_cmp_lg_u32 s41, 0\ns_cbranch_scc1 L_g_ll")
    L.nbar += 20
    for m in range(27, 30): L("s_waitcnt vmcnt(%d)\ns_barrier" % L.vmn(*nd(m)))
    if not last: L("s_barrier")
    A2, A1, FR, MR = 16, 88, 160, 248
    vZ1, vR, vW0, vW1 = 2, 3, 3, 4
    gmlp_coords(C, o)
    C("s_lshl_b32 s30, s%d, 12\ns_lshl_b32 s31, s23, 3\ns_lshl_b32 s33, s%d, 1\ns_add_u32 s31, s31, s33" % (sW, sW))
    C("s_lshl_b32 s32, s31, 10\ns_add_u32 s32, s32, s%d\ns_add_u32 s32, s32, 0x%x" % (sLB, WS_STB))
    C("v_add_u32 v%d, %d, v1\ns_add_u32 s33, s30, %d\nv_add_u32 v%d, s33, v1" % (vZ1, 2*18432, LW, vR))
    C("s_lshr_b32 s34, s31, 1")
    C("s_lshl_b32 s35, s34, 12\ns_add_u32 s35, s35, s%d\ns_add_u32 s35, s35, 0x%x" % (sLB, WS_ZS))
    C("s_lshl_b32 s36, s24, 8\ns_add_u32 s36, s36, s35")
    flag_addr(C, 37, F_ZS, 34)
    C("s_lshl_b32 s38, s24, 6\ns_add_u32 s38, s38, s34\ns_mul_i32 s38, s38, 9216\ns_add_u32 s38, s38, s%d\ns_add_u32 s38, s38, 0x%x" % (sLB, WS_Z2))
    if pre_dep: pre_dep()
    if not first: C("s_barrier")
    for a in range(2): C("buffer_load_dwordx4 %s, v1, %s, s32 offen offset:%d %s" % (vr(8+4*a), WS, 1024*a, ld))
    def reads(sg, kk):
        sl = sg % 4; b = FR + kk*44; r_ = []
        for tt in range(2):
            if sg < 18: r_.append("ds_read_b128 %s, v%d offset:%d" % (vr(b+4*tt), vR, sl*16384 + (2*tt + kk)*1024))
            else: r_.append("ds_read_b128 %s, v%d offset:%d" % (vr(b+4*tt), vW0+kk, sl*16384 + tt*2048))
        for ft in range(9):
            r_.append("ds_read_b128 %s, v%d offset:%d" % (vr(b+8+4*ft), 1 if sl < 2 else vZ1, (sl % 2)*18432 + (kk*9+ft)*1024))
        return r_
    def mfmas(sg, kk):
        b = FR + kk*44; r_ = []
        z = 'z' if (sg in (0, 9) and kk == 0) else None
        for ft in range(9):
            for tt in range(2):
                i = (ft*2+tt)*4
                if sg < 9: r_.append(mfma(A2+i, b+4*tt, b+8+4*ft, z))
                elif sg < 18: r_.append(mfma(A1+i, b+8+4*ft, b+4*tt, z))
                else: r_.append(mfma(A2+i, b+8+4*ft, b+4*tt))
        return r_
    def stage(sg, nxt=True, bar=True, x0=(), x1=()):
        ex = [(-1, "s_waitcnt lgkmcnt(5)")]
        for i, r_ in enumerate(reads(sg, 1)): ex.append((i, r_))
        ex.append((7, "s_waitcnt lgkmcnt(8)"))
        for s in interleave(mfmas(sg, 0), ex + list(x0)): C(s)
        ex = [(-1, "s_waitcnt lgkmcnt(0)")]
        if bar: ex.append((-1, "s_barrier"))
        if nxt:
            for i, r_ in enumerate(reads(sg+1, 0)): ex.append((i, r_))
        for s in interleave(mfmas(sg, 1), ex + list(x1)): C(s)
    def spread(ins, lo=11, hi=17):
        return [(lo + i*(hi-lo+1)//len(ins), s) for i, s in enumerate(ins)]
    C("s_barrier")
    stamp(C, diag, st0)
    for s in reads(0, 0): C(s)
    fill = ["s_waitcnt vmcnt(0)"] + row_stats([8, 12], [MR, MR+2], None)
    fill += ["v_bfe_u32 v5, v0, 4, 2", "v_and_b32 v6, 15, v0", "v_lshlrev_b32 v8, 4, v5", "v_add_u32 v9, 4, v8", "v_add_u32 v10, 8, v8", "v_add_u32 v11, 12, v8",
             "v_lshlrev_b32 v7, 2, v6", "v_add_u32 v7, %d, v7" % L_CS3]
    M8, R8, C0, C1, SD, CS, SS = A1, A1+8, A1+16, A1+24, A1+32, A1+40, FR+44
    TP = FR + 60
    for sg in range(9):
        x0 = x1 = ()
        if 1 <= sg <= 4:
            x0 = spread(fill[:7]); x1 = spread(fill[7:14]) if len(fill) > 7 else (); fill = fill[14:]
        if sg == 8:
            rd = []
            for a in range(2):
                for j in range(4):
                    rd.append("ds_bpermute_b32 v%d, v%d, v%d" % (R8+4*a+j, 8+j, MR+2*a+1))
                    rd.append("ds_bpermute_b32 v%d, v%d, v%d" % (M8+4*a+j, 8+j, MR+2*a))
            for ft in range(9):
                for h in range(2): rd.append("ds_read_b32 v%d, v7 offset:%d" % (CS+10*h+ft, h*1152 + ft*64))
            x1 = spread(rd, 0, 17)
        stage(sg, x0=x0, x1=x1)
    assert not fill
    stamp(C, diag, st0+1)
    c0 = -2*math.sqrt(2/math.pi)*math.log2(math.e)
    C("s_mov_b32 s40, 0x%x\ns_mov_b32 s42, 0x%x" % (f2u(c0), f2u(0.044715)))
    for i in range(8): C("v_mov_b64 %s, 0" % vr(SS+2*i, 2))
    C("s_waitcnt lgkmcnt(0)")
    for i in range(8): C("v_rcp_f32 v%d, v%d" % (SD+i, R8+i))
    for i in range(4): C("v_pk_mul_f32 %s, %s, s[40:41] op_sel_hi:[1,0]" % (vr(C0+2*i, 2), vr(R8+2*i, 2)))
    for i in range(4): C("v_pk_mul_f32 %s, %s, %s" % (vr(C1+2*i, 2), vr(R8+2*i, 2), vr(R8+2*i, 2)))
    for i in range(4): C("v_pk_mul_f32 %s, %s, s[42:43] op_sel_hi:[1,0]" % (vr(C1+2*i, 2), vr(C1+2*i, 2)))
    for i in range(4): C("v_pk_mul_f32 %s, %s, %s" % (vr(C1+2*i, 2), vr(C1+2*i, 2), vr(C0+2*i, 2)))
    for i in range(5): C("v_pk_add_f32 %s, %s, %s" % (vr(CS+2*i, 2), vr(CS+2*i, 2), vr(CS+10+2*i, 2)))
    p2 = lambda a: vr(a, 2)
    for ft in range(9):
        x = [A2 + ft*8 + 2*i for i in range(4)]; t = [TP + (ft % 2)*8 + 2*i for i in range(4)]
        for i in range(4): C("v_pk_fma_f32 %s, %s, %s, %s op_sel:[0,%d,0] op_sel_hi:[1,%d,1] neg_lo:[1,0,0] neg_hi:[1,0,0]" % (p2(x[i]), p2(M8+2*i), p2(CS+(ft & ~1)), p2(x[i]), ft & 1, ft & 1))
        for i in range(4): C("v_pk_mul_f32 %s, %s, %s" % (p2(t[i]), p2(x[i]), p2(x[i])))
        for i in range(4): C("v_pk_fma_f32 %s, %s, %s, %s" % (p2(t[i]), p2(t[i]), p2(C1+2*i), p2(C0+2*i)))
        for i in range(4): C("v_pk_mul_f32 %s, %s, %s" % (p2(t[i]), p2(t[i]), p2(x[i])))
        for i in range(8): C("v_exp_f32 v%d, v%d" % (t[0]+i, t[0]+i))
        for i in range(4): C("v_pk_fma_f32 %s, %s, %s, %s" % (p2(t[i]), p2(t[i]), p2(SD+2*i), p2(SD+2*i)))
        for i in range(8): C("v_rcp_f32 v%d, v%d" % (t[0]+i, t[0]+i))
        for i in range(4): C("v_pk_mul_f32 %s, %s, %s" % (p2(x[i]), p2(x[i]), p2(t[i])))
        for i in range(4):
            C("v_pk_add_f32 %s, %s, %s" % (p2(SS+4*i), p2(SS+4*i), p2(x[i])))
            C("v_pk_fma_f32 %s, %s, %s, %s" % (p2(SS+4*i+2), p2(x[i]), p2(x[i]), p2(SS+4*i+2)))
    C("v_lshrrev_b32 v8, 2, v6\nv_lshlrev_b32 v8, 4, v8\nv_lshl_add_u32 v8, v5, 6, v8\nv_and_b32 v9, 3, v6\nv_cmp_eq_u32 vcc, 0, v9\nv_bfrev_b32 v10, 1")
    C("v_lshl_add_u32 v255, v9, 8, v8\nv_cndmask_b32 v8, v10, v8, vcc\nv_cmp_eq_u32 vcc, 0, v1")
    dpp = lambda d, s, ctl, bm: "v_add_f32_dpp v%d, v%d, v%d %s row_mask:0xf bank_mask:0x%x" % (d, s, s, ctl, bm)
    for i in range(8): C(dpp(SS+i, SS+i, "row_mirror", 0x3))
    for i in range(8): C(dpp(SS+i, SS+8+i, "row_mirror", 0xc))
    for i in range(4): C(dpp(SS+i, SS+i, "row_half_mirror", 0x5))
    for i in range(4): C(dpp(SS+i, SS+4+i, "row_half_mirror", 0xa))
    for i in range(4): C(dpp(SS+i, SS+i, "quad_perm:[1,0,3,2]", 0xf))
    for i in range(4): C(dpp(12+i, SS+i, "quad_perm:[2,3,0,1]", 0xf))
    C("v_cndmask_b32 v253, v10, v1, vcc\nv_mov_b32 v252, 1\nv_mov_b32 v254, 0")
    C("buffer_store_dwordx4 v[12:15], v8, %s, s36 offen sc1" % WS)
    stamp(C, diag, st0+2)
    s_sig, s_poll, s_chk = o.get("zs_sig", 10), o.get("zs_poll", 14), o.get("zs_chk", 15)
    for sg in range(9, 18):
        x0 = []; x1 = []
        if sg == s_sig: x1 += [(12, "s_waitcnt vmcnt(0)"), (12, "buffer_atomic_add v252, v253, %s, s37 offen sc1" % WS)]
        if sg == s_poll: x1 += [(12, "buffer_load_dword v4, v254, %s, s37 offen sc1" % WS)]
        if sg == s_chk:
            x1 += [(11, "s_waitcnt vmcnt(0)"), (11, "v_cmp_gt_u32 vcc, 16, v4"), (13, "s_cbranch_vccnz L_g_slow"), (13, "L_g_back:")]
            for i in range(4): x1.append((13+i, "buffer_load_dwordx4 %s, v255, %s, s35 offen offset:%d sc1" % (vr(4+4*i if i < 3 else 252), WS, 1024*i)))
        stage(sg, nxt=(sg < 17), x0=x0, x1=x1)
    stamp(C, diag, st0+3)
    slow = Stream()
    slow.lab("L_g_slow"); poll(slow, "zs", 37, 254, 4, 16, 60); slow("s_branch L_g_back")
    C.tail = getattr(C, "tail", []) + slow.L
    RS, NB, PK = FR, FR+8, FR+16
    CS1, K1 = FR+16, FR
    C("s_waitcnt vmcnt(0)")
    C("v_pk_add_f32 v[4:5], v[4:5], v[8:9]\nv_pk_add_f32 v[6:7], v[6:7], v[10:11]\nv_pk_add_f32 v[12:13], v[12:13], v[252:253]\nv_pk_add_f32 v[14:15], v[14:15], v[254:255]")
    C("v_pk_add_f32 v[4:5], v[4:5], v[12:13]\nv_pk_add_f32 v[6:7], v[6:7], v[14:15]")
    C("v_bfe_u32 v8, v0, 2, 2\nv_and_b32 v9, 3, v0\nv_lshl_add_u32 v8, v8, 3, v9\ns_lshl_b32 s33, s31, 5\nv_lshl_add_u32 v8, v8, 1, s33")
    C("buffer_load_ushort v252, v8, %s, 0 offen\nbuffer_load_ushort v254, v8, %s, 0 offen offset:8" % (BSP, BSP))
    for ctl in ("quad_perm:[1,0,3,2]", "quad_perm:[2,3,0,1]"):
        for i in range(4): C(dpp(4+i, 4+i, ctl, 0xf))
    C("s_mov_b32 s44, 0x%x" % f2u(1/2304))
    C("v_pk_mul_f32 v[4:5], v[4:5], s[44:45] op_sel_hi:[1,0]\nv_pk_mul_f32 v[6:7], v[6:7], s[44:45] op_sel_hi:[1,0]")
    C("v_pk_fma_f32 v[6:7], v[4:5], v[4:5], v[6:7] neg_lo:[1,0,0] neg_hi:[1,0,0]")
    C("v_max_f32 v6, 0, v6\nv_max_f32 v7, 0, v7\nv_add_f32 v6, 0x%x, v6\nv_add_f32 v7, 0x%x, v7\nv_rsq_f32 v6, v6\nv_rsq_f32 v7, v7\ns_nop 0" % (f2u(1e-5), f2u(1e-5)))
    C("v_pk_mul_f32 v[4:5], v[4:5], v[6:7] neg_lo:[1,0] neg_hi:[1,0]")
    C("s_add_u32 s39, s38, 4096\ns_add_u32 s46, s38, 8192")
    for kq in range(4):
        for e in range(2): C("v_mov_b32_dpp v%d, v%d row_newbcast:%d row_mask:0xf bank_mask:0xf" % (RS+2*kq+e, 6+e, 4*kq))
    for kq in range(4):
        for e in range(2): C("v_mov_b32_dpp v%d, v%d row_newbcast:%d row_mask:0xf bank_mask:0xf" % (NB+2*kq+e, 4+e, 4*kq))
    C("v_bfe_u32 v5, v0, 4, 2\nv_lshlrev_b32 v5, 4, v5\nv_add_u32 v5, %d, v5" % (L_CS3 + 576))
    for ft in range(9):
        for h in range(2): C("ds_read_b128 %s, v5 offset:%d" % (vr(CS1 + 36*h + 4*ft), h*1152 + ft*64))
    for ft in range(9):
        x = A2 + ft*8
        for i in range(4): C("v_pk_fma_f32 %s, %s, %s, %s" % (p2(x+2*i), p2(x+2*i), p2(RS+2*i), p2(NB+2*i)))
        for i in range(4): C("v_cvt_pk_bf16_f32 v%d, v%d, v%d" % (x+i, x+2*i, x+2*i+1))
        C("buffer_store_dwordx4 %s, v1, %s, s%d offen offset:%d sc1" % (vr(x), WS, (38, 39, 46)[ft//4], (ft % 4)*1024))
    stamp(C, diag, st0+4)
    for a in range(2): C("v_mul_f32 v%d, s40, v%d\nv_mul_f32 v%d, v%d, v%d" % (4+2*a, MR+2*a+1, 5+2*a, MR+2*a+1, MR+2*a+1))
    for a in range(2): C("v_mul_f32 v%d, s42, v%d\nv_rcp_f32 v%d, v%d" % (5+2*a, 5+2*a, MR+2*a+1, MR+2*a+1))
    for a in range(2): C("v_mul_f32 v%d, v%d, v%d" % (5+2*a, 5+2*a, 4+2*a))
    C("s_waitcnt lgkmcnt(0)")
    for i in range(18): C("v_pk_add_f32 %s, %s, %s" % (p2(CS1+2*i), p2(CS1+2*i), p2(CS1+36+2*i)))
    flag_addr(C, 45, F_Z2, 24)
    TP = FR
    for ft in range(9):
        x = [A1 + ft*8 + 2*i for i in range(4)]; t = [TP + (ft % 2)*8 + 2*i for i in range(4)]
        mr = [MR + 2*(i//2) for i in range(4)]; kc = [4 + 2*(i//2) for i in range(4)]
        for i in range(4): C("v_pk_fma_f32 %s, %s, %s, %s op_sel_hi:[0,1,1] neg_lo:[1,0,0] neg_hi:[1,0,0]" % (p2(x[i]), p2(mr[i]), p2(CS1+4*ft+2*(i % 2)), p2(x[i])))
        for i in range(4): C("v_pk_mul_f32 %s, %s, %s" % (p2(t[i]), p2(x[i]), p2(x[i])))
        for i in range(4): C("v_pk_fma_f32 %s, %s, %s, %s op_sel:[0,1,0] op_sel_hi:[1,1,0]" % (p2(t[i]), p2(t[i]), p2(kc[i]), p2(kc[i])))
        for i in range(4): C("v_pk_mul_f32 %s, %s, %s" % (p2(t[i]), p2(t[i]), p2(x[i])))
        for i in range(8): C("v_exp_f32 v%d, v%d" % (t[0]+i, t[0]+i))
        for i in range(4): C("v_pk_fma_f32 %s, %s, %s, %s op_sel:[0,1,1] op_sel_hi:[1,1,1]" % (p2(t[i]), p2(t[i]), p2(mr[i]), p2(mr[i])))
        for i in range(8): C("v_rcp_f32 v%d, v%d" % (t[0]+i, t[0]+i))
        for i in range(4): C("v_pk_mul_f32 %s, %s, %s" % (p2(x[i]), p2(x[i]), p2(t[i])))
        if ft == o.get("z2_sig", 4): signal_and_poll(C, "z2s", 45, None, 8)
    stamp(C, diag, st0+5)
    C("v_lshlrev_b32 v252, 16, v252\nv_lshlrev_b32 v254, 16, v254\nv_mov_b32 v253, v252\nv_mov_b32 v255, v254")
    C("v_and_b32 v6, 15, v0\nv_lshrrev_b32 v3, 1, v6\nv_bfe_u32 v4, v0, 4, 2\nv_xor_b32 v3, v3, v4\nv_lshlrev_b32 v3, 4, v3\nv_lshl_add_u32 v3, v6, 7, v3")
    C("s_add_u32 s33, s30, %d\nv_add_u32 v3, s33, v3\nv_xor_b32 v4, 64, v3" % LW)
    for i in range(36): C("v_mov_b64 %s, %s" % (p2(A2+2*i), p2(252 + 2*((i//2) % 2))))
    C("s_mul_i32 s36, s31, 73728\ns_lshr_b32 s33, s24, 1\ns_mul_i32 s33, s33, 9216\ns_add_u32 s36, s36, s33\ns_add_u32 s36, s36, s%d" % sLB)
    C("s_and_b32 s33, s24, 1\ns_lshl_b32 s34, s33, 12\ns_lshl_b32 s35, s33, 3\ns_add_u32 s35, s35, 8192")
    C("v_add_u32 v14, s34, v1\nv_add_u32 v15, s35, v1\ns_add_u32 s39, s36, 0x%x\ns_add_u32 s40, s36, 0x%x" % (WS_H, WS_H+73728))
    C("s_mov_b32 s41, 7\ns_barrier")
    stamp(C, diag, st0+6)
    for s in reads(18, 0): C(s)
    C(".p2align 6")
    C.lab("L_g_loop")
    for sg in range(18, 22): stage(sg, x1=[(16, "s_sub_u32 s41, s41, 1"), (17, "s_cmp_lg_u32 s41, 0")] if sg == 21 else ())
    C("s_cbranch_scc1 L_g_loop")
    C.nbar += 24
    for sg in range(18, 22): stage(sg, nxt=(sg < 21), bar=(sg < 21 or not last))
    stamp(C, diag, st0+7)
    C("s_nop 3")
    for u in range(5):
        for tt in range(2):
            tiles = [2*u, 2*u+1] if u < 4 else [8]
            d = FR + (u*2+tt)*4
            for ft in tiles:
                i = (ft*2+tt)*4
                for p in range(2): C("v_pk_mul_f32 %s, %s, %s" % (p2(A2+i+2*p), p2(A2+i+2*p), p2(A1+i+2*p)))
            for e, ft in enumerate(tiles):
                i = A2 + (ft*2+tt)*4
                C("v_cvt_pk_bf16_f32 v%d, v%d, v%d\nv_cvt_pk_bf16_f32 v%d, v%d, v%d" % (d+2*e, i, i+1, d+2*e+1, i+2, i+3))
            if u < 4: C("buffer_store_dwordx4 %s, v14, %s, s%d offen offset:%d %s" % (vr(d), WS, 39+tt, u*1024, stf))
            else: C("buffer_store_dwordx2 %s, v15, %s, s%d offen %s" % (vr(d, 2), WS, 39+tt, stf))
    if not last: flag_addr(C, 45, F_P4, 23)
```

```python
from ph_sync import *
def magic(d, maxv):
    for sh in range(8, 20):
        m = -(-(1 << sh) // d)
        if all((v*m) >> sh == v // d for v in range(maxv+1)): return m, sh
U_WQ, U_X, U_WO, U_WI, U_WU, U_END = 0, 54, 118, 136, 280, 352
def gen_prep(name="k0_kernel", diag=False, o={}):
    k = Kern(name, U_END, 256, lds=36864, vgpr=64)
    stf = o.get("st0", "")
    k("s_cmp_ge_u32 s2, %d\ns_cbranch_scc1 L_k0_end" % U_END)
    stamp(k, diag, 0)
    k("s_load_dwordx2 s[24:25], s[0:1], %d\ns_load_dwordx16 s[36:51], s[0:1], 0" % KA_WS)
    k("v_lshrrev_b32 v2, 6, v0\nv_and_b32 v1, 63, v0\nv_lshlrev_b32 v1, 4, v1\nv_readfirstlane_b32 s%d, v2" % sW)
    k("v_and_b32 v2, 15, v0\nv_bfe_u32 v3, v0, 4, 2\nv_bfrev_b32 v6, 1\nv_mov_b32 v11, 0x3f803f80")
    k("s_mul_i32 s30, s%d, 9216" % sW)
    k("s_waitcnt lgkmcnt(0)")
    srd(k, 4, 24, WS_BYTES)
    k("s_cmp_ge_u32 s2, 2\ns_cbranch_scc1 L_k0_nz")
    k("v_lshlrev_b32 v4, 8, v0\nv_mov_b32 v5, 0\ns_lshl_b32 s26, s2, 16\ns_add_u32 s26, s26, 0x%x\nbuffer_store_dword v5, v4, %s, s26 offen" % (WS_FLAG, WS))
    k.lab("L_k0_nz")
    for lab, lim in (("wq", U_X), ("x", U_WO), ("wo", U_WI), ("wi", U_WU)):
        k("s_cmp_lt_u32 s2, %d\ns_cbranch_scc1 L_k0_%s" % (lim, lab))
    F = 16
    def wload(u0, ncw, ptr, rows, stride, A, B, bases, AL, BL, baseL):
        m, sh = magic(ncw, 200)
        k("s_sub_u32 s26, s2, %d\ns_mul_i32 s28, s26, %d\ns_lshr_b32 s28, s28, %d\ns_mul_i32 s27, s28, %d\ns_sub_u32 s27, s26, s27" % (u0, m, sh, ncw))
        srd(k, 8, ptr, rows*stride)
        k("s_mul_i32 s29, s28, %d\ns_lshl_b32 s31, s27, 7\ns_add_u32 s29, s29, s31\ns_mul_i32 s31, s%d, %d\ns_add_u32 s29, s29, s31" % (288*stride, sW, 72*stride))
        k("v_bfe_u32 v4, v0, 3, 3\nv_mul_u32_u24 v4, %d, v4\nv_and_b32 v5, 7, v0\nv_lshl_add_u32 v4, v5, 4, v4" % stride)
        for j in range(9):
            k("s_add_u32 m0, s30, %d\ns_add_u32 s31, s29, %d\nbuffer_load_dwordx4 v4, s[8:11], s31 offen lds" % (j*1024, j*8*stride))
        k("v_lshrrev_b32 v7, 2, v2\nv_and_b32 v8, 3, v2\ns_lshl_b32 s31, s%d, 5" % sW)
        k("v_lshlrev_b32 v9, 7, v7\nv_lshl_add_u32 v9, v8, 3, v9\nv_add_u32 v9, s31, v9")
        k("v_mul_u32_u24 v4, %d, v3\nv_add_u32 v4, v4, v9\nv_mul_u32_u24 v5, %d, v3\nv_add_u32 v5, v5, v9" % (A*128, AL*128))
        k("s_lshl_b32 s31, s27, 2\ns_add_u32 s31, s31, s%d\nv_lshl_add_u32 v7, s31, 2, v7\nv_lshlrev_b32 v8, 4, v8\nv_lshl_add_u32 v8, v3, 8, v8" % sW)
        def fin():
            k("s_waitcnt vmcnt(0)\ns_barrier")
            stamp(k, diag, 1)
            for u in range(9):
                for ih in range(2):
                    off = (bases[u] + B*ih)*128 if u < 8 else (baseL + BL*ih)*128
                    k("ds_read_b64_tr_b16 %s, v%d offset:%d" % (vr(F+4*u+2*ih, 2), 4 if u < 8 else 5, off))
        return fin
    def vdiv(dst, src, d, maxv, rem):
        m, sh = magic(d, maxv)
        k("v_mul_u32_u24 v%d, %d, v%d\nv_lshrrev_b32 v%d, %d, v%d\nv_mul_u32_u24 v%d, %d, v%d\nv_sub_u32 v%d, v%d, v%d" % (dst, m, src, dst, sh, dst, rem, d, dst, rem, src, rem))
    def colsum(vaddr, sb):
        k("v_mov_b32 v12, 0\nv_mov_b32 v13, 0")
        for i in range(36): k("v_dot2_f32_bf16 v%d, v%d, v11, v%d" % (12 + i % 2, F+i, 12 + i % 2))
        k("s_nop 2\nv_add_f32 v12, v12, v13")
        xsum_q(k, 12, 13)
        k("buffer_store_dword v12, v%d, %s, s%d offen %s" % (vaddr, WS, sb, stf))
    def stores(vsel, soff):
        for u in range(9):
            k("s_waitcnt lgkmcnt(%d)" % min(15, 16 - 2*u))
            k(soff(u))
            k("buffer_store_dwordx4 %s, v%d, %s, s31 offen %s" % (vr(F+4*u), vsel(u), WS, stf))
    dB = [72*(u >> 1) + 32*(u & 1) for u in range(8)]
    def done():
        stamp(k, diag, 2)
        if diag: k("s_branch L_k0_fl")
        else: k("s_endpgm")
    def proj_w(u0, ptr, rows, A, B, bases, AL, BL, baseL, ncp, base, wu):
        fin = wload(u0, 9, ptr, rows, 1152, A, B, bases, AL, BL, baseL)
        vdiv(9, 7, 18, 143, 10)
        k("v_lshrrev_b32 v12, 3, v10\nv_and_b32 v13, 1, v10\nv_lshl_add_u32 v12, v12, 1, v13\nv_bfe_u32 v14, v10, 1, 2\nv_cmp_gt_u32 vcc, 16, v10")
        k("v_mul_u32_u24 v9, %d, v9\nv_add_u32 v9, v9, v8" % (ncp*9216))
        k("v_cndmask_b32 v12, 8, v12, vcc\nv_cndmask_b32 v14, v13, v14, vcc\nv_mov_b32 v15, 0x1000\nv_mov_b32 v13, 0x80\nv_cndmask_b32 v15, v13, v15, vcc")
        k("v_lshl_add_u32 v9, v12, 10, v9\nv_lshl_add_u32 v9, v14, 6, v9\nv_add_u32 v10, v9, v15")
        k("s_and_b32 s31, s28, 1\ns_cmp_eq_u32 s31, 1\ns_cselect_b64 vcc, -1, 0")
        k("v_cndmask_b32 v12, v9, v10, vcc\nv_cndmask_b32 v13, v10, v9, vcc")
        if wu: k("s_mul_i32 s32, s28, 9")
        else: k("s_lshl_b32 s32, s28, 3")
        fin()
        if wu: stores(lambda u: 12 + (u & 1), lambda u: "s_add_u32 s31, s32, %d\ns_lshr_b32 s31, s31, 1\ns_mul_i32 s31, s31, 9216\ns_add_u32 s31, s31, 0x%x" % (u, base))
        else: stores(lambda u: (9 + (u & 1)) if u < 8 else 12, lambda u: ("s_mul_i32 s31, s28, %d\ns_add_u32 s31, s31, 0x%x" % (4*9216, base + (u >> 1)*9216)) if u < 8 else "s_mov_b32 s31, 0x%x" % (base + 8*9216))
        done()
    proj_w(U_WU, 50, 2304, 4, 16, [144*(u >> 2) + 32*(u & 3) for u in range(8)], 4, 144, 128, 36, WS_WU, True)
    k.lab("L_k0_wo")
    proj_w(U_WO, 40, 576, 4, 20, [36*u for u in range(8)], 72, 36, 16, 9, WS_WO, False)
    k.lab("L_k0_wi")
    fin = wload(U_WI, 72, 44, 576, 9216, 8, 4, dB, 72, 4, 64)
    m, sh = magic(9, 143)
    k("s_cmp_lt_u32 s31, 144\ns_cselect_b32 s33, 1, 0\ns_cselect_b32 s34, 0, 144\ns_sub_u32 s34, s31, s34")
    k("s_mul_i32 s35, s34, %d\ns_lshr_b32 s35, s35, %d\ns_mul_i32 s52, s35, 9\ns_sub_u32 s34, s34, s52" % (m, sh))
    k("s_lshl_b32 s52, s35, 1\ns_add_u32 s52, s52, s33\ns_mul_i32 s52, s52, %d\ns_lshl_b32 s53, s34, 10\ns_add_u32 s52, s52, s53\ns_add_u32 s52, s52, 0x%x" % (18*9216, WS_WI))
    k("s_mul_i32 s53, s28, 9216\ns_add_u32 s54, s52, s53\ns_lshl_b32 s53, s53, 3\ns_add_u32 s52, s52, s53")
    k("s_lshl_b32 s55, s35, 12\ns_mul_i32 s53, s28, 1152\ns_add_u32 s55, s55, s53\ns_mul_i32 s53, s33, 576\ns_add_u32 s55, s55, s53\ns_lshl_b32 s53, s34, 6\ns_add_u32 s55, s55, s53\ns_add_u32 s55, s55, 0x%x" % WS_CSI)
    k("v_cmp_eq_u32 vcc, 0, v3\nv_lshlrev_b32 v10, 2, v2\ns_nop 0\nv_cndmask_b32 v10, v6, v10, vcc")
    fin()
    stores(lambda u: 1, lambda u: "s_add_u32 s31, s52, %d" % (u*9216) if u < 8 else "s_add_u32 s31, s54, %d" % (16*9216))
    colsum(10, 55)
    done()
    k.lab("L_k0_wq")
    fin = wload(U_WQ, 27, 38, 576, 3456, 8, 4, dB, 72, 4, 64)
    vdiv(9, 7, 144, 431, 10)
    vdiv(12, 10, 9, 143, 13)
    k("v_cmp_lt_u32 s[52:53], 4, v13\nv_cmp_eq_u32 s[54:55], 4, v13\nv_cmp_eq_u32 s[56:57], 2, v9\nv_lshlrev_b32 v14, 1, v9\nv_add_u32 v15, 1, v14\nv_subrev_u32 v10, 5, v13")
    k("v_cndmask_b32 v14, v14, v15, s[52:53]\nv_cndmask_b32 v13, v13, v10, s[52:53]\nv_cndmask_b32 v14, v14, 6, s[54:55]\nv_cndmask_b32 v13, v13, v9, s[54:55]")
    k("s_and_b64 s[56:57], s[56:57], s[54:55]\ns_mov_b32 s33, %d" % (18*7168))
    k("v_mul_lo_u32 v9, v12, s33\nv_add_u32 v9, v9, v8\nv_lshl_add_u32 v9, v14, 10, v9\nv_lshl_add_u32 v9, v13, 6, v9")
    k("v_add_u32 v15, 64, v9\nv_cndmask_b32 v15, v6, v15, s[56:57]")
    k("v_and_b32 v10, 3, v2\nv_lshlrev_b32 v10, 2, v10\nv_lshl_add_u32 v10, v13, 4, v10\nv_lshl_add_u32 v10, v14, 6, v10\nv_lshl_add_u32 v10, v12, 10, v10")
    k("v_cmp_eq_u32 vcc, 0, v3\ns_lshl_b32 s55, s28, 9\ns_add_u32 s55, s55, 0x%x\nv_cndmask_b32 v10, v6, v10, vcc" % WS_CSQ)
    k("s_mul_i32 s53, s28, 7168\ns_add_u32 s54, s53, 0x%x\ns_lshl_b32 s53, s53, 3\ns_add_u32 s52, s53, 0x%x" % (WS_WQ + 16*7168, WS_WQ))
    for i in range(4): k("v_mov_b32 v%d, 0" % (52+i))
    sq = lambda u: "s_add_u32 s31, s52, %d" % (u*7168) if u < 8 else "s_mov_b32 s31, s54"
    k("s_cmp_eq_u64 s[56:57], 0\ns_cbranch_scc1 L_k0_np")
    for u in range(9): k(sq(u)); k("buffer_store_dwordx4 v[52:55], v15, %s, s31 offen %s" % (WS, stf))
    k.lab("L_k0_np")
    fin()
    stores(lambda u: 9, sq)
    colsum(10, 55)
    done()
    k.lab("L_k0_x")
    srd(k, 8, 36, 2048*1152)
    k("s_sub_u32 s26, s2, %d\ns_mul_i32 s29, s26, 36864\ns_add_u32 s29, s29, s30" % U_X)
    for j in range(9):
        k("s_add_u32 m0, s30, %d\ns_add_u32 s31, s29, %d\nbuffer_load_dwordx4 v1, s[8:11], s31 offen lds" % (j*1024, j*1024))
    k("s_lshr_b32 s32, s%d, 1\ns_and_b32 s33, s%d, 1\ns_mul_i32 s34, s32, 18432\ns_mul_i32 s35, s33, 576\ns_add_u32 s34, s34, s35" % (sW, sW))
    k("v_mul_u32_u24 v7, 1152, v2\nv_add_u32 v7, s34, v7\nv_lshl_add_u32 v4, v3, 4, v7\nv_mul_u32_u24 v5, 144, v3\nv_add_u32 v5, v5, v7")
    k("s_lshl_b32 s52, s26, 1\ns_add_u32 s52, s52, s32\ns_lshl_b32 s55, s52, 10\ns_lshl_b32 s53, s33, 3\ns_add_u32 s55, s55, s53\ns_add_u32 s55, s55, 0x%x" % WS_STA)
    k("s_mul_i32 s52, s52, 18432\ns_add_u32 s52, s52, 0x%x\ns_lshl_b32 s53, s33, 10\ns_add_u32 s54, s52, s53\ns_lshl_b32 s53, s33, 13\ns_add_u32 s52, s52, s53" % WS_XA)
    k("s_waitcnt vmcnt(0)\ns_barrier")
    stamp(k, diag, 1)
    for u in range(9):
        k("ds_read_b128 %s, v%d offset:%d" % (vr(F+4*u), 4 if u < 8 else 5, 144*(u >> 1) + 64*(u & 1) if u < 8 else 128))
    for u in range(9):
        k("s_waitcnt lgkmcnt(%d)" % (8-u))
        k("s_add_u32 s31, s52, %d" % (u*1024) if u < 8 else "s_add_u32 s31, s54, 16384")
        k("buffer_store_dwordx4 %s, v1, %s, s31 offen %s" % (vr(F+4*u), WS, stf))
    k("v_mov_b32 v12, 0\nv_mov_b32 v13, 0")
    for i in range(36): k("v_dot2_f32_bf16 v12, v%d, v11, v12\nv_dot2_f32_bf16 v13, v%d, v%d, v13" % (F+i, F+i, F+i))
    k("s_nop 2\nbuffer_store_dwordx2 v[12:13], v1, %s, s55 offen %s" % (WS, stf))
    stamp(k, diag, 2)
    if diag:
        k.lab("L_k0_fl")
        k("s_waitcnt vmcnt(0)")
        stamp(k, diag, 3)
        k("s_mov_b32 s61, 30")
        stamp_flush(k, diag, 61, "k0")
    k.lab("L_k0_end")
    k("s_endpgm")
    return k
```

```python
from ph_sync import *
def proj_coords(k, o):
    k("s_and_b32 s25, s2, 7\ns_lshr_b32 s26, s2, 3")
    if o.get("pmap", 0) == 0:
        k("s_lshl_b32 s23, s25, 2\ns_lshr_b32 s27, s26, 3\ns_add_u32 s23, s23, s27\ns_and_b32 s24, s26, 7")
    else:
        k("s_lshr_b32 s23, s25, 1\ns_lshl_b32 s23, s23, 3\ns_lshr_b32 s27, s26, 2\ns_add_u32 s23, s23, s27")
        k("s_and_b32 s24, s25, 1\ns_lshl_b32 s24, s24, 2\ns_and_b32 s27, s26, 3\ns_add_u32 s24, s24, s27")
    k("s_add_u32 s28, s23, s24\ns_and_b32 s28, s28, 3")
def proj(C, L, kind, first, last, o, pre_dep=None, diag=False, st0=0):
    p5 = kind == 5
    uid = "p%d" % kind
    npair = 36 if p5 else 9
    nst = 9 if p5 else 3
    ppst = lambda n: 4 if (p5 or n < 2) else 1
    ACT, WB, RES = (WS_H, WS_WU, WS_XB) if p5 else (WS_O, WS_WO, WS_XA)
    rts = 73728 if p5 else 18432
    ld = o.get("ld", ""); stf = o.get("st", "")
    ho = p5 and o.get("hoist5", 1)
    proj_coords(L, o)
    L("s_mul_i32 s29, s24, %d\ns_add_u32 s29, s29, 0x%x" % (npair*9216, WB))
    L("s_mul_i32 s30, s%d, 9216\ns_mul_i32 s31, s%d, 3072" % (sW, sW))
    def lbatch(tau):
        sl = tau % 4
        if ppst(tau) == 4:
            L("\n".join(hoist_sel(L, 32, tau, nst, 28, ho)))
            L("s_mul_i32 s32, s32, 36864\ns_add_u32 s32, s32, s29\ns_add_u32 s32, s32, s30")
            for j in range(9):
                if j % 4 == 0:
                    L("s_add_u32 m0, s30, %d" % (sl*36864 + j*1024))
                    L("s_add_u32 s33, s32, %d" % (j*1024))
                L("buffer_load_dwordx4 v1, %s, s33 offen offset:%d lds" % (WS, (j % 4)*1024)); L.issue(("w", tau))
        else:
            L("s_add_u32 m0, s31, %d\ns_add_u32 s33, s29, s31\ns_add_u32 s33, s33, %d" % (sl*36864, tau*36864))
            for j in range(3):
                L("buffer_load_dwordx4 v1, %s, s33 offen offset:%d lds" % (WS, j*1024)); L.issue(("w", tau))
    npre = min(4, nst)
    if first:
        lbatch(0); lbatch(1)
        L("s_waitcnt vmcnt(%d)\ns_barrier" % L.vmn(("w", 0)))
        for t in range(2, npre): lbatch(t)
    else:
        for t in range(npre): lbatch(t)
        L("s_waitcnt vmcnt(%d)\ns_barrier" % L.vmn(("w", 0)))
    for m in range(1, nst):
        L("s_waitcnt vmcnt(%d)\ns_barrier" % L.vmn(("w", m)))
        if m + 3 < nst: lbatch(m + 3)
    if not last: L("s_barrier")
    ACC = 16; WF = 40; AW = 112; RR = 208; T = 220
    proj_coords(C, o)
    C("s_lshl_b32 s30, s23, 2\ns_add_u32 s30, s30, s%d" % sW)
    C("s_mul_i32 s29, s30, %d\ns_add_u32 s29, s29, s%d\ns_add_u32 s29, s29, 0x%x" % (rts, sLB, ACT))
    C("s_mul_i32 s34, s30, 18432\ns_add_u32 s34, s34, s%d\ns_add_u32 s34, s34, 0x%x" % (sLB, RES))
    C("s_lshl_b32 s35, s24, 11")
    C("s_lshr_b32 s36, s24, 2\ns_lshl_b32 s36, s36, 10\ns_and_b32 s37, s24, 3\ns_lshl_b32 s37, s37, 8\ns_add_u32 s36, s36, s37\ns_add_u32 s36, s36, 16384")
    C("v_and_b32 v2, 15, v0\nv_bfe_u32 v3, v0, 4, 2")
    C("v_add_u32 v4, s35, v1")
    C("v_lshlrev_b32 v5, 4, v2\nv_lshl_add_u32 v5, v3, 3, v5\nv_add_u32 v5, s36, v5")
    C("v_cmp_gt_u32 s[40:41], 2, v3\nv_bfrev_b32 v6, 1")
    for i in range(4): C("v_add_u32 v%d, %d, v1" % (12+i, 36864*i))
    C("v_cndmask_b32 v5, v6, v5, s[40:41]")
    for i in range(24): C("v_mov_b32 v%d, 0" % (ACC+i))
    C("s_and_b32 s37, s%d, 1" % sW)
    if p5:
        C("v_lshrrev_b32 v7, 3, v2\nv_bfe_u32 v8, v2, 2, 1\nv_lshlrev_b32 v8, 3, v8\nv_and_b32 v9, 3, v2\nv_add_u32 v8, v8, v9\ns_lshl_b32 s37, s37, 2\nv_add_u32 v8, s37, v8")
    else:
        C("v_bfe_u32 v7, v2, 2, 1\nv_lshrrev_b32 v8, 3, v2\nv_lshlrev_b32 v8, 2, v8\nv_and_b32 v9, 3, v2\nv_add_u32 v8, v8, v9\ns_lshl_b32 s37, s37, 3\nv_add_u32 v8, s37, v8")
    if pre_dep: pre_dep()
    def act_loads(tau):
        o_ = hoist_sel(C, 32, tau, nst, 28, ho) + ["s_lshl_b32 s32, s32, 13", "s_add_u32 s32, s32, s29", "s_add_u32 s33, s32, 4096"]
        lds_ = []
        for j in range(2*ppst(tau)):
            lds_.append(("buffer_load_dwordx4 %s, v1, %s, s%d offen offset:%d %s" % (vr(AW + ((tau % 3)*8 + j)*4), WS, 32 + j//4, (j % 4)*1024, ld), ("a", tau, j//2)))
        return o_, lds_
    def emit_act(tau):
        a, b = act_loads(tau)
        C("\n".join(a))
        for s, t in b: C(s); C.issue(t)
    def res_loads():
        return [("buffer_load_dwordx4 %s, v4, %s, s34 offen offset:%d %s" % (vr(RR+4*p), WS, 1024*p, ld), "res") for p in range(2)] + \
               [("buffer_load_dwordx2 %s, v5, %s, s34 offen %s" % (vr(RR+8, 2), WS, ld), "res")]
    if first:
        emit_act(0); emit_act(1); C("s_barrier")
    else:
        C("s_barrier"); emit_act(0); emit_act(1)
    stamp(C, diag, st0)
    def reads(gp):
        tau, pp = gp // 4, gp % 4; b = WF + (gp % 2)*36
        return ["ds_read_b128 %s, v%d offset:%d" % (vr(b+4*j), 12 + tau % 4, pp*9216 + j*1024) for j in (0,1,2,3,8,4,5,6,7)]
    for s in reads(0): C(s)
    for gp in range(npair):
        tau, pp = gp // 4, gp % 4; b = WF + (gp % 2)*36; aw = AW + ((tau % 3)*8 + 2*pp)*4
        mm = []
        for e in range(2):
            for a in range(4): mm.append(mfma(ACC+4*a, b+16*e+4*a, aw+4*e))
            mm.append(mfma(ACC+16+4*e, b+32, aw+4*e))
        ex = []
        newstage = gp + 1 < npair and (gp + 1) % 4 == 0
        n = C.vmn(("a", tau, pp))
        if newstage: ex += [(-1, "s_waitcnt vmcnt(%d) lgkmcnt(0)" % n), (-1, "s_barrier")]
        elif gp + 1 == npair:
            ex += [(-1, "s_waitcnt vmcnt(%d) lgkmcnt(0)" % n)]
            if not last: ex += [(-1, "s_barrier")]
        else: ex += [(-1, "s_waitcnt vmcnt(%d) lgkmcnt(4)" % n)]
        if gp + 1 < npair:
            for i, s in enumerate(reads(gp+1)): ex.append((i, s))
            if not newstage: ex.append((4, "s_waitcnt lgkmcnt(5)"))
        if tau + 2 < nst:
            a, bl = act_loads(tau + 2)
            if pp == 0:
                for s in a: ex.append((0, s))
            for i, (s, t) in enumerate(bl[2*pp:2*pp+2]): ex.append((2 + 4*i, s)); C.issue(t)
        if gp == max(npair - 8, 1):
            for i, (s, t) in enumerate(res_loads()): ex.append((3 + 2*i, s)); C.issue(t)
        for s in interleave(mm, ex): C(s)
    stamp(C, diag, st0+1)
    C("s_and_b32 s30, s30, 0xfffe")
    if p5: C("s_add_u32 s38, s%d, 0x%x" % (sLB, LAYER_STRIDE))
    else: C("s_mov_b32 s38, s%d" % sLB)
    C("s_mul_i32 s34, s30, 18432\ns_add_u32 s34, s34, s38\ns_add_u32 s34, s34, 0x%x" % (WS_XA if p5 else WS_XB))
    C("s_lshl_b32 s39, s30, 10\ns_add_u32 s39, s39, s38\ns_add_u32 s39, s39, 0x%x" % (WS_STA if p5 else WS_STB))
    C("v_mul_u32_u24 v9, 18432, v7\nv_lshl_add_u32 v9, v8, 4, v9")
    C("v_lshl_add_u32 v4, v3, 8, v9\nv_add_u32 v4, s35, v4")
    C("v_lshl_add_u32 v5, v3, 3, v9\nv_add_u32 v5, s36, v5\nv_cndmask_b32 v5, v6, v5, s[40:41]")
    C("s_lshr_b32 s42, s24, 1\ns_lshl_b32 s42, s42, 8\ns_and_b32 s43, s24, 1\ns_lshl_b32 s43, s43, 3\ns_add_u32 s42, s42, s43")
    C("v_lshlrev_b32 v10, 10, v7\nv_lshl_add_u32 v10, v8, 4, v10\nv_add_u32 v10, s42, v10\nv_cmp_eq_u32 vcc, 0, v3\nv_mov_b32 v11, 0x3f803f80\ns_nop 0\nv_cndmask_b32 v10, v6, v10, vcc")
    C("s_waitcnt vmcnt(%d)" % C.vmn("res"))
    for j in range(4): C("v_permlane32_swap_b32 v%d, v%d" % (ACC+20+j, T+j))
    for i in range(10):
        C("v_lshlrev_b32 v%d, 16, v%d\nv_and_b32 v%d, 0xffff0000, v%d" % (T+4+2*i, RR+i, T+5+2*i, RR+i))
    C("v_pk_add_f32 %s, %s, %s\nv_pk_add_f32 %s, %s, %s" % (vr(ACC+16,2), vr(ACC+16,2), vr(T,2), vr(ACC+18,2), vr(ACC+18,2), vr(T+2,2)))
    for i in range(10): C("v_pk_add_f32 %s, %s, %s" % (vr(ACC+2*i,2), vr(ACC+2*i,2), vr(T+4+2*i,2)))
    for i in range(10): C("v_cvt_pk_bf16_f32 v%d, v%d, v%d" % (RR+i, ACC+2*i, ACC+2*i+1))
    lab = "L_fin_" + uid
    if p5:
        C("s_cmp_eq_u32 s%d, 1\ns_cbranch_scc1 %s" % (sLAY, lab))
    for p in range(2): C("buffer_store_dwordx4 %s, v4, %s, s34 offen offset:%d %s" % (vr(RR+4*p), WS, 1024*p, stf))
    C("buffer_store_dwordx2 %s, v5, %s, s34 offen %s" % (vr(RR+8, 2), WS, stf))
    C("v_cndmask_b32 v%d, 0, v%d, s[40:41]\nv_cndmask_b32 v%d, 0, v%d, s[40:41]" % (T+2, RR+8, T+3, RR+9))
    C("v_mov_b32 v%d, 0\nv_mov_b32 v%d, 0" % (T, T+1))
    for i in range(10):
        r_ = RR+i if i < 8 else T+2+(i-8)
        C("v_dot2_f32_bf16 v%d, v%d, v11, v%d\nv_dot2_f32_bf16 v%d, v%d, v%d, v%d" % (T, r_, T, T+1, r_, r_, T+1))
    C("s_nop 2")
    xsum_q_multi(C, [T, T+1], [T+2, T+3])
    C("buffer_store_dwordx2 %s, v10, %s, s39 offen %s" % (vr(T, 2), WS, stf))
    if p5:
        C("s_branch %s_e" % lab)
        C.lab(lab)
        C("v_lshl_add_u32 v9, v7, 4, v8\nv_mul_u32_u24 v9, 1152, v9\ns_mul_i32 s34, s30, %d\ns_mul_i32 s42, s24, 144\ns_add_u32 s34, s34, s42" % (16*1152))
        C("v_lshl_add_u32 v4, v3, 4, v9\nv_lshl_add_u32 v5, v3, 3, v9\nv_cndmask_b32 v5, v6, v5, s[40:41]")
        for p in range(2): C("buffer_store_dwordx4 %s, v4, %s, s34 offen offset:%d" % (vr(RR+4*p), OUT, 64*p))
        C("buffer_store_dwordx2 %s, v5, %s, s34 offen offset:128" % (vr(RR+8, 2), OUT))
        C.lab(lab + "_e")
    if not last:
        C("s_lshr_b32 s44, s23, 1")
        flag_addr(C, 45, F_P5 if p5 else F_P2, 44)
```

```python
from gen_common import *
F_P1, F_P2, F_ZS, F_Z2, F_P4, F_P5 = 0, 1, 2, 4, 5, 6
FLAG_BYTES = 2*256*256
def flag_addr(k, sd, kind, sgroup):
    k("s_lshl_b32 s%d, s%d, 8\ns_add_u32 s%d, s%d, s%d\ns_lshl_b32 s%d, s%d, 8\ns_add_u32 s%d, s%d, 0x%x" % (
        sd, sLAY, sd, sd, sgroup, sd, sd, sd, sd, WS_FLAG + kind*32*256))
SPIN = 1 << 16
def poll(k, uid, sPoll, vOff, vT, target, sCnt, sleep=4):
    k("s_mov_b32 s%d, %d" % (sCnt, SPIN))
    k.lab("L_poll_%s" % uid)
    k("buffer_load_dword v%d, v%d, %s, s%d offen sc1\ns_waitcnt vmcnt(0)" % (vT, vOff, WS, sPoll))
    k("v_cmp_gt_u32 vcc, %d, v%d\ns_sub_u32 s%d, s%d, 1\ns_cbranch_scc1 L_pd_%s\ns_cbranch_vccz L_pd_%s" % (target, vT, sCnt, sCnt, uid, uid))
    k("s_sleep %d\ns_branch L_poll_%s" % (sleep, uid))
    k.lab("L_pd_%s" % uid)
def signal_and_poll(C, uid, sSig, sPoll, vt, two=None, sCnt=60, sleep=4):
    C("s_waitcnt vmcnt(0)"); C.vm = []
    C("v_mov_b32 v%d, 1\nv_mov_b32 v%d, %d\nv_mov_b32 v%d, 0" % (vt, vt+1, LDS_CNT, vt+2))
    if two is not None: C("v_writelane_b32 v%d, s%d, 1" % (vt+2, two))
    C("s_mov_b64 exec, 1")
    C("ds_add_rtn_u32 v%d, v%d, v%d\ns_waitcnt lgkmcnt(0)" % (vt+3, vt+1, vt))
    C("v_and_b32 v%d, 3, v%d\nv_cmp_eq_u32 vcc, 3, v%d\ns_nop 0\ns_cbranch_vccz L_sk_%s" % (vt+3, vt+3, vt+3, uid))
    C("buffer_atomic_add v%d, v%d, %s, s%d offen sc1" % (vt, vt+2, WS, sSig))
    if sPoll is not None:
        if two is not None: C("s_mov_b64 exec, 3")
        poll(C, uid, sPoll, vt+2, vt+3, 16, sCnt, sleep)
    C.lab("L_sk_%s" % uid)
    C("s_mov_b64 exec, -1")
def xsum_q(k, v, t, op="v_add_f32"):
    k("v_mov_b32 v%d, v%d\ns_nop 1\nv_permlane32_swap_b32 v%d, v%d\n%s v%d, v%d, v%d" % (t, v, v, t, op, v, v, t))
    k("v_mov_b32 v%d, v%d\ns_nop 1\nv_permlane16_swap_b32 v%d, v%d\n%s v%d, v%d, v%d" % (t, v, v, t, op, v, v, t))
def xsum_q_multi(k, vs, ts, op="v_add_f32"):
    for swp in ("v_permlane32_swap_b32", "v_permlane16_swap_b32"):
        for v, t in zip(vs, ts): k("v_mov_b32 v%d, v%d" % (t, v))
        if len(vs) < 3: k("s_nop 1")
        for v, t in zip(vs, ts): k("%s v%d, v%d" % (swp, v, t))
        for v, t in zip(vs, ts): k("%s v%d, v%d, v%d" % (op, v, v, t))
def hoist_sel(k, sd, tau, n, scls, on):
    nxt = tau + 4 if tau + 4 < n else tau % 4
    if on and nxt != tau: return ["s_cmp_eq_u32 s%d, %d" % (scls, tau % 4), "s_cselect_b32 s%d, %d, %d" % (sd, nxt, tau)]
    return ["s_mov_b32 s%d, %d" % (sd, tau)]
```

```python
import sys
from ph_prep import *
from ph_proj import *
from ph_attn import *
from ph_gmlp import *
HEADER = """; Generated by dev/gen.py (hand-written generator): LN+local attention / LN+gMLP x2 on gfx950.
; kernarg: x, wqkv, wo, (B_x unused), w_in, w_sp, b_sp, w_out, out, debug, ws"""
def prologue(k, uid, diag):
    k("s_cmp_ge_u32 s2, 256\ns_cbranch_scc1 L_end_%s" % uid)
    stamp(k, diag, 0)
    k("s_load_dwordx2 s[24:25], s[0:1], %d\ns_load_dwordx4 s[28:31], s[0:1], %d\ns_load_dwordx2 s[26:27], s[0:1], %d" % (KA_WS, KA_WSP, KA_OUT))
    k("v_lshrrev_b32 v2, 6, v0\nv_and_b32 v1, 63, v0\nv_lshlrev_b32 v1, 4, v1\nv_readfirstlane_b32 s23, v2")
    k("v_mov_b32 v2, %d\nv_mov_b32 v3, 0\nds_write_b32 v2, v3" % LDS_CNT)
    k("s_mul_i32 s%d, s%d, 0x%x\ns_and_b32 s%d, s23, 3" % (sLB, sLAY, LAYER_STRIDE, sW))
    k("s_waitcnt lgkmcnt(0)")
    srd(k, 4, 24, WS_BYTES); srd(k, 8, 28, 2048*4096); srd(k, 12, 30, 4096); srd(k, 16, 26, 2048*1152)
    k("s_cmp_ge_u32 s23, 4\ns_cbranch_scc1 L_ld_%s" % uid)
PH = {1: lambda C, L, f, l, o, **kw: attn(C, L, f, l, o, **kw), 2: lambda C, L, f, l, o, **kw: proj(C, L, 2, f, l, o, **kw),
      3: lambda C, L, f, l, o, **kw: gmlp(C, L, f, l, o, **kw), 5: lambda C, L, f, l, o, **kw: proj(C, L, 5, f, l, o, **kw)}
def single_phase(p, o, diag):
    uid = "p%d" % p
    k1 = Kern("p%dl1_kernel" % p, 256, 512, lds=163840, vgpr=256)
    k1("s_mov_b32 s%d, 1\ns_branch L_go_%s" % (sLAY, uid))
    k0 = Kern("p%dl0_kernel" % p, 256, 512, lds=163840, vgpr=256)
    k0("s_mov_b32 s%d, 0" % sLAY); k0.lab("L_go_" + uid)
    prologue(k0, uid, diag)
    C, L = Stream(), Stream()
    PH[p](C, L, True, True, o, diag=diag, st0=1)
    assert C.nbar == L.nbar + (1 if p == 1 else 0), (p, C.nbar, L.nbar)
    if diag:
        stamp(C, diag, 10); C("s_waitcnt vmcnt(0)"); stamp(C, diag, 11)
        C("s_lshl_b32 s69, s%d, 3\ns_add_u32 s69, s69, %d" % (sLAY, p)); stamp_flush(C, diag, 69, uid)
    k0.L += C.L; k0("s_endpgm"); k0.L += getattr(C, "tail", [])
    k0.lab("L_ld_" + uid); k0.L += L.L
    k0.lab("L_end_" + uid); k0("s_endpgm")
    return k0, k1
def multi(o={}, diag=False):
    ks = {p: single_phase(p, o, diag) for p in (1, 2, 3, 5)}
    return [gen_prep(diag=diag, o=o)] + [ks[p][l] for l in range(2) for p in (1, 2, 3, 5)]
if __name__ == "__main__":
    out = sys.argv[1] if len(sys.argv) > 1 else "multi.s"
    open(out, "w").write(build(multi(), HEADER))
```

```python
from asmlib import *
from layout import *
KA_X, KA_WQKV, KA_WO, KA_BX, KA_WIN, KA_WSP, KA_BSP, KA_WOUT, KA_OUT, KA_DBG, KA_WS = [8*i for i in range(11)]
import struct
def f2u(x): return struct.unpack("<I", struct.pack("<f", x))[0]

def interleave(main, extras):
    out = []
    byp = {}
    for p, s in extras: byp.setdefault(p, []).append(s)
    out += byp.get(-1, [])
    for i, m in enumerate(main):
        out.append(m); out += byp.get(i, [])
    for p in byp: assert -1 <= p < len(main), p
    return out

class Stream:
    def __init__(self): self.L = []; self.vm = []; self.nbar = 0
    def __call__(self, s):
        for ln in s.split("\n"):
            ln = ln.strip()
            if not ln: continue
            if ln == "s_barrier": self.nbar += 1
            self.L.append(ln if ln.endswith(":") else "    " + ln)
    def lab(self, l): self.L.append(l + ":")
    def issue(self, tag): self.vm.append(tag)
    def vmn(self, *tags):
        last = max([i for i, t in enumerate(self.vm) if t in tags], default=-1)
        n = len(self.vm) - 1 - last
        self.vm = self.vm[last+1:]
        return min(n, 63)

def vr(a, n=4): return "v[%d:%d]" % (a, a+n-1)
def mfma(d, a, b, c=None):
    return "v_mfma_f32_16x16x32_bf16 %s, %s, %s, %s" % (vr(d), vr(a), vr(b), vr(d) if c is None else (vr(c) if c != 'z' else "0"))

WS, WSP, BSP, OUT = "s[4:7]", "s[8:11]", "s[12:15]", "s[16:19]"
sW, sLB, sLAY = 20, 21, 22
LDS_CNT = 163832
NSTAMP = 20
def stamp(k, on, n):
    if on: k("s_memrealtime s[%d:%d]" % (62 + 2*n, 63 + 2*n))
def stamp_flush(k, on, slot_sgpr, uid, vt=2, wait=True):
    if not on: return
    k("s_waitcnt lgkmcnt(0)")
    k("s_lshl_b32 s58, s%d, 18\ns_lshl_b32 s59, s2, 9\ns_add_u32 s58, s58, s59\ns_lshl_b32 s59, s%d, 7\ns_add_u32 s58, s58, s59\ns_add_u32 s58, s58, 0x%x" % (slot_sgpr, sW, WS_STAMP))
    for i in range(NSTAMP): k("v_mov_b32 v%d, s%d" % (vt+i, 62+2*i))
    k("v_mov_b32 v%d, 0\ns_mov_b64 exec, 1" % (vt+NSTAMP))
    for i in range(NSTAMP//4): k("buffer_store_dwordx4 %s, v%d, %s, s58 offen offset:%d" % (vr(vt+4*i), vt+NSTAMP, WS, 16*i))
    k("s_mov_b64 exec, -1\ns_nop 1")
    if wait: k("s_waitcnt vmcnt(0)")
```

```python
from ph_sync import *
L_HALO, L_EX, L_CS = 131072, 149504, 161792
def attn_coords(k, o):
    k("s_and_b32 s25, s2, 7\ns_lshr_b32 s26, s2, 3")
    m = o.get("amap", 0)
    if m == 0:
        k("s_lshl_b32 s23, s25, 1\ns_lshr_b32 s27, s26, 4\ns_add_u32 s23, s23, s27\ns_and_b32 s24, s26, 15")
    elif m == 1:
        k("s_lshr_b32 s23, s25, 1\ns_lshl_b32 s23, s23, 2\ns_lshr_b32 s27, s26, 3\ns_add_u32 s23, s23, s27")
        k("s_and_b32 s24, s25, 1\ns_lshl_b32 s24, s24, 3\ns_and_b32 s27, s26, 7\ns_add_u32 s24, s24, s27")
def row_stats(raw, dst, tmp):
    k = Stream(); n = len(raw)
    for r_, d in zip(raw, dst): k("v_add_f32 v%d, v%d, v%d\nv_add_f32 v%d, v%d, v%d" % (d, r_, r_+2, d+1, r_+1, r_+3))
    vs = [d+i for d in dst for i in range(2)]; ts = [r_+i for r_ in raw for i in range(2)]
    xsum_q_multi(k, vs, ts)
    for d in dst: k("v_mul_f32 v%d, 0x%x, v%d\nv_mul_f32 v%d, 0x%x, v%d" % (d, f2u(1/576), d, d+1, f2u(1/576), d+1))
    for d in dst: k("v_fma_f32 v%d, -v%d, v%d, v%d" % (d+1, d, d, d+1))
    for d in dst: k("v_max_f32 v%d, 0, v%d" % (d+1, d+1))
    for d in dst: k("v_add_f32 v%d, 0x%x, v%d" % (d+1, f2u(1e-5), d+1))
    for d in dst: k("v_rsq_f32 v%d, v%d" % (d+1, d+1))
    k("s_nop 0")
    return [l.strip() for l in k.L]
BARS = [0, 2, 4, 6, 9, 11, 13, 16]
def attn_loader(L, preload, ybar, last, o):
    ld = o.get("ld", ""); bars = BARS
    attn_coords(L, o)
    L("s_mul_i32 s29, s24, %d\ns_lshl_b32 s30, s%d, 12\ns_add_u32 s29, s29, s30\ns_add_u32 s29, s29, 0x%x" % (18*7168, sW, WS_WQ))
    L("s_lshl_b32 s31, s23, 3\ns_max_u32 s31, s31, 1\ns_sub_u32 s31, s31, 1\ns_mul_i32 s31, s31, 18432\ns_add_u32 s31, s31, s%d\ns_add_u32 s31, s31, 0x%x" % (sLB, WS_XA))
    L("s_lshl_b32 s32, s%d, 10\ns_and_b32 s33, s32, 1024" % sW)
    def lg(g):
        L("s_add_u32 m0, s30, %d\ns_add_u32 s34, s29, %d" % (g*16384, g*16384))
        for j in range(4): L("buffer_load_dwordx4 v1, %s, s34 offen offset:%d lds" % (WS, j*1024)); L.issue(("g", g))
    def lh(i):
        sr = 32 if i < 4 else 33
        L("s_add_u32 m0, s%d, %d\ns_add_u32 s34, s31, s%d\ns_add_u32 s34, s34, %d" % (sr, L_HALO + i*4096, sr, i*4096))
        L("buffer_load_dwordx4 v1, %s, s34 offen %s lds" % (WS, ld)); L.issue(("h", i))
    def lcs():
        L("s_mov_b32 m0, %d\ns_lshl_b32 s34, s24, 10\ns_add_u32 s34, s34, 0x%x" % (L_CS, WS_CSQ))
        L("buffer_load_dwordx4 v1, %s, s34 offen lds" % WS); L.issue("cs")
    def need(bi):
        cl = (bars[bi+1] if bi + 1 < len(bars) else 18) - 1
        return [("g", g) for g in range((7*(cl+1) + 15)//16)] + [("h", i) for i in range(cl//4 + 1)] + (["cs"] if bi + 1 == len(bars) else [])
    done = []
    def lissue(tags):
        for t in sorted([t for t in tags if t not in done], key=lambda t: (99, 0) if t == "cs" else ((16*t[1]/7, 1) if t[0] == "g" else (4*t[1], 0))):
            done.append(t)
            if t == "cs": lcs()
            elif t[0] == "g": lg(t[1])
            else: lh(t[1])
    if preload: lissue([("g", g) for g in range(8)] + ["cs"])
    if ybar: L("s_barrier")
    for bi in range(len(bars)):
        lissue(need(min(bi + (1 if bi == 0 else 2), len(bars)-1)))
        L("s_waitcnt vmcnt(%d)\ns_barrier" % L.vmn(*need(bi)))
    if not last: L("s_barrier")
def attn(C, L, first, last, o, pre_dep=None, diag=False, st0=0):
    ld = o.get("ld", ""); stf = o.get("st", ""); bars = BARS
    if L is not None: attn_loader(L, not first, not first, last, o)
    ACC, HX, HY, BF, AW = 16, 80, 84, 88, 168
    MR = 240
    vW0, vW1, vH, vX0, vX1, vY0, vY1 = 246, 247, 248, 249, 250, 251, 252
    attn_coords(C, o)
    C("s_lshl_b32 s30, s23, 3\ns_lshl_b32 s31, s%d, 1\ns_add_u32 s31, s30, s31" % sW)
    C("s_mul_i32 s29, s31, 18432\ns_add_u32 s29, s29, s%d\ns_add_u32 s35, s29, 0x%x\ns_add_u32 s29, s29, 0x%x" % (sLB, WS_O, WS_XA))
    C("s_max_u32 s30, s30, 1\ns_sub_u32 s30, s30, 1\ns_lshl_b32 s30, s30, 10\ns_add_u32 s30, s30, s%d\ns_add_u32 s30, s30, 0x%x" % (sLB, WS_STA))
    C("s_lshl_b32 s32, s31, 10\ns_add_u32 s32, s32, s%d\ns_add_u32 s32, s32, 0x%x" % (sLB, WS_STA))
    C("v_and_b32 v2, 15, v0\nv_bfe_u32 v3, v0, 4, 2")
    C("s_add_u32 s33, s%d, 2\ns_add_u32 s34, s%d, 4\ns_cmp_ge_u32 s%d, 2\ns_cselect_b32 s33, 6, s33\ns_cselect_b32 s34, 6, s34" % (sW, sW, sW))
    C("s_lshl_b32 s36, s33, 10\ns_lshl_b32 s37, s34, 10")
    C("v_mov_b32 v%d, v1\nv_add_u32 v%d, 64512, v1\nv_add_u32 v%d, %d, v1" % (vW0, vW1, vH, L_HALO))
    C("v_add_u32 v%d, s36, v1\nv_add_u32 v%d, s36, v%d\nv_add_u32 v%d, s37, v1\nv_add_u32 v%d, s37, v%d" % (vX0, vX1, vW1, vY0, vY1, vW1))
    C("v_add_u32 v253, 18432, v1")
    for i in range(72): C("v_mov_b32 v%d, 0" % (ACC+i))
    if pre_dep: pre_dep()
    if not first: C("s_barrier")
    def aload(c):
        return [("buffer_load_dwordx4 %s, v%d, %s, s%d offen offset:%d %s" % (vr(AW + (c % 9)*8 + 4*a), 253 if a else 1, WS, 38 + c//4, (c % 4)*1024, ld), ("a", c)) for a in range(2)]
    for i in range(5): C("s_add_u32 s%d, s29, %d" % (38+i, 4096*i))
    for s, t in aload(0): C(s); C.issue(t)
    C("buffer_load_dwordx4 v[4:7], v1, %s, s30 offen %s" % (WS, ld)); C.issue("st")
    for a in range(2): C("buffer_load_dwordx4 %s, v1, %s, s32 offen offset:%d %s" % (vr(8+4*a), WS, 1024*a, ld)); C.issue("st")
    for c in range(1, o.get("a_pre", 5)):
        for s, t in aload(c): C(s); C.issue(t)
    nxt_a = o.get("a_pre", 5)
    def reads(c):
        b = BF + (c % 2)*40; hi = c >= 9; off = (c - 9*hi)*7168
        r_ = ["ds_read_b128 %s, v%d offset:%d" % (vr(b+4*t), vW1 if hi else vW0, off + 1024*t) for t in range(7)]
        r_.append("ds_read_b128 %s, v%d offset:%d" % (vr(b+28), vH, c*1024))
        r_.append("ds_read_b128 %s, v%d offset:%d" % (vr(b+32), vX1 if hi else vX0, off))
        r_.append("ds_read_b128 %s, v%d offset:%d" % (vr(b+36), vY1 if hi else vY0, off))
        return r_
    C("s_barrier")
    stamp(C, diag, st0)
    for s in reads(0): C(s)
    acc = lambda a, t: ACC + (a*8 + t)*4
    fill = row_stats([4, 8, 12], [MR, MR+2, MR+4], None)
    CSA, CSB, CSV, IDX, MV, RV = 88, 168, 112, 120, 192, 204
    KOP, QOP, VOP, TQ, T = 128, 152, 168, 186, 216
    for c in range(18):
        b = BF + (c % 2)*40; x = lambda a: AW + (c % 9)*8 + 4*a
        mm = []
        for t in range(4):
            for a in range(2): mm.append(mfma(acc(a, t), b+4*t, x(a)))
        for t in range(2):
            for a in range(2): mm.append(mfma(acc(a, 5+t), x(a), b+16+4*t))
        for a in range(2): mm.append(mfma(acc(a, 4), b+24, x(a)))
        for a in range(2): mm.append(mfma(acc(a, 7), x(a), b+24))
        mm.append(mfma(HX, b+32, b+28)); mm.append(mfma(HY, b+28, b+36))
        n = C.vmn(("a", c)) if c != 1 else C.vmn(("a", c), "st")
        ex = []
        if c == 17:
            ex.append((-1, "s_waitcnt vmcnt(%d) lgkmcnt(0)" % n))
            rd = []
            for i, t in enumerate([2, 3, 6, None, 0, 1]):
                for h in range(2):
                    rd.append("ds_read_b128 %s, v%d offset:%d" % (vr((CSB if h else CSA) + 4*i), 5 if t is None else 4, h*512 + (t or 0)*64))
            for i, t in enumerate([4, 5, 6, None]):
                for h in range(2):
                    rd.append("ds_read_b32 v%d, v%d offset:%d" % (CSV + 4*h + i, 7 if t is None else 6, h*512 + (t or 0)*64))
            for tl in (2, 0, 1):
                for j in range(4):
                    rd.append("ds_bpermute_b32 v%d, v%d, v%d" % (MV + 4*tl + j, 8 + j, MR + 2*tl))
                    rd.append("ds_bpermute_b32 v%d, v%d, v%d" % (RV + 4*tl + j, 8 + j, MR + 2*tl + 1))
            for i, s in enumerate(rd): ex.append((i*18//len(rd), s))
        else:
            ex.append((-1, "s_waitcnt vmcnt(%d) lgkmcnt(6)" % n))
            if c + 1 in bars: ex.append((-1, "s_barrier"))
            for i, s in enumerate(reads(c+1)): ex.append((i, s))
            ex.append((7, "s_waitcnt lgkmcnt(8)"))
        pos = 10
        while nxt_a < 18 and nxt_a - 9 < c and pos < 17:
            for s, t in aload(nxt_a): ex.append((pos, s)); C.issue(t); pos += 2
            nxt_a += 1
        if 1 <= c <= 8:
            for i in range(8):
                if fill: ex.append((10 + i, fill.pop(0)))
        if c == 12:
            for i, s in enumerate(["v_lshlrev_b32 v4, 4, v3", "v_add_u32 v4, %d, v4" % L_CS, "s_lshl_b32 s36, s33, 6", "v_add_u32 v5, s36, v4",
                                   "v_lshlrev_b32 v6, 2, v2", "v_add_u32 v6, %d, v6" % L_CS, "s_lshl_b32 s37, s34, 6", "v_add_u32 v7, s37, v6"]): ex.append((10 + i, s))
        if c == 13:
            for i, s in enumerate(["v_lshlrev_b32 v8, 4, v3", "v_add_u32 v9, 4, v8", "v_add_u32 v10, 8, v8", "v_add_u32 v11, 12, v8"]): ex.append((10 + i, s))
        for s in interleave(mm, ex): C(s)
    assert not fill and nxt_a == 18
    stamp(C, diag, st0+1)
    C("v_and_b32 v4, 1, v2\nv_lshl_add_u32 v5, v3, 2, v4\nv_add_u32 v6, 2, v5")
    C("v_cmp_eq_u32 s[40:41], 1, v4\nv_cmp_le_u32 s[42:43], v5, v2\nv_cmp_le_u32 s[44:45], v6, v2\nv_cmp_eq_u32 s[46:47], 0, v3")
    C("v_mov_b32 v4, 0xffff\nv_mov_b32 v5, 0xffff0000\nv_cndmask_b32 v4, v4, v5, s[40:41]")
    C("v_cndmask_b32 v12, v4, 0, s[42:43]\nv_cndmask_b32 v13, v4, 0, s[44:45]\nv_cndmask_b32 v14, 0, v4, s[42:43]\nv_cndmask_b32 v15, 0, v4, s[44:45]")
    C("s_cmp_eq_u32 s31, 0\ns_cselect_b64 s[48:49], s[42:43], -1\ns_cselect_b64 s[50:51], s[44:45], -1")
    C("v_lshrrev_b32 v8, 1, v1\ns_mul_i32 s36, s%d, 3072\ns_add_u32 s36, s36, %d\nv_add_u32 v9, s36, v8" % (sW, L_EX))
    C("s_lshl_b32 s37, s%d, 9\ns_add_u32 s37, s37, %d\nv_add_u32 v10, s37, v8" % (sW, L_EX))
    C("s_waitcnt lgkmcnt(0)")
    for i in range(12): C("v_pk_add_f32 %s, %s, %s" % (vr(CSA+2*i, 2), vr(CSA+2*i, 2), vr(CSB+2*i, 2)))
    for i in range(2): C("v_pk_add_f32 %s, %s, %s" % (vr(CSV+2*i, 2), vr(CSV+2*i, 2), vr(CSV+4+2*i, 2)))
    def conv(items):
        for a_, kd, ci, tl, d in items:
            for p in range(2):
                if kd == 'q': C("v_pk_fma_f32 %s, %s, %s, %s op_sel_hi:[0,1,1] neg_lo:[1,0,0] neg_hi:[1,0,0]" % (vr(a_+2*p, 2), vr(MR+2*tl, 2), vr(CSA+4*ci+2*p, 2), vr(a_+2*p, 2)))
                else: C("v_pk_fma_f32 %s, %s, %s, %s op_sel:[0,%d,0] op_sel_hi:[1,%d,1] neg_lo:[1,0,0] neg_hi:[1,0,0]" % (vr(a_+2*p, 2), vr(MV+4*tl+2*p, 2), vr(CSV+(ci & 2), 2), vr(a_+2*p, 2), ci & 1, ci & 1))
        for a_, kd, ci, tl, d in items:
            for p in range(2):
                if kd == 'q': C("v_pk_mul_f32 %s, %s, %s op_sel:[0,1] op_sel_hi:[1,1]" % (vr(a_+2*p, 2), vr(a_+2*p, 2), vr(MR+2*tl, 2)))
                else: C("v_pk_mul_f32 %s, %s, %s" % (vr(a_+2*p, 2), vr(a_+2*p, 2), vr(RV+4*tl+2*p, 2)))
        for a_, kd, ci, tl, d in items:
            for p in range(2): C("v_cvt_pk_bf16_f32 v%d, v%d, v%d" % (d+p, a_+2*p, a_+2*p+1))
    kop = lambda tl, h: KOP + (tl*2 + h)*4
    def kv_items(a):
        tl = a + 1
        return [(acc(a, 2), 'q', 0, tl, kop(tl, 0)), (acc(a, 3), 'q', 1, tl, kop(tl, 1)), (acc(a, 4), 'q', 2, tl, TQ + 2*tl),
                (acc(a, 5), 'v', 0, tl, VOP + 2*tl), (acc(a, 6), 'v', 1, tl, VOP + 6 + 2*tl), (acc(a, 7), 'v', 2, tl, VOP + 12 + 2*tl)]
    it = kv_items(1)
    conv(it + [(HX, 'q', 3, 0, T), (HY, 'v', 3, 0, T+2)])
    C("s_cmp_eq_u32 s%d, 3\ns_cbranch_scc1 L_a_nw" % sW)
    for i, x_ in enumerate(it): C("ds_write_b64 v9, %s offset:%d" % (vr(x_[4], 2), 3072 + 512*i))
    C("ds_write_b64 v10, %s\nds_write_b64 v10, %s offset:1536" % (vr(T, 2), vr(T+2, 2)))
    C.lab("L_a_nw")
    conv(kv_items(0))
    C("s_waitcnt lgkmcnt(0)\ns_barrier")
    for i, d in enumerate([kop(0, 0), kop(0, 1), TQ, VOP, VOP+6, VOP+12]): C("ds_read_b64 %s, v9 offset:%d" % (vr(d, 2), 512*i))
    qop = lambda a, h: QOP + (a*2 + h)*4
    conv([(acc(a, h), 'q', 4+h, a+1, qop(a, h)) for a in range(2) for h in range(2)])
    for a in range(2):
        for h in range(2): C("v_cndmask_b32 v%d, 0, v%d, s[46:47]\nv_mov_b32 v%d, 0" % (qop(a, h)+2, TQ+2*(a+1)+h, qop(a, h)+3))
    for tl in range(3):
        for h in range(2): C("v_mov_b32 v%d, 0" % (kop(tl, h)+3))
    C("s_waitcnt lgkmcnt(0)")
    for tl in (1, 2, 0):
        for h in range(2): C("v_permlane16_swap_b32 v%d, v%d" % (TQ+2*tl+h, kop(tl, h)+2))
    for tl in (1, 2, 0):
        for h in range(2): C("v_cndmask_b32 v%d, 0, v%d, s[46:47]" % (kop(tl, h)+2, kop(tl, h)+2))
    C("s_nop 1")
    cmb = [(1, 0), (1, 1), (0, 0), (0, 1)]
    S = lambda i, cur: ACC + (i*2 + cur)*4
    for i, (a, h) in enumerate(cmb):
        C(mfma(S(i, 1), kop(a+1, h), qop(a, h), 'z')); C(mfma(S(i, 0), kop(a, h), qop(a, h), 'z'))
    C("s_lshl_b32 s36, s24, 10\nv_add_u32 v4, s36, v1\nv_add_u32 v5, 18432, v4")
    C("s_lshr_b32 s36, s24, 3\ns_lshl_b32 s36, s36, 10\ns_bfe_u32 s37, s24, 0x20001\ns_lshl_b32 s37, s37, 8\ns_add_u32 s36, s36, s37\ns_and_b32 s37, s24, 1\ns_lshl_b32 s37, s37, 3\ns_add_u32 s36, s36, s37\ns_add_u32 s36, s36, 16384")
    C("v_cmp_eq_u32 vcc, 2, v3\nv_lshl_add_u32 v6, v2, 4, s36\nv_bfrev_b32 v7, 1\nv_cndmask_b32 v6, v7, v6, vcc\nv_add_u32 v7, 18432, v6")
    C("v_mov_b32 v8, 0x%x\ns_mov_b32 s52, 0x%x" % (f2u(-1e30), f2u(18**-0.5 * 1.4426950408889634)))
    VAL, MX, TT, P = 48, 56, 60, 64
    for i in range(4):
        for jj in range(2):
            C("v_cndmask_b32 v%d, v%d, v%d, s[40:41]" % (S(i, 1)+2*jj, S(i, 1)+2*jj, S(i, 1)+2*jj+1))
            C("v_cndmask_b32 v%d, v%d, v%d, s[40:41]" % (S(i, 0)+2*jj, S(i, 0)+2*jj, S(i, 0)+2*jj+1))
            C("v_cndmask_b32 v%d, v%d, v%d, s[%d:%d]" % (VAL+2*i+jj, S(i, 0)+2*jj, S(i, 1)+2*jj, 42+2*jj, 43+2*jj))
            if cmb[i][0] == 0: C("v_cndmask_b32 v%d, v8, v%d, s[%d:%d]" % (VAL+2*i+jj, VAL+2*i+jj, 48+2*jj, 49+2*jj))
        C("v_max_f32 v%d, v%d, v%d" % (MX+i, VAL+2*i, VAL+2*i+1))
    xsum_q_multi(C, [MX+i for i in range(4)], [TT+i for i in range(4)], "v_max_f32")
    for i in range(4): C("v_mul_f32 v%d, s52, v%d" % (MX+i, MX+i))
    for i in range(4):
        for jj in range(2): C("v_fma_f32 v%d, v%d, s52, -v%d" % (VAL+2*i+jj, VAL+2*i+jj, MX+i))
    for i in range(8): C("v_exp_f32 v%d, v%d" % (VAL+i, VAL+i))
    for i in range(4): C("v_add_f32 v%d, v%d, v%d" % (MX+i, VAL+2*i, VAL+2*i+1))
    xsum_q_multi(C, [MX+i for i in range(4)], [TT+i for i in range(4)])
    for i in range(4): C("v_rcp_f32 v%d, v%d" % (MX+i, MX+i))
    for i in range(4):
        for jj in range(2): C("v_mul_f32 v%d, v%d, v%d" % (VAL+2*i+jj, VAL+2*i+jj, MX+i))
    for i in range(8): C("v_cvt_pk_bf16_f32 v%d, v%d, v%d" % (VAL+i, VAL+i, VAL+i))
    for i in range(4):
        for e in range(4): C("v_and_b32 v%d, v%d, v%d" % (P+4*i+e, VAL+2*i+(e & 1), 12+e))
    C("s_nop 1")
    for i, (a, h) in enumerate(cmb):
        C(mfma(S(i, 0), VOP + 6*h + 2*a, P+4*i, 'z')); C(mfma(S(i, 1), VOP + 12 + 2*a, P+4*i, 'z'))
    C("s_nop 3")
    for ii, a in enumerate((1, 0)):
        d = T + 8*ii; i0 = 2*ii
        if ii: C("s_nop 0")
        C("v_cvt_pk_bf16_f32 v%d, v%d, v%d\nv_cvt_pk_bf16_f32 v%d, v%d, v%d" % (d, S(i0, 0), S(i0, 0)+1, d+1, S(i0, 0)+2, S(i0, 0)+3))
        C("v_cvt_pk_bf16_f32 v%d, v%d, v%d" % (d+4, S(i0, 1), S(i0, 1)+1))
        C("v_cvt_pk_bf16_f32 v%d, v%d, v%d\nv_cvt_pk_bf16_f32 v%d, v%d, v%d" % (d+2, S(i0+1, 0), S(i0+1, 0)+1, d+3, S(i0+1, 0)+2, S(i0+1, 0)+3))
        C("v_cvt_pk_bf16_f32 v%d, v%d, v%d" % (d+5, S(i0+1, 1)+2, S(i0+1, 1)+3))
        C("buffer_store_dwordx4 %s, v%d, %s, s35 offen %s" % (vr(d), 4+a, WS, stf))
        C("buffer_store_dwordx2 %s, v%d, %s, s35 offen %s" % (vr(d+4, 2), 6+a, WS, stf))
    if not last: flag_addr(C, 45, F_P1, 23)
```

```python
import sys
from ph_prep import *
from ph_proj import *
from ph_attn import *
from ph_gmlp import *
HEADER = """; Generated by dev/gen.py (hand-written generator): LN+local attention / LN+gMLP x2 on gfx950.
; kernarg: x, wqkv, wo, (B_x unused), w_in, w_sp, b_sp, w_out, out, debug, ws"""
def prologue(k, uid, diag):
    k("s_cmp_ge_u32 s2, 256\ns_cbranch_scc1 L_end_%s" % uid)
    stamp(k, diag, 0)
    k("s_load_dwordx2 s[24:25], s[0:1], %d\ns_load_dwordx4 s[28:31], s[0:1], %d\ns_load_dwordx2 s[26:27], s[0:1], %d" % (KA_WS, KA_WSP, KA_OUT))
    k("v_lshrrev_b32 v2, 6, v0\nv_and_b32 v1, 63, v0\nv_lshlrev_b32 v1, 4, v1\nv_readfirstlane_b32 s23, v2")
    k("v_mov_b32 v2, %d\nv_mov_b32 v3, 0\nds_write_b32 v2, v3" % LDS_CNT)
    k("s_mul_i32 s%d, s%d, 0x%x\ns_and_b32 s%d, s23, 3" % (sLB, sLAY, LAYER_STRIDE, sW))
    k("s_waitcnt lgkmcnt(0)")
    srd(k, 4, 24, WS_BYTES); srd(k, 8, 28, 2048*4096); srd(k, 12, 30, 4096); srd(k, 16, 26, 2048*1152)
    k("s_cmp_ge_u32 s23, 4\ns_cbranch_scc1 L_ld_%s" % uid)
PH = {1: lambda C, L, f, l, o, **kw: attn(C, L, f, l, o, **kw), 2: lambda C, L, f, l, o, **kw: proj(C, L, 2, f, l, o, **kw),
      3: lambda C, L, f, l, o, **kw: gmlp(C, L, f, l, o, **kw), 5: lambda C, L, f, l, o, **kw: proj(C, L, 5, f, l, o, **kw)}
def single_phase(p, o, diag):
    uid = "p%d" % p
    k1 = Kern("p%dl1_kernel" % p, 256, 512, lds=163840, vgpr=256)
    k1("s_mov_b32 s%d, 1\ns_branch L_go_%s" % (sLAY, uid))
    k0 = Kern("p%dl0_kernel" % p, 256, 512, lds=163840, vgpr=256)
    k0("s_mov_b32 s%d, 0" % sLAY); k0.lab("L_go_" + uid)
    prologue(k0, uid, diag)
    C, L = Stream(), Stream()
    PH[p](C, L, True, True, o, diag=diag, st0=1)
    assert C.nbar == L.nbar + (1 if p == 1 else 0), (p, C.nbar, L.nbar)
    if diag:
        stamp(C, diag, 10); C("s_waitcnt vmcnt(0)"); stamp(C, diag, 11)
        C("s_lshl_b32 s61, s%d, 3\ns_add_u32 s61, s61, %d" % (sLAY, p)); stamp_flush(C, diag, 61, uid)
    k0.L += C.L; k0("s_endpgm"); k0.L += getattr(C, "tail", [])
    k0.lab("L_ld_" + uid); k0.L += L.L
    k0.lab("L_end_" + uid); k0("s_endpgm")
    return k0, k1
def mega(o={}, diag=False, name="mega_kernel"):
    o = dict(dict(ld="sc1", st="sc1"), **o)
    k = Kern(name, 256, 512, lds=163840, vgpr=256)
    k("s_mov_b32 s%d, 0" % sLAY)
    prologue(k, "m", diag)
    C, L = Stream(), Stream()
    sl = o.get("sleep", 4)
    def dep(uid, kind, grp, vt, stn):
        def f():
            if grp == "half": C("s_lshr_b32 s44, s23, 1")
            else: C("s_mov_b32 s44, s23")
            flag_addr(C, 46, kind, 44)
            stamp(C, diag, stn)
            signal_and_poll(C, uid, 45, 46, vt, sleep=sl)
        return f
    def dep1():
        C("s_cmp_eq_u32 s%d, 0\ns_cbranch_scc1 L_m_nodep" % sLAY)
        C("s_max_u32 s44, s23, 1\ns_sub_u32 s44, s44, 1\ns_min_u32 s47, s23, 1\ns_lshl_b32 s47, s47, 8")
        flag_addr(C, 46, F_P5, 44)
        C("s_sub_u32 s46, s46, 65536")
        signal_and_poll(C, "d1", 45, 46, 4, two=47, sleep=sl)
        C.lab("L_m_nodep")
    C.lab("L_m_cl")
    attn(C, None, False, False, o, pre_dep=dep1, diag=diag, st0=1)
    attn_loader(L, False, True, False, o)
    assert C.nbar == L.nbar
    L.lab("L_m_ll"); L.vm = []; C.vm = []
    proj(C, L, 2, False, False, o, pre_dep=dep("d2", F_P1, "half", 220, 3), diag=diag, st0=4); assert C.nbar == L.nbar
    gmlp(C, L, False, False, o, pre_dep=dep("d3", F_P2, "full", 4, 6), diag=diag, st0=7); assert C.nbar == L.nbar
    proj(C, L, 5, False, False, o, pre_dep=dep("d5", F_P4, "half", 220, 15), diag=diag, st0=16); assert C.nbar == L.nbar
    if diag:
        stamp(C, diag, 18)
        C("s_cmp_eq_u32 s%d, 0\ns_cbranch_scc1 L_m_nw\ns_waitcnt vmcnt(0)" % sLAY); C.lab("L_m_nw")
        stamp(C, diag, 19)
        stamp_flush(C, diag, sLAY, "m", vt=16, wait=False)
        stamp(C, diag, 0)
    for st in (C, L):
        st("s_cmp_eq_u32 s%d, 1\ns_cbranch_scc1 L_end_m\ns_mov_b32 s%d, 1\ns_mov_b32 s%d, 0x%x" % (sLAY, sLAY, sLB, LAYER_STRIDE))
    C("s_branch L_m_cl")
    attn_loader(L, True, True, False, o)
    L("s_branch L_m_ll")
    k.L += C.L + C.tail
    k.lab("L_ld_m"); k.L += L.L
    k.lab("L_end_m"); k("s_endpgm")
    return [gen_prep(diag=diag, o=o), k]
def multi(o={}, diag=False):
    ks = {p: single_phase(p, o, diag) for p in (1, 2, 3, 5)}
    return [gen_prep(diag=diag, o=o)] + [ks[p][l] for l in range(2) for p in (1, 2, 3, 5)]
if __name__ == "__main__":
    out = sys.argv[1] if len(sys.argv) > 1 else "multi.s"
    o = eval(sys.argv[2]) if len(sys.argv) > 2 else {}
    open(out, "w").write(build(multi(o) if o.get("multi") else mega(o), HEADER))
```

```python
from asmlib import *
from layout import *
KA_X, KA_WQKV, KA_WO, KA_BX, KA_WIN, KA_WSP, KA_BSP, KA_WOUT, KA_OUT, KA_DBG, KA_WS = [8*i for i in range(11)]
import struct
def f2u(x): return struct.unpack("<I", struct.pack("<f", x))[0]

def interleave(main, extras):
    out = []
    byp = {}
    for p, s in extras: byp.setdefault(p, []).append(s)
    out += byp.get(-1, [])
    for i, m in enumerate(main):
        out.append(m); out += byp.get(i, [])
    for p in byp: assert -1 <= p < len(main), p
    return out

class Stream:
    def __init__(self): self.L = []; self.vm = []; self.nbar = 0
    def __call__(self, s):
        for ln in s.split("\n"):
            ln = ln.strip()
            if not ln: continue
            if ln == "s_barrier": self.nbar += 1
            self.L.append(ln if ln.endswith(":") else "    " + ln)
    def lab(self, l): self.L.append(l + ":")
    def issue(self, tag): self.vm.append(tag)
    def vmn(self, *tags):
        last = max([i for i, t in enumerate(self.vm) if t in tags], default=-1)
        n = len(self.vm) - 1 - last
        self.vm = self.vm[last+1:]
        return min(n, 63)

def vr(a, n=4): return "v[%d:%d]" % (a, a+n-1)
def mfma(d, a, b, c=None):
    return "v_mfma_f32_16x16x32_bf16 %s, %s, %s, %s" % (vr(d), vr(a), vr(b), vr(d) if c is None else (vr(c) if c != 'z' else "0"))

WS, WSP, BSP, OUT = "s[4:7]", "s[8:11]", "s[12:15]", "s[16:19]"
sW, sLB, sLAY = 20, 21, 22
LDS_CNT = 163832
NSTAMP = 20
def stamp(k, on, n):
    if not on: return
    if isinstance(n, str):
        grp = [x for x in on if x.startswith("L") == n.startswith("L")]
        if n not in grp: return
        n = grp.index(n); assert n < NSTAMP
    k("s_memrealtime s[%d:%d]" % (62 + 2*n, 63 + 2*n))
def stamp_flush(k, on, slot_sgpr, uid, vt=2, wait=True):
    if not on: return
    k("s_waitcnt lgkmcnt(0)")
    k("s_lshl_b32 s58, s%d, 18\ns_lshl_b32 s59, s2, 9\ns_add_u32 s58, s58, s59\ns_lshl_b32 s59, s%d, 7\ns_add_u32 s58, s58, s59\ns_add_u32 s58, s58, 0x%x" % (slot_sgpr, sW, WS_STAMP))
    for i in range(NSTAMP): k("v_mov_b32 v%d, s%d" % (vt+i, 62+2*i))
    k("v_mov_b32 v%d, 0\ns_mov_b64 exec, 1" % (vt+NSTAMP))
    for i in range(NSTAMP//4): k("buffer_store_dwordx4 %s, v%d, %s, s58 offen offset:%d" % (vr(vt+4*i), vt+NSTAMP, WS, 16*i))
    k("s_mov_b64 exec, -1\ns_nop 1")
    if wait: k("s_waitcnt vmcnt(0)")
```

```python
import numpy as np
S, D, FH = 2048, 576, 2304
MB = 1 << 20
import os
B0 = int(os.environ.get('WSB', '0'))*MB
LAYER_STRIDE = 28*MB
WS_XA  = B0+0*MB
WS_XB  = B0+3*MB
WS_O   = B0+6*MB
WS_Z2  = B0+9*MB
WS_H   = B0+18*MB
WS_STA = B0+27*MB
WS_STB = B0+27*MB + 2*65536
WS_ZS  = B0+27*MB + 4*65536
WS_W0  = B0+2*LAYER_STRIDE
WS_WQ  = WS_W0 + 0*MB
WS_WO  = WS_W0 + 2*MB
WS_WI  = WS_W0 + 3*MB
WS_WU  = WS_W0 + 9*MB
WS_CSQ = WS_W0 + 12*MB
WS_CSI = WS_W0 + 12*MB + 65536
WS_FLAG = WS_W0 + 13*MB
WS_STAMP = 100*MB
WS_BYTES = 268435456

cqi = lambda nc: np.meshgrid(np.arange(nc), np.arange(4), np.arange(8), indexing="ij")
def dmap():
    c, q, i = cqi(18)
    d = np.where(c < 16, 72*(c >> 1) + 32*(c & 1) + 8*q + i, 72*(4*(c-16) + q) + 64 + i)
    assert sorted(d.ravel()) == list(range(576)); return d
def omap():
    c, q, i = cqi(18)
    hp = 8*(c-16) + 2*q + (i >> 2)
    e = np.where(c < 16, 36*c + 20*(i >> 2) + 4*q + (i & 3), 36*hp + 16 + (i & 3))
    assert sorted(e.ravel()) == list(range(576)); return e
def hmap():
    c, q, i = cqi(72)
    fb = np.where(c < 64, c >> 2, 2*(c-64) + (i >> 2))
    tile = np.where(c < 64, 2*(c & 3) + (i >> 2), 8)
    f = 144*fb + 16*tile + 4*q + (i & 3)
    assert sorted(f.ravel()) == list(range(2304)); return f
def prow():
    p = np.arange(2048); a = (p >> 4) & 1; r = p & 15
    return (p & ~31) + 8*(r >> 2) + 4*a + (r & 3)
def pack_rows(a, kmap, porder=False):
    if porder: a = a[prow()]
    a = a.reshape(128, 16, -1)
    o = a[:, :, kmap]
    return np.ascontiguousarray(o.transpose(0, 2, 3, 1, 4))
def unsplit(p, kind):
    nc, c0 = (18, 16) if kind == 'o' else (72, 64)
    p = p.reshape(128, nc, 512).copy()
    t = p[:, c0:]
    t = t.reshape(128, nc-c0, 4, 2, 16, 4).transpose(0, 1, 2, 4, 3, 5) if kind == 'o' else t.reshape(128, nc-c0, 2, 4, 16, 4).transpose(0, 1, 3, 4, 2, 5)
    p[:, c0:] = t.reshape(128, nc-c0, 512)
    return p
def unpack_rows(p, kmap, porder=False):
    nc = kmap.shape[0]; K = nc*32
    p = p.reshape(128, nc, 4, 16, 8).transpose(0, 3, 1, 2, 4)
    a = np.empty((128, 16, K), p.dtype)
    a[:, :, kmap] = p
    a = a.reshape(2048, K)
    if porder:
        b = np.empty_like(a); b[prow()] = a; a = b
    return a
def pack_stats(x, porder=False):
    if porder: x = x[prow()]
    b = x.reshape(128, 16, 4, 2, 72).astype(np.float32)
    st = np.stack([b.sum(-1), (b*b).sum(-1)], -1)
    return np.ascontiguousarray(st.transpose(0, 2, 1, 3, 4))
def unpack_stats(p, porder=False):
    p = p.reshape(128, 8, 16, 2).sum(1).reshape(2048, 2)
    if porder:
        b = np.empty_like(p); b[prow()] = p; p = b
    return p
def pack_z2(z):
    z = z.reshape(64, 4, 8, 16, 9, 16)
    return np.ascontiguousarray(z.transpose(3, 0, 4, 1, 5, 2))
def unpack_z2(p):
    p = p.reshape(16, 64, 9, 4, 16, 8)
    return np.ascontiguousarray(p.transpose(1, 3, 5, 0, 2, 4)).reshape(2048, 2304)
def qkv_cols():
    m = -np.ones((16, 7, 16), int)
    for hp in range(16):
        for part in range(3):
            base = part*576 + 36*hp
            m[hp, 2*part, :] = base + np.arange(16)
            m[hp, 2*part + 1, :] = base + 20 + np.arange(16)
            m[hp, 6, 4*part: 4*part + 4] = base + 16 + np.arange(4)
    return m
def pack_wq(w):
    m = qkv_cols(); d = dmap()
    wz = np.concatenate([w, np.zeros((576, 1), w.dtype)], 1)
    o = wz[d[:, :, :, None, None, None], m[None, None, None]]
    return np.ascontiguousarray(o.transpose(3, 0, 4, 1, 5, 2))
def pack_csq(wf):
    m = qkv_cols(); o = np.zeros((16, 2, 8, 16), np.float32)
    for h in range(2):
        cs = np.concatenate([wf[288*h:288*h+288].sum(0), [0]]).astype(np.float32)
        o[:, h, :7] = cs[m]
    return o
def pack_wo(w, kmap):
    nc = kmap.shape[0]
    o = np.empty((8, nc//2, 9, 4, 16, 8), w.dtype)
    r = np.arange(16)
    for cb in range(8):
        for e in range(2):
            for a in range(4):
                dcol = 72*cb + 32*(a >> 1) + 8*(r >> 2) + 4*(a & 1) + (r & 3)
                o[cb, :, 4*e + a] = w[kmap[e::2][:, :, None, :], dcol[None, None, :, None]]
            dcol = 72*cb + 64 + np.arange(8)
            o[cb, :, 8, :, 8*e:8*e+8, :] = w[kmap[e::2][:, :, None, :], dcol[None, None, :, None]]
    return o
def win_cols():
    cb, ps, ft, r = np.meshgrid(np.arange(16), np.arange(2), np.arange(9), np.arange(16), indexing="ij")
    return 2304*(1-ps) + 144*cb + 16*ft + r
def pack_wi(w):
    m = win_cols(); d = dmap()
    o = w[d[None, None, :, None, :, None, :], m[:, :, None, :, None, :, None]]
    return np.ascontiguousarray(o)
def pack_csi(wf):
    m = win_cols()
    o = np.zeros((16, 1024), np.float32)
    o[:, :576] = np.stack([wf[288*h:288*h+288].sum(0).astype(np.float32)[m] for h in range(2)], 1).reshape(16, 576)
    return o
if __name__ == "__main__":
    dmap(); omap(); hmap()
    w = np.arange(576*1728).reshape(576, 1728); print(pack_wq(w).shape)
    w = np.arange(2304*576).reshape(2304, 576); p = pack_wo(w, hmap()); print(p.shape, len(np.unique(p)) == w.size)
    w = np.arange(576*4608).reshape(576, 4608); p = pack_wi(w); print(p.shape, len(np.unique(p)) == w.size)
    a = np.arange(2048*2304).reshape(2048, 2304); assert (unpack_rows(pack_rows(a, hmap(), True), hmap(), True) == a).all(); assert (unpack_z2(pack_z2(a)) == a).all()
```

```python
from ph_sync import *
L_HALO, L_EX, L_CS = 131072, 149504, 161792
def attn_coords(k, o):
    k("s_and_b32 s25, s2, 7\ns_lshr_b32 s26, s2, 3")
    m = o.get("amap", 0)
    if m == 0:
        k("s_lshl_b32 s23, s25, 1\ns_lshr_b32 s27, s26, 4\ns_add_u32 s23, s23, s27\ns_and_b32 s24, s26, 15")
    elif m == 2:
        k("s_and_b32 s23, s25, 1\ns_lshl_b32 s23, s23, 3\ns_lshr_b32 s27, s26, 2\ns_add_u32 s23, s23, s27")
        k("s_lshr_b32 s24, s25, 1\ns_lshl_b32 s24, s24, 2\ns_and_b32 s27, s26, 3\ns_add_u32 s24, s24, s27")
    elif m == 1:
        k("s_lshr_b32 s23, s25, 1\ns_lshl_b32 s23, s23, 2\ns_lshr_b32 s27, s26, 3\ns_add_u32 s23, s23, s27")
        k("s_and_b32 s24, s25, 1\ns_lshl_b32 s24, s24, 3\ns_and_b32 s27, s26, 7\ns_add_u32 s24, s24, s27")
def row_stats(raw, dst, tmp):
    k = Stream(); n = len(raw)
    for r_, d in zip(raw, dst): k("v_add_f32 v%d, v%d, v%d\nv_add_f32 v%d, v%d, v%d" % (d, r_, r_+2, d+1, r_+1, r_+3))
    vs = [d+i for d in dst for i in range(2)]; ts = [r_+i for r_ in raw for i in range(2)]
    xsum_q_multi(k, vs, ts)
    for d in dst: k("v_mul_f32 v%d, 0x%x, v%d\nv_mul_f32 v%d, 0x%x, v%d" % (d, f2u(1/576), d, d+1, f2u(1/576), d+1))
    for d in dst: k("v_fma_f32 v%d, -v%d, v%d, v%d" % (d+1, d, d, d+1))
    for d in dst: k("v_max_f32 v%d, 0, v%d" % (d+1, d+1))
    for d in dst: k("v_add_f32 v%d, 0x%x, v%d" % (d+1, f2u(1e-5), d+1))
    for d in dst: k("v_rsq_f32 v%d, v%d" % (d+1, d+1))
    k("s_nop 0")
    return [l.strip() for l in k.L]
BARS = [0, 2, 4, 6, 9, 11, 13, 16]
class P1L:
    def __init__(s, L, o): s.L = L; s.o = o; s.done = []
    def setup(s, nxt):
        L = s.L
        attn_coords(L, s.o)
        L("s_mul_i32 s29, s24, %d\ns_lshl_b32 s30, s%d, 12\ns_add_u32 s29, s29, s30\ns_add_u32 s29, s29, 0x%x" % (18*7168, sW, WS_WQ))
        L("s_lshl_b32 s31, s23, 3\ns_max_u32 s31, s31, 1\ns_sub_u32 s31, s31, 1\ns_mul_i32 s31, s31, 18432\ns_add_u32 s31, s31, 0x%x" % (WS_XA + nxt*LAYER_STRIDE))
        L("s_lshl_b32 s35, s%d, 10\ns_and_b32 s36, s35, 1024" % sW)
    def issue(s, tags):
        L = s.L
        for t in sorted([t for t in tags if t not in s.done], key=lambda t: (8, 2) if t == "cs" else ((16*t[1]/7, 1) if t[0] == "g" else (4*t[1], 0))):
            s.done.append(t)
            if t == "cs":
                L("s_mov_b32 m0, %d\ns_lshl_b32 s34, s24, 10\ns_add_u32 s34, s34, 0x%x" % (L_CS, WS_CSQ))
                L("buffer_load_dwordx4 v1, %s, s34 offen lds" % WS); L.issue(t)
            elif t[0] == "g":
                L("s_add_u32 m0, s30, %d\ns_add_u32 s34, s29, %d" % (t[1]*16384, t[1]*16384))
                for j in range(4): L("buffer_load_dwordx4 v1, %s, s34 offen offset:%d lds" % (WS, j*1024)); L.issue(t)
            else:
                i = t[1]; sr = 35 if i < 4 else 36
                L("s_add_u32 m0, s%d, %d\ns_add_u32 s34, s31, s%d\ns_add_u32 s34, s34, %d" % (sr, L_HALO + i*4096, sr, i*4096))
                L("buffer_load_dwordx4 v1, %s, s34 offen %s lds" % (WS, s.o.get("ld", ""))); L.issue(t)
    def need(s, bi):
        cl = (BARS[bi+1] if bi + 1 < len(BARS) else 18) - 1
        return [("g", g) for g in range((7*(cl+1) + 15)//16)] + [("h", i) for i in range(cl//4 + 1)] + (["cs"] if BARS[bi] >= 9 else [])
    def main(s, first=None):
        L = s.L
        L("s_barrier")
        for bi in range(len(BARS)):
            s.issue(s.need(min(bi + (1 if bi == 0 else 2), len(BARS)-1)))
            if first and bi == s.o.get("p0st_at", 7): first()
            L("s_waitcnt vmcnt(%d)\ns_barrier" % L.vmn(*s.need(bi)))
        if first:
            L("s_mov_b32 s46, 0x%x\nv_mov_b32 v4, 0" % (WS_FLAG + F_P4*16*256))
            vpoll(L, "wo", WS, "s46", 4, 5, 18)
        L("s_barrier")
        if first:
            L("s_cmp_lg_u32 s%d, 0\ns_cbranch_scc1 L_p1_ns\ns_and_b32 s44, s2, 15" % sW)
            flag_addr(L, 44, F_P2, 44, back="prep"); ssignal(L, 44)
            L.lab("L_p1_ns")
def attn(C, o, diag=None):
    ld = o.get("ld", ""); stf = o.get("st", ""); bars = BARS
    ACC, HX, HY, BF, AW = 16, 80, 84, 88, 168
    MR = 240
    vW0, vW1, vH, vX0, vX1, vY0, vY1 = 1, 247, 248, 249, 250, 251, 252
    attn_coords(C, o)
    C("s_lshl_b32 s30, s23, 3\ns_lshl_b32 s31, s%d, 1\ns_add_u32 s31, s30, s31" % sW)
    C("s_mul_i32 s29, s31, 18432\ns_add_u32 s29, s29, s%d\ns_add_u32 s35, s29, 0x%x\ns_add_u32 s29, s29, 0x%x" % (sLB, WS_O, WS_XA))
    C("s_max_u32 s30, s30, 1\ns_sub_u32 s30, s30, 1\ns_lshl_b32 s30, s30, 10\ns_add_u32 s30, s30, s%d\ns_add_u32 s30, s30, 0x%x" % (sLB, WS_STA))
    C("s_lshl_b32 s32, s31, 10\ns_add_u32 s32, s32, s%d\ns_add_u32 s32, s32, 0x%x" % (sLB, WS_STA))
    C(vR(2)); C(vQ(3))
    C("s_add_u32 s33, s%d, 2\ns_add_u32 s34, s%d, 4\ns_cmp_ge_u32 s%d, 2\ns_cselect_b32 s33, 6, s33\ns_cselect_b32 s34, 6, s34" % (sW, sW, sW))
    C("s_lshl_b32 s36, s33, 10\ns_lshl_b32 s37, s34, 10")
    C("v_add_u32 v%d, 64512, v1\nv_add_u32 v%d, %d, v1" % (vW1, vH, L_HALO))
    C("v_add_u32 v%d, s36, v1\nv_add_u32 v%d, s36, v%d\nv_add_u32 v%d, s37, v1\nv_add_u32 v%d, s37, v%d" % (vX0, vX1, vW1, vY0, vY1, vW1))
    C("v_add_u32 v253, 18432, v1\nv_lshrrev_b32 v0, 1, v1")
    for i in range(5): C("s_add_u32 s%d, s29, %d" % (38+i, 4096*i))
    C("s_max_u32 s44, s23, 1\ns_sub_u32 s44, s44, 1")
    flag_addr(C, POL, F_P5, 23, back=1); flag_addr(C, POL2, F_P5, 44, back=1); flag_addr(C, 44, F_P1, 24, back="prep")
    def sig():
        C("s_atomic_add s46, s[%d:%d], 0\ns_cmp_eq_u32 s47, 0\ns_cbranch_scc1 L_ns_d1\ns_atomic_add s47, s[48:49], 0" % (SIG, SIG+1))
    edge(C, "d1", [POL, POL2, 44], o, diag, mid=lambda: C("s_barrier"), sig=sig)
    C("s_barrier")
    stamp(C, diag, "p1Y")
    def aload(c):
        return [("buffer_load_dwordx4 %s, v%d, %s, s%d offen offset:%d %s" % (vr(AW + (c % 9)*8 + 4*a), 253 if a else 1, WS, 38 + c//4, (c % 4)*1024, ld), ("a", c)) for a in range(2)]
    for s, t in aload(0): C(s); C.issue(t)
    for tl in range(3):
        for e in range(2): C("buffer_load_dwordx2 %s, v0, %s, s%d offen offset:%d %s" % (vr(4+4*tl+2*e, 2), WS, 32 if tl else 30, 1024*(tl//2) + 512*e, ld)); C.issue("st")
    for c in range(1, o.get("a_pre", 4)):
        for s, t in aload(c): C(s); C.issue(t)
    nxt_a = o.get("a_pre", 4)
    flag_addr(C, SIG, F_P1, 23)
    def reads(c):
        b = BF + (c % 2)*40; hi = c >= 9; off = (c - 9*hi)*7168
        r_ = ["ds_read_b128 %s, v%d offset:%d" % (vr(b+4*t), vW1 if hi else vW0, off + 1024*t) for t in range(7)]
        r_.append("ds_read_b128 %s, v%d offset:%d" % (vr(b+28), vH, c*1024))
        r_.append("ds_read_b128 %s, v%d offset:%d" % (vr(b+32), vX1 if hi else vX0, off))
        r_.append("ds_read_b128 %s, v%d offset:%d" % (vr(b+36), vY1 if hi else vY0, off))
        return r_
    C("s_barrier")
    stamp(C, diag, "p1B0")
    for s in reads(0): C(s)
    acc = lambda a, t: ACC + (a*8 + t)*4
    CSA, CSB, CSV, MV, RV = 168, 192, 216, 88, 100
    KOP, QOP, VOP, TQ, T = 128, 152, 192, 210, 224
    F = Filler()
    F.add(row_stats([4, 8, 12], [MR, MR+2, MR+4], None))
    F.add("v_lshlrev_b32 v9, 4, v3\nv_add_u32 v4, %d, v9\ns_lshl_b32 s36, s33, 6\nv_add_u32 v5, s36, v4" % L_CS)
    F.add("v_lshlrev_b32 v8, 2, v2\nv_add_u32 v6, %d, v8\ns_lshl_b32 s37, s34, 6\nv_add_u32 v7, s37, v6" % L_CS)
    F.add("s_mul_i32 s36, s%d, 3072\ns_add_u32 s36, s36, %d\nv_add_u32 v8, s36, v8\nv_add_u32 v9, s36, v9" % (sW, L_EX + 4096))
    pre = {9: ["ds_write2_b32 v8, v%d, v%d offset0:%d offset1:%d" % (MR+2*tl, MR+2*tl+1, 32*tl, 32*tl+16) for tl in range(3)]}
    qk = [2, 3, 6, None, 0, 1]
    for h in range(2):
        for i, t in enumerate(qk):
            pre.setdefault(10 + 3*h + i//2, []).append("ds_read_b128 %s, v%d offset:%d" % (vr((CSB if h else CSA) + 4*i), 5 if t is None else 4, h*512 + (t or 0)*64))
    pre[16] = ["ds_read2st64_b32 %s, v%d offset0:0 offset1:2" % (vr(CSV + 2*i, 2), [10, 11, 12, 7][i]) for i in range(4)]
    F.add("v_add_u32 v10, 256, v6\nv_add_u32 v11, 320, v6\nv_add_u32 v12, 384, v6")
    F2 = Filler()
    for i in range(24): F2.add("v_add_f32 v%d, v%d, v%d" % (CSA+i, CSA+i, CSB+i))
    for i in range(4): F2.add("v_add_f32 v%d, v%d, v%d" % (CSV+i, CSV+2*i, CSV+2*i+1))
    for c in range(18):
        b = BF + (c % 2)*40; x = lambda a: AW + (c % 9)*8 + 4*a
        z = 'z' if c == 0 else None
        mm = []
        for t in range(4):
            for a in range(2): mm.append(mfma(acc(a, t), b+4*t, x(a), z))
        for t in range(2):
            for a in range(2): mm.append(mfma(acc(a, 5+t), x(a), b+16+4*t, z))
        for a in range(2): mm.append(mfma(acc(a, 4), b+24, x(a), z))
        for a in range(2): mm.append(mfma(acc(a, 7), x(a), b+24, z))
        mm.append(mfma(HX, b+32, b+28, z)); mm.append(mfma(HY, b+28, b+36, z))
        n = C.vmn(("a", c)) if c != 1 else C.vmn(("a", c), "st")
        ex = [(-1, "s_waitcnt vmcnt(%d) lgkmcnt(6)" % n)]
        if c + 1 in bars: ex.append((-1, "s_barrier"))
        for s in pre.get(c, []): ex.append((0, s))
        if c == 17:
            rd = ["ds_read_b128 %s, v9 offset:%d" % (vr(d + 4*tl), 128*tl + off) for tl in (2, 0, 1) for d, off in ((MV, 0), (RV, 64))]
            for i, s in enumerate(rd): ex.append((i, s))
            ex.append((7, "s_waitcnt lgkmcnt(6)"))
        else:
            for i, s in enumerate(reads(c+1)): ex.append((i, s))
            ex.append((7, "s_waitcnt lgkmcnt(8)"))
        pos = 10
        while nxt_a < 18 and nxt_a - 9 < c and pos < 17:
            for s, t in aload(nxt_a): ex.append((pos, s)); C.issue(t); pos += 2
            nxt_a += 1
        if 1 <= c <= 8: ex += F.take([8, 9, 10, 11, 12, 13, 14, 15, 16, 17])
        if c == 16: ex += F2.take([10, 10, 11, 11, 12, 12, 13, 13, 14, 14, 15, 15, 16, 16, 17, 17])
        if c == 17: ex += F2.take([6, 6, 7, 8, 8, 9, 9, 10, 10, 11, 11, 12, 12])
        for s in interleave(mm, ex): C(s)
    assert not F.q and not F2.q and nxt_a == 18
    stamp(C, diag, "p1gemm")
    C("v_and_b32 v4, 1, v2\nv_lshl_add_u32 v5, v3, 2, v4\nv_add_u32 v6, 2, v5")
    C("v_cmp_eq_u32 s[40:41], 1, v4\nv_cmp_le_u32 s[42:43], v5, v2\nv_cmp_le_u32 s[44:45], v6, v2\nv_cmp_eq_u32 s[46:47], 0, v3")
    C("v_mov_b32 v4, 0xffff\nv_mov_b32 v5, 0xffff0000\nv_cndmask_b32 v4, v4, v5, s[40:41]")
    C("v_cndmask_b32 v12, v4, 0, s[42:43]\nv_cndmask_b32 v13, v4, 0, s[44:45]\nv_cndmask_b32 v14, 0, v4, s[42:43]\nv_cndmask_b32 v15, 0, v4, s[44:45]")
    C("s_cmp_eq_u32 s31, 0\ns_cselect_b64 s[48:49], s[42:43], -1\ns_cselect_b64 s[38:39], s[44:45], -1")
    C("v_lshrrev_b32 v8, 1, v1\ns_mul_i32 s36, s%d, 3072\ns_add_u32 s36, s36, %d\nv_add_u32 v9, s36, v8" % (sW, L_EX))
    C("s_lshl_b32 s37, s%d, 9\ns_add_u32 s37, s37, %d\nv_add_u32 v10, s37, v8" % (sW, L_EX))
    C("s_waitcnt lgkmcnt(0)")
    def conv(items):
        for a_, kd, ci, tl, d in items:
            for p in range(2):
                if kd == 'q': C("v_pk_fma_f32 %s, %s, %s, %s op_sel_hi:[0,1,1] neg_lo:[1,0,0] neg_hi:[1,0,0]" % (vr(a_+2*p, 2), vr(MR+2*tl, 2), vr(CSA+4*ci+2*p, 2), vr(a_+2*p, 2)))
                else: C("v_pk_fma_f32 %s, %s, %s, %s op_sel:[0,%d,0] op_sel_hi:[1,%d,1] neg_lo:[1,0,0] neg_hi:[1,0,0]" % (vr(a_+2*p, 2), vr(MV+4*tl+2*p, 2), vr(CSV+(ci & 2), 2), vr(a_+2*p, 2), ci & 1, ci & 1))
        for a_, kd, ci, tl, d in items:
            for p in range(2):
                if kd == 'q': C("v_pk_mul_f32 %s, %s, %s op_sel:[0,1] op_sel_hi:[1,1]" % (vr(a_+2*p, 2), vr(a_+2*p, 2), vr(MR+2*tl, 2)))
                else: C("v_pk_mul_f32 %s, %s, %s" % (vr(a_+2*p, 2), vr(a_+2*p, 2), vr(RV+4*tl+2*p, 2)))
        for a_, kd, ci, tl, d in items:
            for p in range(2): C("v_cvt_pk_bf16_f32 v%d, v%d, v%d" % (d+p, a_+2*p, a_+2*p+1))
    kop = lambda tl, h: KOP + (tl*2 + h)*4
    def kv_items(a):
        tl = a + 1
        return [(acc(a, 2), 'q', 0, tl, kop(tl, 0)), (acc(a, 3), 'q', 1, tl, kop(tl, 1)), (acc(a, 4), 'q', 2, tl, TQ + 2*tl),
                (acc(a, 5), 'v', 0, tl, VOP + 2*tl), (acc(a, 6), 'v', 1, tl, VOP + 6 + 2*tl), (acc(a, 7), 'v', 2, tl, VOP + 12 + 2*tl)]
    it = kv_items(1)
    conv(it + [(HX, 'q', 3, 0, T), (HY, 'v', 3, 0, T+2)])
    C("s_cmp_eq_u32 s%d, 3\ns_cbranch_scc1 L_a_nw" % sW)
    for i, x_ in enumerate(it): C("ds_write_b64 v9, %s offset:%d" % (vr(x_[4], 2), 3072 + 512*i))
    C("ds_write_b64 v10, %s\nds_write_b64 v10, %s offset:1536" % (vr(T, 2), vr(T+2, 2)))
    C.lab("L_a_nw")
    conv(kv_items(0))
    C("s_waitcnt lgkmcnt(0)\ns_barrier")
    stamp(C, diag, "p1E")
    for i, d in enumerate([kop(0, 0), kop(0, 1), TQ, VOP, VOP+6, VOP+12]): C("ds_read_b64 %s, v9 offset:%d" % (vr(d, 2), 512*i))
    qop = lambda a, h: QOP + (a*2 + h)*4
    conv([(acc(a, h), 'q', 4+h, a+1, qop(a, h)) for a in range(2) for h in range(2)])
    for a in range(2):
        for h in range(2): C("v_cndmask_b32 v%d, 0, v%d, s[46:47]\nv_mov_b32 v%d, 0" % (qop(a, h)+2, TQ+2*(a+1)+h, qop(a, h)+3))
    for tl in range(3):
        for h in range(2): C("v_mov_b32 v%d, 0" % (kop(tl, h)+3))
    C("s_waitcnt lgkmcnt(0)")
    for tl in (1, 2, 0):
        for h in range(2): C("v_permlane16_swap_b32 v%d, v%d" % (TQ+2*tl+h, kop(tl, h)+2))
    for tl in (1, 2, 0):
        for h in range(2): C("v_cndmask_b32 v%d, 0, v%d, s[46:47]" % (kop(tl, h)+2, kop(tl, h)+2))
    C("s_nop 1")
    cmb = [(1, 0), (1, 1), (0, 0), (0, 1)]
    S = lambda i, cur: ACC + (i*2 + cur)*4
    for i, (a, h) in enumerate(cmb):
        C(mfma(S(i, 1), kop(a+1, h), qop(a, h), 'z')); C(mfma(S(i, 0), kop(a, h), qop(a, h), 'z'))
    C("s_lshl_b32 s36, s24, 10\nv_add_u32 v4, s36, v1\nv_add_u32 v5, 18432, v4")
    C("s_lshl_b32 s36, s24, 7\ns_add_u32 s36, s36, 16384")
    C("v_cmp_eq_u32 vcc, 2, v3\nv_lshl_add_u32 v6, v2, 3, s36\nv_bfrev_b32 v7, 1\nv_cndmask_b32 v6, v7, v6, vcc\nv_add_u32 v7, 18432, v6")
    C("v_mov_b32 v8, 0x%x\ns_mov_b32 s33, 0x%x" % (f2u(-1e30), f2u(18**-0.5 * 1.4426950408889634)))
    VAL, MX, TT, P = 48, 56, 60, 64
    for i in range(4):
        for jj in range(2):
            C("v_cndmask_b32 v%d, v%d, v%d, s[40:41]" % (S(i, 1)+2*jj, S(i, 1)+2*jj, S(i, 1)+2*jj+1))
            C("v_cndmask_b32 v%d, v%d, v%d, s[40:41]" % (S(i, 0)+2*jj, S(i, 0)+2*jj, S(i, 0)+2*jj+1))
            C("v_cndmask_b32 v%d, v%d, v%d, s[%d:%d]" % (VAL+2*i+jj, S(i, 0)+2*jj, S(i, 1)+2*jj, 42+2*jj, 43+2*jj))
            if cmb[i][0] == 0: C("v_cndmask_b32 v%d, v8, v%d, s[%d:%d]" % (VAL+2*i+jj, VAL+2*i+jj, (48, 38)[jj], (49, 39)[jj]))
        C("v_max_f32 v%d, v%d, v%d" % (MX+i, VAL+2*i, VAL+2*i+1))
    xsum_q_multi(C, [MX+i for i in range(4)], [TT+i for i in range(4)], "v_max_f32")
    for i in range(4): C("v_mul_f32 v%d, s33, v%d" % (MX+i, MX+i))
    for i in range(4):
        for jj in range(2): C("v_fma_f32 v%d, v%d, s33, -v%d" % (VAL+2*i+jj, VAL+2*i+jj, MX+i))
    for i in range(8): C("v_exp_f32 v%d, v%d" % (VAL+i, VAL+i))
    for i in range(4): C("v_add_f32 v%d, v%d, v%d" % (MX+i, VAL+2*i, VAL+2*i+1))
    xsum_q_multi(C, [MX+i for i in range(4)], [TT+i for i in range(4)])
    for i in range(4): C("v_rcp_f32 v%d, v%d" % (MX+i, MX+i))
    for i in range(4):
        for jj in range(2): C("v_mul_f32 v%d, v%d, v%d" % (VAL+2*i+jj, VAL+2*i+jj, MX+i))
    for i in range(8): C("v_cvt_pk_bf16_f32 v%d, v%d, v%d" % (VAL+i, VAL+i, VAL+i))
    for i in range(4):
        for e in range(4): C("v_and_b32 v%d, v%d, v%d" % (P+4*i+e, VAL+2*i+(e & 1), 12+e))
    C("s_nop 1")
    for i, (a, h) in enumerate(cmb):
        C(mfma(S(i, 0), VOP + 6*h + 2*a, P+4*i, 'z')); C(mfma(S(i, 1), VOP + 12 + 2*a, P+4*i, 'z'))
    C("s_nop 3")
    for ii, a in enumerate((1, 0)):
        d = T + 8*ii; i0 = 2*ii
        if ii: C("s_nop 0")
        C("v_cvt_pk_bf16_f32 v%d, v%d, v%d\nv_cvt_pk_bf16_f32 v%d, v%d, v%d" % (d, S(i0, 0), S(i0, 0)+1, d+1, S(i0, 0)+2, S(i0, 0)+3))
        C("v_cvt_pk_bf16_f32 v%d, v%d, v%d" % (d+4, S(i0, 1), S(i0, 1)+1))
        C("v_cvt_pk_bf16_f32 v%d, v%d, v%d\nv_cvt_pk_bf16_f32 v%d, v%d, v%d" % (d+2, S(i0+1, 0), S(i0+1, 0)+1, d+3, S(i0+1, 0)+2, S(i0+1, 0)+3))
        C("v_cvt_pk_bf16_f32 v%d, v%d, v%d" % (d+5, S(i0+1, 1)+2, S(i0+1, 1)+3))
        C("buffer_store_dwordx4 %s, v%d, %s, s35 offen %s" % (vr(d), 4+a, WS, stf))
        C("buffer_store_dwordx2 %s, v%d, %s, s35 offen %s" % (vr(d+4, 2), 6+a, WS, stf))
    stamp(C, diag, "p1end")
```

```python
from ph_sync import *
from ph_attn import row_stats
import math
L_CS3, L_SC3 = 159744, TOP
def gmlp_coords(k, o):
    k("s_and_b32 s25, s2, 7\ns_lshr_b32 s26, s2, 3")
    a, b = (23, 24) if o.get("gmap", 0) == 0 else (24, 23)
    k("s_and_b32 s%d, s25, 1\ns_lshl_b32 s%d, s%d, 3\ns_and_b32 s27, s26, 7\ns_add_u32 s%d, s%d, s27" % (a, a, a, a, a))
    k("s_lshr_b32 s%d, s25, 1\ns_lshl_b32 s%d, s%d, 2\ns_lshr_b32 s27, s26, 3\ns_add_u32 s%d, s%d, s27" % (b, b, b, b, b))
    k("s_add_u32 s28, s23, s24\ns_and_b32 s28, s28, 3")
class P3L:
    def __init__(s, L, o): s.L = L; s.o = o
    def col(s, sg, sn, base, add, fl):
        L = s.L; sl = sg % 4
        L("s_mul_i32 s50, s%d, 18432\ns_add_u32 s50, s50, s%d" % (sn, base))
        if add: L("s_add_u32 s50, s50, %d" % add)
        if sg % 2 == 1:
            L("s_cmp_ge_u32 s%d, 2\ns_cselect_b32 s52, s50, s53\ns_add_u32 m0, s31, %d\ns_add_u32 s52, s52, s49" % (sW, (sl-1)*SLOT))
            L("buffer_load_dwordx4 v1, %s, s52 offen %s lds" % (WS, fl)); L.issue(("f", sg))
        L("s_add_u32 m0, s30, %d\ns_mov_b32 s53, s50" % (sl*SLOT))
        for j in range(4): L("buffer_load_dwordx4 v1, %s, s50 offen offset:%d %s lds" % (WS, 1024*j, fl)); L.issue(("c", sg))
    def col3(s, sg):
        s.L("\n".join(hoist_sel(s.L, 48, sg % 9, 9, 28, s.o.get("hoist3", 1)))); s.col(sg, 48, 34, (sg // 9)*9*18432, "")
    def row3(s, sg):
        L = s.L
        L("\n".join(hoist_sel(L, 48, sg % 9, 9, 28, s.o.get("hoist3", 1))))
        L("s_lshl_b32 s51, s48, 11\ns_add_u32 m0, s30, %d\ns_add_u32 s51, s51, s35" % (ROWH + (sg % 4)*SLOT))
        for j in range(4): L("buffer_load_dwordx4 v%d, %s, s51 offen offset:%d %s lds" % (1 + j//2, WS, 1024*j, s.o.get("ld", ""))); L.issue(("r", sg))
    def col4(s, sg): s.col(sg, 44 + (sg - 18) % 4, 36, 0, s.o.get("ld", ""))
    def row4(s, sg):
        L = s.L
        L("s_add_u32 m0, s30, %d\ns_lshl_b32 s51, s%d, 7" % (ROWH + (sg % 4)*SLOT, 44 + (sg - 18) % 4))
        for j in range(4): L("buffer_load_dwordx4 v%d, %s, s51 offen offset:%d %s lds" % (8+j, WSP, 1024*j, s.o.get("ldsp", ""))); L.issue(("r", sg))
    def adv4(s, sg):
        sn = 44 + (sg - 18) % 4
        s.L("s_add_u32 s%d, s%d, 4\ns_and_b32 s%d, s%d, 31" % (sn, sn, sn, sn))
    def pre(s):
        L = s.L; o = s.o
        gmlp_coords(L, o)
        L("s_lshl_b32 s30, s%d, 12" % sW)
        L("s_lshr_b32 s33, s%d, 1\ns_mul_i32 s31, s33, %d\ns_and_b32 s33, s%d, 1\ns_lshl_b32 s33, s33, 10\ns_add_u32 s33, s33, 16384\ns_add_u32 s31, s31, s33\ns_sub_u32 s49, s33, s30" % (sW, SLOT, sW))
        L("s_mul_i32 s34, s24, %d\ns_add_u32 s34, s34, s30\ns_add_u32 s34, s34, 0x%x" % (18*18432, WS_WI))
        L("s_lshl_b32 s35, s23, 3\ns_lshl_b32 s33, s%d, 1\ns_add_u32 s35, s35, s33\ns_mul_i32 s35, s35, 18432\ns_add_u32 s35, s35, s%d\ns_add_u32 s35, s35, 0x%x" % (sW, sLB, WS_XB))
        L("s_mul_i32 s36, s24, %d\ns_add_u32 s36, s36, s30\ns_add_u32 s36, s36, s%d\ns_add_u32 s36, s36, 0x%x" % (64*9216, sLB, WS_Z2))
        L("v_add_u32 v2, %d, v1" % (18432 - 2048))
        L("s_lshl_b32 s33, s23, 7\ns_lshl_b32 s37, s%d, 5\ns_add_u32 s33, s33, s37" % sW)
        L("v_lshrrev_b32 v8, 7, v1\nv_add_u32 v8, s33, v8\nv_lshlrev_b32 v8, 12, v8")
        L("v_lshrrev_b32 v9, 8, v1\nv_bfe_u32 v10, v1, 4, 3\nv_xor_b32 v9, v9, v10\nv_lshl_add_u32 v8, v9, 4, v8")
        L("v_xor_b32 v9, 64, v8\nv_add_u32 v9, %d, v9" % (8*4096 - 1024))
        L("v_add_u32 v10, %d, v8\nv_add_u32 v11, %d, v9" % (16*4096 - 2048, 16*4096 - 2048))
        for m in range(4): L("s_cmp_eq_u32 s28, %d\ns_cselect_b32 s%d, %d, %d" % (m, 44+m, m + 4*o.get("hoist4", 1), m))
        L("s_lshl_b32 s33, s%d, 4\ns_add_u32 s33, s33, s24" % sW)
        flag_addr(L, 54, F_Z2, 33)
        L("s_mov_b32 s33, 0x%x\nv_and_b32 v4, 0xf0, v1\nv_lshlrev_b32 v4, 4, v4" % (WS_FLAG + F_P2*16*256))
        vpoll(L, "wr", WS, "s33", 4, 5, 16)
        for sg in range(4): s.col3(sg)
        L("s_min_u32 s33, s%d, 2\ns_lshl_b32 s33, s33, 10\ns_add_u32 m0, s33, %d\ns_lshl_b32 s51, s24, 12\ns_add_u32 s51, s51, s33\ns_add_u32 s51, s51, 0x%x" % (sW, L_CS3, WS_CSI))
        L("buffer_load_dwordx4 v1, %s, s51 offen lds" % WS); L.issue("cs")
    def main(s, diag, p5):
        L = s.L; o = s.o
        nd = lambda m: [("c", m), ("r", m), ("f", m | 1)]
        stamp(L, diag, "Lp3pre")
        L("s_barrier\ns_barrier")
        s.row3(0); s.row3(1)
        L("s_waitcnt vmcnt(%d)\ns_barrier" % L.vmn(*nd(0)))
        s.row3(2); s.row3(3)
        for m in range(1, 18):
            L("s_waitcnt vmcnt(%d)\ns_barrier" % L.vmn(*nd(m)))
            if m + 3 < 18: s.col3(m+3); s.row3(m+3)
            else: s.row4(m+3)
            if m == 9 and o.get("warm_sp", 1):
                L("s_cmp_lg_u32 s%d, 0\ns_cbranch_scc1 L_g_nw\ns_lshl_b32 s33, s2, 15\ns_lshl_b32 s37, s%d, 13\ns_add_u32 s33, s33, s37\ns_add_u32 s37, s33, 4096" % (sLAY, sW))
                for j in range(8): L("buffer_load_dwordx4 %s, v1, %s, s%d offen offset:%d" % (vr(16+4*j), WSP, (33, 37)[j//4], (j % 4)*1024))
                L.lab("L_g_nw")
        L("s_barrier")
        ssignal(L, 54)
        s.row4(21)
        p5.setup()
        spoll(L, "z2", [54], sleep=o.get("sleep", 2))
        stamp(L, diag, "Lz2ok")
        s.col4(18); s.col4(19)
        L("s_waitcnt vmcnt(%d)\ns_barrier" % L.vmn(*nd(18)))
        s.col4(20); s.col4(21)
        for sg in range(18, 22): s.adv4(sg)
        for m in range(19, 23):
            L("s_waitcnt vmcnt(%d)\ns_barrier" % L.vmn(*nd(m)))
            s.col4(m+3); s.row4(m+3); s.adv4(m+3)
        L("s_mov_b32 s41, 6")
        L.lab("L_g_ll")
        for m in range(23, 27):
            n = L.vmn(*nd(m)); assert n == (16 if m % 2 == 0 else 17)
            L("s_waitcnt vmcnt(%d)\ns_barrier" % n)
            s.col4(m+3); s.row4(m+3); s.adv4(m+3)
        L("s_sub_u32 s41, s41, 1\ns_cmp_lg_u32 s41, 0\ns_cbranch_scc1 L_g_ll")
        L.nbar += 20
        for m in range(27, 30):
            L("s_waitcnt vmcnt(%d)\ns_barrier" % L.vmn(*nd(m)))
            if m - 27 < o.get("p5early", 3): p5.batch(m - 27)
def gmlp(C, o, diag=None):
    ld = o.get("ld", ""); stf = o.get("st", "")
    A2, A1, FR, MR = 16, 88, 160, 248
    vZ1, vR0, vR1 = 2, 3, 0
    gmlp_coords(C, o)
    C("s_lshl_b32 s30, s%d, 12\ns_lshl_b32 s31, s23, 3\ns_lshl_b32 s33, s%d, 1\ns_add_u32 s31, s31, s33" % (sW, sW))
    C("s_lshl_b32 s32, s31, 10\ns_add_u32 s32, s32, s%d\ns_add_u32 s32, s32, 0x%x" % (sLB, WS_STB))
    C("v_add_u32 v%d, %d, v1\ns_add_u32 s33, s30, %d\nv_add_u32 v%d, s33, v1\nv_add_u32 v%d, s33, v%d" % (vZ1, 2*SLOT, ROWH, vR0, vR1, vZ1))
    C("s_lshr_b32 s34, s31, 1")
    C("s_lshl_b32 s35, s34, 12\ns_add_u32 s35, s35, s%d\ns_add_u32 s35, s35, 0x%x" % (sLB, WS_ZS))
    C("s_lshl_b32 s36, s24, 8\ns_add_u32 s36, s36, s35")
    C("s_lshl_b32 s38, s24, 6\ns_add_u32 s38, s38, s34\ns_mul_i32 s38, s38, 9216\ns_add_u32 s38, s38, s%d\ns_add_u32 s38, s38, 0x%x" % (sLB, WS_Z2))
    C("s_add_u32 s39, s38, 4096\ns_add_u32 s46, s38, 8192")
    c0 = -2*math.sqrt(2/math.pi)*math.log2(math.e)
    C("s_mov_b32 s40, 0x%x\ns_mov_b32 s42, 0x%x\ns_mov_b32 s44, 0x%x\ns_mov_b32 s45, 0x%x" % (f2u(c0), f2u(0.044715), f2u(1/2304), f2u(1e-5)))
    C("v_lshrrev_b32 v4, 1, v1")
    flag_addr(C, POL, F_P2, 23)
    edge(C, "d3", [POL], o, diag)
    C("s_barrier")
    stamp(C, diag, "p3Y")
    for i in range(4): C("buffer_load_dwordx2 %s, v4, %s, s32 offen offset:%d %s" % (vr(8+2*i, 2), WS, 512*i, ld))
    flag_addr(C, SIG, F_P4, 23)
    def reads(sg, kk):
        sl = sg % 4; b = FR + kk*44; r_ = []
        for tt in range(2):
            if sg < 18: r_.append("ds_read_b128 %s, v%d offset:%d" % (vr(b+4*tt), vR0 if sl < 2 else vR1, (sl % 2)*SLOT + (2*tt + kk)*1024))
            else: r_.append("ds_read_b128 %s, v%d offset:%d" % (vr(b+4*tt), 3 + kk + (sl & 2), (sl % 2)*SLOT + tt*2048))
        for ft in range(9):
            r_.append("ds_read_b128 %s, v%d offset:%d" % (vr(b+8+4*ft), 1 if sl < 2 else vZ1, (sl % 2)*SLOT + (kk*9+ft)*1024))
        return r_
    def mfmas(sg, kk):
        b = FR + kk*44; r_ = []
        z = 'z' if (sg in (0, 9) and kk == 0) else None
        for ft in range(9):
            for tt in range(2):
                i = (ft*2+tt)*4
                if sg < 9: r_.append(mfma(A2+i, b+4*tt, b+8+4*ft, z))
                elif sg < 18: r_.append(mfma(A1+i, b+8+4*ft, b+4*tt, z))
                else: r_.append(mfma(A2+i, b+8+4*ft, b+4*tt))
        return r_
    def stage(sg, nxt=True, x0=(), x1=(), p0=(), p1=()):
        ex = [(-1, "s_waitcnt lgkmcnt(5)")] + [(0, s) for s in p0]
        for i, r_ in enumerate(reads(sg, 1)): ex.append((i, r_))
        ex.append((7, "s_waitcnt lgkmcnt(8)"))
        for s in interleave(mfmas(sg, 0), ex + list(x0)): C(s)
        ex = [(-1, "s_waitcnt lgkmcnt(0)")]
        if nxt:
            ex.append((-1, "s_barrier"))
            ex += [(0, s) for s in p1]
            for i, r_ in enumerate(reads(sg+1, 0)): ex.append((i, r_))
        else: ex += [(i, s) for i, s in enumerate(p1)]
        for s in interleave(mfmas(sg, 1), ex + list(x1)): C(s)
        stamp(C, diag, "s%d" % sg)
    LITE = [9, 10, 11, 12, 13, 14, 15, 16, 17, 17]
    DENSE = [1, 2, 3, 4, 5, 6, 8, 9, 10, 11, 11, 12, 12, 13, 13, 14, 14, 15, 15, 16, 16, 17]
    C("s_barrier")
    stamp(C, diag, "p3B0")
    for s in reads(0, 0): C(s)
    M8, R8, C0, C1, SD, CS, SS = A1, A1+8, A1+16, A1+24, A1+32, A1+40, FR+44
    TP = FR + 60
    F = Filler()
    F.add([vQ(5), vR(6), "v_lshlrev_b32 v7, 2, v6", "s_lshl_b32 s33, s%d, 8" % sW, "s_add_u32 s33, s33, %d" % L_SC3, "v_add_u32 v4, s33, v7",
           "v_lshl_add_u32 v252, v5, 4, s33", "v_add_u32 v7, %d, v7" % L_CS3, "v_add_u32 v253, 1152, v7", "s_waitcnt vmcnt(0)"])
    F.add(row_stats([8, 12], [MR, MR+2], None))
    G = Filler()
    for i in range(8): G.add("v_rcp_f32 v%d, v%d\nv_mul_f32 v%d, s40, v%d\nv_mul_f32 v%d, v%d, v%d" % (SD+i, R8+i, C0+i, R8+i, C1+i, R8+i, R8+i))
    for i in range(8): G.add("v_mul_f32 v%d, s42, v%d" % (C1+i, C1+i))
    for i in range(8): G.add("v_mul_f32 v%d, v%d, v%d" % (C1+i, C1+i, C0+i))
    for i in range(9): G.add("v_add_f32 v%d, v%d, v%d" % (CS+i, CS+i, CS+10+i))
    G.add("v_lshrrev_b32 v8, 2, v6\nv_lshlrev_b32 v8, 4, v8\nv_lshl_add_u32 v8, v5, 6, v8\nv_and_b32 v9, 3, v6\nv_cmp_eq_u32 vcc, 0, v9\nv_bfrev_b32 v10, 1")
    G.add("v_lshl_add_u32 v255, v9, 8, v8\nv_cndmask_b32 v8, v10, v8, vcc")
    csr = ["ds_read2_b32 %s, v%d offset0:%d offset1:%d" % (vr(CS+10*h+2*i, 2), (7, 253)[h], 32*i, 32*i+16) for h in range(2) for i in range(5)]
    for sg in range(9):
        x0 = x1 = p0 = p1 = ()
        if sg == 0: x1 = F.take(LITE)
        elif sg <= 3: x0 = F.take(LITE); x1 = F.take(LITE); p0 = csr[4*sg-4:4*sg-2]; p1 = csr[4*sg-2:4*sg]
        if sg == 4:
            p0 = ["ds_write2_b32 v4, v%d, v%d offset0:%d offset1:%d" % (MR+2*a, MR+2*a+1, 16*a, 32+16*a) for a in range(2)]
            p1 = ["ds_read_b128 %s, v252 offset:%d" % (vr(M8+4*i), 64*i) for i in range(4)]
        if sg >= 5: x0 = G.take(LITE); x1 = G.take(LITE)
        stage(sg, x0=x0, x1=x1, p0=p0, p1=p1)
    assert not F.q and not G.q
    stamp(C, diag, "pass1")
    p2 = lambda a: vr(a, 2)
    for ft in range(9):
        x = [A2 + ft*8 + 2*i for i in range(4)]; t = [TP + (ft % 2)*8 + 2*i for i in range(4)]
        for i in range(4): C("v_pk_fma_f32 %s, %s, %s, %s op_sel:[0,%d,0] op_sel_hi:[1,%d,1] neg_lo:[1,0,0] neg_hi:[1,0,0]" % (p2(x[i]), p2(M8+2*i), p2(CS+(ft & ~1)), p2(x[i]), ft & 1, ft & 1))
        for i in range(4): C("v_pk_mul_f32 %s, %s, %s" % (p2(t[i]), p2(x[i]), p2(x[i])))
        for i in range(4): C("v_pk_fma_f32 %s, %s, %s, %s" % (p2(t[i]), p2(t[i]), p2(C1+2*i), p2(C0+2*i)))
        for i in range(4): C("v_pk_mul_f32 %s, %s, %s" % (p2(t[i]), p2(t[i]), p2(x[i])))
        for i in range(8): C("v_exp_f32 v%d, v%d" % (t[0]+i, t[0]+i))
        for i in range(4): C("v_pk_fma_f32 %s, %s, %s, %s" % (p2(t[i]), p2(t[i]), p2(SD+2*i), p2(SD+2*i)))
        for i in range(8): C("v_rcp_f32 v%d, v%d" % (t[0]+i, t[0]+i))
        for i in range(4): C("v_pk_mul_f32 %s, %s, %s" % (p2(x[i]), p2(x[i]), p2(t[i])))
        for i in range(4):
            if ft == 0: C("v_pk_mul_f32 %s, %s, %s" % (p2(SS+4*i+2), p2(x[i]), p2(x[i])))
            else:
                C("v_pk_add_f32 %s, %s, %s" % (p2(SS+4*i), p2(SS+4*i) if ft > 1 else p2(A2+2*i), p2(x[i])))
                C("v_pk_fma_f32 %s, %s, %s, %s" % (p2(SS+4*i+2), p2(x[i]), p2(x[i]), p2(SS+4*i+2)))
    dpp = lambda d, s, ctl, bm: "v_add_f32_dpp v%d, v%d, v%d %s row_mask:0xf bank_mask:0x%x" % (d, s, s, ctl, bm)
    for i in range(8): C(dpp(SS+i, SS+i, "row_mirror", 0x3))
    for i in range(8): C(dpp(SS+i, SS+8+i, "row_mirror", 0xc))
    for i in range(4): C(dpp(SS+i, SS+i, "row_half_mirror", 0x5))
    for i in range(4): C(dpp(SS+i, SS+4+i, "row_half_mirror", 0xa))
    for i in range(4): C(dpp(SS+i, SS+i, "quad_perm:[1,0,3,2]", 0xf))
    for i in range(4): C(dpp((12, 14, 13, 15)[i], SS+i, "quad_perm:[2,3,0,1]", 0xf))
    C("buffer_store_dwordx4 v[12:15], v8, %s, s36 offen sc1" % WS)
    stamp(C, diag, "z2gelu")
    Q = [4, 8, 12, 252]
    slow = Stream()
    slow.lab("L_g_slow")
    slow("s_mov_b32 s60, %d" % SPIN)
    slow.lab("L_g_sl")
    slow("s_sleep 2\nv_lshrrev_b32 v4, 8, v1\nv_bfe_u32 v5, v1, 6, 2\nv_bfe_u32 v6, v1, 4, 2\nv_lshlrev_b32 v255, 6, v4\nv_lshl_add_u32 v255, v5, 4, v255\nv_lshl_add_u32 v255, v6, 8, v255")
    recl = ["buffer_load_dwordx4 %s, v255, %s, s35 offen offset:%d sc1" % (vr(Q[i]), WS, 1024*i) for i in range(4)]
    chk = ["s_waitcnt vmcnt(0)", "v_or3_b32 v%d, v5, v7, v9" % (MR+1), "v_or3_b32 v%d, v11, v13, v15" % (MR+3), "v_or3_b32 v%d, v253, v255, v%d" % (MR+1, MR+1),
           "v_or_b32 v%d, v%d, v%d" % (MR+1, MR+1, MR+3), "v_cmp_gt_i32 vcc, 0, v%d" % (MR+1)]
    H = Filler()
    H.add(chk); H.add("s_nop 0\ns_cbranch_vccnz L_g_slow\nL_g_back:")
    for s in recl + chk: slow(s)
    slow("s_sub_u32 s60, s60, 1\ns_cbranch_scc1 L_g_back\ns_cbranch_vccnz L_g_sl\ns_branch L_g_back")
    C.tail = getattr(C, "tail", []) + slow.L
    for i in range(4): H.add("v_add_f32 v%d, v%d, v%d\nv_add_f32 v%d, v%d, v%d" % (4+i, 4+i, 8+i, 252+i, 252+i, 12+i))
    for i in range(4): H.add("v_add_f32 v%d, v%d, v%d" % (252+i, 252+i, 4+i))
    for ctl in ("quad_perm:[1,0,3,2]", "quad_perm:[2,3,0,1]"):
        for i in range(4): H.add(dpp(252+i, 252+i, ctl, 0xf))
    for i in range(4): H.add("v_mul_f32 v%d, s44, v%d" % (252+i, 252+i))
    H.add("v_fma_f32 v253, -v252, v252, v253\nv_fma_f32 v255, -v254, v254, v255\nv_max_f32 v253, 0, v253\nv_max_f32 v255, 0, v255")
    H.add("v_add_f32 v253, s45, v253\nv_add_f32 v255, s45, v255\nv_rsq_f32 v253, v253\nv_rsq_f32 v255, v255\ns_nop 0")
    H.add("v_mul_f32 v252, v252, v253\nv_mul_f32 v254, v254, v255\ns_nop 0")
    for kq in range(4):
        for i in (1, 3, 0, 2): H.add("v_mov_b32_dpp v%d, v%d row_newbcast:%d row_mask:0xf bank_mask:0xf" % (Q[kq]+i, 252+i, 4*kq))
    def swp(ft, w):
        for i in range(2): H.add("v_permlane%s_swap_b32 v%d, v%d" % (w, A2+ft*8+i, A2+ft*8+2+i))
    def zst(ft): H.add("buffer_store_dwordx4 %s, v1, %s, s%d offen offset:%d sc1" % (vr(A2+ft*8), WS, (38, 39, 46)[ft//4], (ft % 4)*1024))
    for ft in range(9):
        x = A2 + ft*8
        for i in range(8): H.add("v_fma_f32 v%d, v%d, v%d, -v%d" % (x+i, x+i, Q[i//2]+2*(i % 2)+1, Q[i//2]+2*(i % 2)))
        if ft: swp(ft-1, "32")
        for i in range(4): H.add("v_cvt_pk_bf16_f32 v%d, v%d, v%d" % (x+i, x+2*i, x+2*i+1))
        if ft: swp(ft-1, "16"); zst(ft-1)
    H.add("s_nop 1"); swp(8, "32"); H.add("s_nop 1"); swp(8, "16"); zst(8)
    h_ld, h_go = o.get("zs_ld", 5), o.get("zs_go", 8)
    CS1 = FR + 8
    for sg in range(9, 18):
        x = [[], []]; p1 = ()
        for kk in range(2):
            ks = 2*(sg-9) + kk
            if ks == h_ld: x[kk] += [(11+2*i, s) for i, s in enumerate(recl)]
            if ks >= h_go: x[kk] += H.take(DENSE)
        if sg == 17:
            x[0] += [(12, "v_lshrrev_b32 v%d, 4, v1" % vR1), (13, "v_and_b32 v%d, 48, v%d" % (vR1, vR1)), (14, "v_add_u32 v%d, %d, v%d" % (vR1, L_CS3 + 576, vR1))]
            p1 = ["ds_read_b128 %s, v%d offset:%d" % (vr(CS1 + 4*ft), vR1, ft*64) for ft in range(9)]
        stage(sg, nxt=(sg < 17), x0=x[0], x1=x[1], p1=p1)
    while H.q: C(H.q.pop(0))
    stamp(C, diag, "pass2")
    CS1B = FR + 52; TP = FR + 44 - 44
    C("v_bfe_u32 v8, v1, 4, 4\nv_lshl_add_u32 v8, v8, 2, s33")
    C("ds_read2_b32 v[4:5], v8 offset0:32 offset1:48")
    for ft in range(9): C("ds_read_b128 %s, v%d offset:%d" % (vr(CS1B + 4*ft), vR1, 1152 + ft*64))
    C("v_bfe_u32 v8, v1, 4, 4\ns_lshl_b32 s33, s31, 5\nv_lshl_add_u32 v8, v8, 1, s33")
    C("buffer_load_ushort v252, v8, %s, 0 offen\nbuffer_load_ushort v254, v8, %s, 0 offen offset:32" % (BSP, BSP))
    C("s_waitcnt lgkmcnt(9)")
    C("v_rcp_f32 v%d, v4\nv_rcp_f32 v%d, v5\nv_mul_f32 v6, s40, v5\nv_mul_f32 v7, v5, v5\nv_mul_f32 v5, v4, v4\nv_mul_f32 v4, s40, v4" % (MR+1, MR+3))
    C("v_mul_f32 v5, s42, v5\nv_mul_f32 v7, s42, v7\nv_mul_f32 v5, v5, v4\nv_mul_f32 v7, v7, v6")
    for ft in range(9):
        x = [A1 + ft*8 + 2*i for i in range(4)]; t = [(FR, FR+44)[ft % 2] + 2*i for i in range(4)]
        mr = [MR + 2*(i//2) for i in range(4)]; kc = [4 + 2*(i//2) for i in range(4)]
        C("s_waitcnt lgkmcnt(%d)" % (8-ft))
        for i in range(2): C("v_pk_add_f32 %s, %s, %s" % (p2(CS1+4*ft+2*i), p2(CS1+4*ft+2*i), p2(CS1B+4*ft+2*i)))
        for i in range(4): C("v_pk_fma_f32 %s, %s, %s, %s op_sel_hi:[0,1,1] neg_lo:[1,0,0] neg_hi:[1,0,0]" % (p2(x[i]), p2(mr[i]), p2(CS1+4*ft+2*(i % 2)), p2(x[i])))
        for i in range(4): C("v_pk_mul_f32 %s, %s, %s" % (p2(t[i]), p2(x[i]), p2(x[i])))
        for i in range(4): C("v_pk_fma_f32 %s, %s, %s, %s op_sel:[0,1,0] op_sel_hi:[1,1,0]" % (p2(t[i]), p2(t[i]), p2(kc[i]), p2(kc[i])))
        for i in range(4): C("v_pk_mul_f32 %s, %s, %s" % (p2(t[i]), p2(t[i]), p2(x[i])))
        for i in range(8): C("v_exp_f32 v%d, v%d" % (t[0]+i, t[0]+i))
        for i in range(4): C("v_pk_fma_f32 %s, %s, %s, %s op_sel:[0,1,1] op_sel_hi:[1,1,1]" % (p2(t[i]), p2(t[i]), p2(mr[i]), p2(mr[i])))
        for i in range(8): C("v_rcp_f32 v%d, v%d" % (t[0]+i, t[0]+i))
        for i in range(4): C("v_pk_mul_f32 %s, %s, %s" % (p2(x[i]), p2(x[i]), p2(t[i])))
        if ft == o.get("z2_sig", 1):
            stamp(C, diag, "z2sa"); C("s_waitcnt vmcnt(2)\ns_barrier"); stamp(C, diag, "z2sb")
    stamp(C, diag, "z1gelu")
    C("s_waitcnt vmcnt(0)")
    C("v_lshlrev_b32 v252, 16, v252\nv_lshlrev_b32 v254, 16, v254\nv_mov_b32 v253, v252\nv_mov_b32 v255, v254")
    C(vR(6)); C("v_lshrrev_b32 v3, 1, v6"); C(vQ(4)); C("v_xor_b32 v3, v3, v4\nv_lshlrev_b32 v3, 4, v3\nv_lshl_add_u32 v3, v6, 7, v3")
    C("s_add_u32 s33, s30, %d\nv_add_u32 v3, s33, v3\nv_xor_b32 v4, 64, v3\nv_add_u32 v5, %d, v3\nv_add_u32 v6, %d, v4" % (ROWH, 2*SLOT, 2*SLOT))
    for i in range(36): C("v_mov_b64 %s, %s" % (p2(A2+2*i), p2(252 + 2*((i//2) % 2))))
    C("s_mul_i32 s36, s31, 73728\ns_add_u32 s36, s36, s%d" % sLB)
    C("s_lshl_b32 s34, s24, 12\ns_lshl_b32 s35, s24, 9\ns_add_u32 s35, s35, 65536")
    C("v_add_u32 v14, s34, v1\nv_lshrrev_b32 v15, 1, v1\nv_add_u32 v15, s35, v15\ns_add_u32 s39, s36, 0x%x\ns_add_u32 s40, s36, 0x%x" % (WS_H, WS_H+73728))
    C("s_mov_b32 s41, 7\ns_barrier")
    stamp(C, diag, "p4B0")
    for s in reads(18, 0): C(s)
    C(".p2align 6")
    C.lab("L_g_loop")
    for sg in range(18, 22): stage(sg, x1=[(16, "s_sub_u32 s41, s41, 1"), (17, "s_cmp_lg_u32 s41, 0")] if sg == 21 else ())
    C("s_cbranch_scc1 L_g_loop")
    C.nbar += 24
    for sg in range(18, 22): stage(sg, nxt=(sg < 21))
    stamp(C, diag, "p4loop")
    for u in range(5):
        for tt in range(2):
            tiles = [2*u, 2*u+1] if u < 4 else [8]
            d = FR + (u*2+tt)*4
            for ft in tiles:
                i = (ft*2+tt)*4
                for p in range(2): C("v_pk_mul_f32 %s, %s, %s" % (p2(A2+i+2*p), p2(A2+i+2*p), p2(A1+i+2*p)))
            for e, ft in enumerate(tiles):
                i = A2 + (ft*2+tt)*4
                C("v_cvt_pk_bf16_f32 v%d, v%d, v%d\nv_cvt_pk_bf16_f32 v%d, v%d, v%d" % (d+2*e, i, i+1, d+2*e+1, i+2, i+3))
            if u < 4: C("buffer_store_dwordx4 %s, v14, %s, s%d offen offset:%d %s" % (vr(d), WS, 39+tt, u*1024, stf))
            else: C("buffer_store_dwordx2 %s, v15, %s, s%d offen %s" % (vr(d, 2), WS, 39+tt, stf))
    stamp(C, diag, "p4end")
```

```python
from ph_sync import *
def magic(d, maxv):
    for sh in range(8, 20):
        m = -(-(1 << sh) // d)
        if all((v*m) >> sh == v // d for v in range(maxv+1)): return m, sh
def sdiv(k, q, r, src, d, maxv):
    m, sh = magic(d, maxv)
    k("s_mul_i32 s%d, s%d, %d\ns_lshr_b32 s%d, s%d, %d\ns_mul_i32 s%d, s%d, %d\ns_sub_u32 s%d, s%d, s%d" % (q, src, m, q, q, sh, r, q, d, r, src, r))
def vdiv(k, dst, src, d, maxv, rem):
    m, sh = magic(d, maxv)
    k("v_mul_u32_u24 v%d, %d, v%d\nv_lshrrev_b32 v%d, %d, v%d\nv_mul_u32_u24 v%d, %d, v%d\nv_sub_u32 v%d, v%d, v%d" % (dst, m, src, dst, sh, dst, rem, d, dst, rem, src, rem))
P_X, P_WQKV, P_WO, P_WIN, P_WOUT = 36, 38, 40, 44, 50
DBG = 58
SRC = "s[32:35]"
F = 16
dB = [72*(u >> 1) + 32*(u & 1) for u in range(8)]
AMT, AMT2, SIG2 = 46, 47, 48
def trreads(k, lb, B, bases, BL, baseL):
    for u in range(9):
        for ih in range(2):
            off = (bases[u] + B*ih)*lb if u < 8 else (baseL + BL*ih)*lb
            k("ds_read_b64_tr_b16 %s, v%d offset:%d" % (vr(F+4*u+2*ih, 2), 4 if u < 8 else 5, off))
def colsum(k, vaddr, sb, stf):
    for i in range(36): k("v_dot2_f32_bf16 v%d, v%d, v11, %s" % (12 + i % 2, F+i, "v%d" % (12 + i % 2) if i > 1 else "0"))
    k("s_nop 2\nv_add_f32 v12, v12, v13")
    xsum_q(k, 12, 13)
    k("buffer_store_dword v12, v%d, %s, s%d offen %s" % (vaddr, WS, sb, stf))
def stores(k, vsel, soff, stf):
    for u in range(9):
        k("s_waitcnt lgkmcnt(%d)" % min(15, 16 - 2*u))
        k(soff(u))
        k("buffer_store_dwordx4 %s, v%d, %s, s31 offen %s" % (vr(F+4*u), vsel(u), WS, stf))
SO = [37, 38, 39, 40, 41, 42, 43, 47, 48]
def wload(k, ncw, ptr, rows, stride, A, AL, LB, ld0, bars):
    sdiv(k, 28, 27, 26, ncw, 200)
    srd(k, 32, ptr, rows*stride)
    k("s_mul_i32 s29, s28, %d\ns_lshl_b32 s31, s27, 7\ns_add_u32 s29, s29, s31\ns_mul_i32 s31, s%d, %d\ns_add_u32 s29, s29, s31" % (288*stride, sW, 72*stride))
    k("v_lshrrev_b32 v4, 7, v1\nv_mul_u32_u24 v4, %d, v4\nv_and_b32 v5, 0x70, v1\nv_add_u32 v4, v4, v5" % stride)
    for j in range(-1, 9):
        if j >= 0: k("s_add_u32 m0, s30, %d\ns_add_u32 s31, s29, %d\nbuffer_load_dwordx4 v4, %s, s31 offen %s lds" % (LB + j*1024, j*8*stride, SRC, ld0))
        for _ in range(bars.get(j, 0)): k("s_barrier")
    k("v_lshrrev_b32 v7, 2, v2\nv_and_b32 v8, 3, v2\ns_lshl_b32 s31, s%d, 5\ns_add_u32 s31, s31, %d" % (sW, LB))
    k("v_lshlrev_b32 v9, 7, v7\nv_lshl_add_u32 v9, v8, 3, v9\nv_add_u32 v9, s31, v9")
    k("v_mul_u32_u24 v4, %d, v3\nv_add_u32 v4, v4, v9\nv_mul_u32_u24 v5, %d, v3\nv_add_u32 v5, v5, v9" % (A*128, AL*128))
    k("s_lshl_b32 s31, s27, 2\ns_add_u32 s31, s31, s%d\nv_lshl_add_u32 v7, s31, 2, v7\nv_lshlrev_b32 v8, 4, v8\nv_lshl_add_u32 v8, v3, 8, v8" % sW)
def proj_dst(k, ncp, base):
    vdiv(k, 9, 7, 18, 143, 10)
    k("v_lshrrev_b32 v12, 3, v10\nv_and_b32 v13, 1, v10\nv_lshl_add_u32 v12, v12, 1, v13\nv_bfe_u32 v14, v10, 1, 2\nv_cmp_gt_u32 vcc, 16, v10")
    k("v_mul_u32_u24 v9, %d, v9\nv_add_u32 v9, v9, v8" % (ncp*9216))
    k("v_cndmask_b32 v12, 8, v12, vcc\nv_cndmask_b32 v14, v13, v14, vcc\nv_mov_b32 v15, 0x1000\nv_mov_b32 v13, 0x80\nv_cndmask_b32 v15, v13, v15, vcc")
    k("v_lshl_add_u32 v9, v12, 10, v9\nv_lshl_add_u32 v9, v14, 6, v9\nv_add_u32 v10, v9, v15")
    k("s_and_b32 s31, s28, 1\ns_cmp_eq_u32 s31, 1\ns_cselect_b64 vcc, -1, 0\nv_cndmask_b32 v14, v9, v10, vcc")
    k("s_mul_i32 s31, s28, %d" % (4*9216))
    for u in range(8): k("s_add_u32 s%d, s31, 0x%x" % (SO[u], base + (u >> 1)*9216))
    k("s_lshr_b32 s31, s28, 1\ns_mul_i32 s31, s31, 9216\ns_add_u32 s%d, s31, 0x%x" % (SO[8], base + (ncp*8//9)*9216))
def prep_C(k, o, diag):
    stf = o.get("st0", "sc1"); ld0 = o.get("ld0", "nt")
    k(vR(2)); k(vQ(3)); k("v_bfrev_b32 v6, 1\nv_mov_b32 v11, 0x3f803f80")
    k("s_lshl_b32 s30, s%d, 12\ns_and_b32 s29, s%d, 1" % (sW, sW))
    k("s_cmp_lt_u32 s2, 128\ns_cbranch_scc1 L_p0_x\ns_cmp_lt_u32 s2, 236\ns_cbranch_scc1 L_p0_wq\ns_cmp_lt_u32 s2, 254\ns_cbranch_scc1 L_p0_wo")
    k("s_mov_b32 s%d, 0\ns_mov_b32 s%d, 0\ns_mov_b32 s27, 0\ns_mov_b32 s28, 0" % (AMT, AMT2))
    k("s_barrier\ns_cmp_lg_u32 s2, 254\ns_cbranch_scc1 L_p0_nz\ns_cmp_lg_u32 s%d, 0\ns_cbranch_scc1 L_p0_nz" % sW)
    k("v_lshlrev_b32 v4, 4, v1\nv_mov_b32 v5, 0")
    for i in range(6): k("s_mov_b32 s31, 0x%x\nbuffer_store_dword v5, v4, %s, s31 offen sc1" % (WS_FLAG + i*16384, WS))
    k("s_waitcnt vmcnt(0)\ns_mov_b32 s31, 1\ns_atomic_add s31, s[%d:%d], 0" % (DBG, DBG+1))
    k.lab("L_p0_nz")
    k("s_barrier\ns_branch L_p0_cd")
    k.lab("L_p0_wo")
    k("s_mul_i32 s30, s%d, 9216\ns_sub_u32 s26, s2, 236" % sW)
    wload(k, 9, P_WO, 576, 1152, 4, 72, 0, ld0, {8: 1})
    proj_dst(k, 9, WS_WO)
    k("s_waitcnt vmcnt(0)\ns_barrier")
    trreads(k, 128, 20, [36*u for u in range(8)], 36, 16)
    stores(k, lambda u: (9 + (u & 1)) if u < 8 else 14, lambda u: "s_mov_b32 s31, s%d" % SO[u], stf)
    k("s_mov_b32 s%d, 1\ns_mov_b32 s%d, 0\ns_mov_b32 s27, %d\ns_mov_b32 s28, 0\ns_branch L_p0_cd" % (AMT, AMT2, 16*(F_P4 - F_P1)))
    k.lab("L_p0_wq")
    srd(k, 32, P_WQKV, 576*3456)
    k("s_sub_u32 s23, s2, 128")
    sdiv(k, 25, 24, 23, 54, 107)
    k("s_mul_i32 s26, s25, %d\ns_lshl_b32 s31, s24, 6\ns_add_u32 s26, s26, s31" % (288*3456))
    k("v_lshrrev_b32 v4, 6, v1\nv_mul_u32_u24 v4, 3456, v4\nv_and_b32 v5, 48, v1\nv_add_u32 v4, v4, v5")
    k("s_mul_i32 s31, s%d, %d\ns_add_u32 s27, s26, s31" % (sW, 64*3456))
    for j in range(4): k("s_add_u32 m0, s30, %d\ns_add_u32 s31, s27, %d\nbuffer_load_dwordx4 v4, %s, s31 offen %s lds" % (j*1024, j*16*3456, SRC, ld0))
    k("s_lshl_b32 s31, s29, 10\ns_add_u32 m0, s31, 16384\ns_mul_i32 s31, s29, %d\ns_add_u32 s31, s31, s26\ns_add_u32 s31, s31, %d" % (16*3456, 256*3456))
    k("buffer_load_dwordx4 v4, %s, s31 offen %s lds" % (SRC, ld0))
    k("s_barrier")
    k("v_lshrrev_b32 v7, 2, v2\nv_and_b32 v8, 3, v2\ns_lshl_b32 s31, s29, 5")
    k("v_lshlrev_b32 v9, 6, v7\nv_lshl_add_u32 v9, v8, 3, v9\nv_add_u32 v9, s31, v9")
    k("v_lshl_add_u32 v4, v3, 9, v9\nv_mul_u32_u24 v5, %d, v3\nv_add_u32 v5, v5, v9" % (72*64))
    k("s_lshl_b32 s31, s24, 1\ns_add_u32 s31, s31, s29\nv_lshl_add_u32 v7, s31, 2, v7\nv_lshlrev_b32 v8, 4, v8\nv_lshl_add_u32 v8, v3, 8, v8")
    vdiv(k, 9, 7, 144, 431, 10)
    vdiv(k, 12, 10, 9, 143, 13)
    k("v_cmp_lt_u32 s[36:37], 4, v13\nv_cmp_eq_u32 s[38:39], 4, v13\nv_cmp_eq_u32 s[40:41], 2, v9\nv_lshlrev_b32 v14, 1, v9\nv_add_u32 v15, 1, v14\nv_subrev_u32 v10, 5, v13")
    k("v_cndmask_b32 v14, v14, v15, s[36:37]\nv_cndmask_b32 v13, v13, v10, s[36:37]\nv_cndmask_b32 v14, v14, 6, s[38:39]\nv_cndmask_b32 v13, v13, v9, s[38:39]")
    k("s_and_b64 s[40:41], s[40:41], s[38:39]\ns_mov_b32 s31, %d" % (18*7168))
    k("v_mul_lo_u32 v9, v12, s31\nv_add_u32 v9, v9, v8\nv_lshl_add_u32 v9, v14, 10, v9\nv_lshl_add_u32 v9, v13, 6, v9")
    k("v_add_u32 v15, 64, v9\nv_cndmask_b32 v15, v6, v15, s[40:41]")
    k("v_and_b32 v10, 3, v2\nv_lshlrev_b32 v10, 2, v10\nv_lshl_add_u32 v10, v13, 4, v10\nv_lshl_add_u32 v10, v14, 6, v10\nv_lshl_add_u32 v10, v12, 10, v10")
    k("v_cmp_eq_u32 vcc, 0, v3\ns_lshl_b32 s45, s25, 9\ns_add_u32 s45, s45, 0x%x\nv_cndmask_b32 v10, v6, v10, vcc" % WS_CSQ)
    k("s_mul_i32 s43, s25, 7168\ns_add_u32 s44, s43, 0x%x\ns_lshl_b32 s43, s43, 3\ns_add_u32 s42, s43, 0x%x" % (WS_WQ + 16*7168, WS_WQ))
    sdiv(k, 26, 27, 24, 9, 53)
    k("s_cmp_lt_u32 s26, 2\ns_cselect_b32 s31, 2, 1\ns_cmp_ge_u32 s27, 1\ns_cselect_b32 s%d, s31, 0\ns_cmp_le_u32 s27, 7\ns_cselect_b32 s%d, s31, 0" % (AMT, AMT2))
    k("s_and_b32 s26, s26, 1\ns_lshl_b32 s26, s26, 3\ns_min_u32 s28, s27, 7\ns_add_u32 s28, s28, s26\ns_max_u32 s27, s27, 1\ns_sub_u32 s27, s27, 1\ns_add_u32 s27, s27, s26")
    sq = lambda u: "s_add_u32 s31, s42, %d" % (u*7168) if u < 8 else "s_mov_b32 s31, s44"
    k("s_waitcnt vmcnt(0)\ns_barrier")
    stamp(k, diag, "p0ld")
    trreads(k, 64, 4, dB, 4, 64)
    k("s_cmp_ge_u32 s%d, 2\ns_cbranch_scc1 L_p0_cs" % sW)
    stores(k, lambda u: 9, sq, stf)
    k("s_branch L_p0_cd")
    k.lab("L_p0_cs")
    for i in range(4): k("v_mov_b32 v%d, 0" % (52+i))
    k("s_cmp_eq_u64 s[40:41], 0\ns_cbranch_scc1 L_p0_np")
    for u in range(9): k(sq(u)); k("buffer_store_dwordx4 v[52:55], v15, %s, s31 offen %s" % (WS, stf))
    k.lab("L_p0_np")
    k("s_waitcnt lgkmcnt(0)")
    colsum(k, 10, 45, stf)
    k("s_branch L_p0_cd")
    k.lab("L_p0_x")
    srd(k, 32, P_X, 2048*1152)
    k("s_mul_i32 s26, s2, 18432\ns_mov_b32 m0, s30\ns_add_u32 s31, s26, s30")
    for j in range(4): k("buffer_load_dwordx4 v1, %s, s31 offen offset:%d %s lds" % (SRC, j*1024, ld0))
    k("s_lshl_b32 s27, s29, 10\ns_add_u32 s27, s27, 16384\ns_mov_b32 m0, s27\ns_add_u32 s31, s26, s27")
    k("buffer_load_dwordx4 v1, %s, s31 offen %s lds" % (SRC, ld0))
    k("s_barrier")
    k("s_mul_i32 s31, s%d, 288\nv_mul_u32_u24 v7, 1152, v2\nv_lshl_add_u32 v4, v3, 4, v7\nv_add_u32 v4, s31, v4" % sW)
    k("s_mul_i32 s31, s29, 576\nv_mul_u32_u24 v5, 144, v3\nv_add3_u32 v5, v5, v7, s31")
    k("s_add_u32 s26, s26, 0x%x\ns_add_u32 s42, s26, s30\ns_add_u32 s44, s26, s27" % WS_XA)
    k("s_lshl_b32 s45, s2, 10\ns_lshl_b32 s31, s%d, 8\ns_add_u32 s45, s45, s31\ns_add_u32 s45, s45, 0x%x" % (sW, WS_STA))
    k("v_cmp_gt_u32 vcc, 2, v3\nv_lshrrev_b32 v10, 1, v1\ns_mov_b32 s%d, 2\ns_mov_b32 s%d, 0\nv_cndmask_b32 v10, v6, v10, vcc" % (AMT, AMT2))
    k("s_lshr_b32 s27, s2, 3\ns_add_u32 s27, s27, %d\ns_mov_b32 s28, 0" % (16*(F_P5 - F_P1)))
    k("s_waitcnt vmcnt(0)\ns_barrier")
    stamp(k, diag, "p0ld")
    for u in range(5): k("ds_read_b128 %s, v%d offset:%d" % (vr(F+4*u), 4 if u < 4 else 5, 144*(u >> 1) + 64*(u & 1) if u < 4 else 128))
    for u in range(4): k("s_waitcnt lgkmcnt(%d)\nbuffer_store_dwordx4 %s, v1, %s, s42 offen offset:%d %s" % (4-u, vr(F+4*u), WS, u*1024, stf))
    dots = lambda i: "v_dot2_f32_bf16 v12, v%d, v11, %s\nv_dot2_f32_bf16 v13, v%d, v%d, %s" % (F+i, "v12" if i else "0", F+i, F+i, "v13" if i else "0")
    for i in range(16): k(dots(i))
    k("s_waitcnt lgkmcnt(0)\ns_cmp_ge_u32 s%d, 2\ns_cbranch_scc1 L_p0_xs" % sW)
    k("buffer_store_dwordx4 %s, v1, %s, s44 offen %s" % (vr(F+16), WS, stf))
    for i in range(16, 20): k(dots(i))
    k.lab("L_p0_xs")
    k("s_nop 2\nv_mov_b32 v14, v12\nv_mov_b32 v15, v13\ns_nop 1\nv_permlane32_swap_b32 v12, v14\nv_permlane32_swap_b32 v13, v15\nv_add_f32 v12, v12, v14\nv_add_f32 v13, v13, v15")
    k("buffer_store_dwordx2 v[12:13], v10, %s, s45 offen %s" % (WS, stf))
    k.lab("L_p0_cd")
    k("s_barrier")
    k.nbar = 3
    flag_addr(k, SIG, F_P1, 27, back=1); flag_addr(k, SIG2, F_P1, 28, back=1)
    k("s_cmp_lg_u32 s%d, 0\ns_cbranch_scc1 L_pd_dbg" % sW)
    srd(k, 32, DBG, 256)
    k("v_mov_b32 v4, 0")
    vpoll(k, "dbg", SRC, "0", 4, 5, 1)
    stamp(k, diag, "p0st")
U_WI, U_WU, U_END = 0, 144, 216
def prep_L(k, o, diag):
    ld0 = o.get("ld0", "nt"); LB = 36864
    bars = {-1: 1, o.get("p0bar", 0): 2}
    k(vR(2)); k(vQ(3)); k("v_bfrev_b32 v6, 1\nv_mov_b32 v11, 0x3f803f80")
    k("s_mul_i32 s30, s%d, 9216" % sW)
    k("s_cmp_lt_u32 s2, %d\ns_cbranch_scc1 L_p0_wi\ns_cmp_lt_u32 s2, %d\ns_cbranch_scc1 L_p0_wu" % (U_WU, U_END))
    for r_ in (9, 10, 14, 15): k("v_mov_b32 v%d, v6" % r_)
    for r_ in SO + [49]: k("s_mov_b32 s%d, 0" % r_)
    k("s_barrier\ns_barrier\ns_barrier\ns_barrier\ns_barrier\ns_branch L_p0_ld")
    def landed():
        k("s_barrier\ns_waitcnt vmcnt(0)\ns_barrier")
        stamp(k, diag, "Lp0ld")
    k.lab("L_p0_wu")
    k("s_sub_u32 s26, s2, %d" % U_WU)
    wload(k, 9, P_WOUT, 2304, 1152, 4, 4, LB, ld0, bars)
    proj_dst(k, 36, WS_WU)
    k("v_mov_b32 v15, v6\ns_mov_b32 s49, 0")
    landed()
    trreads(k, 128, 16, [144*(u >> 2) + 32*(u & 3) for u in range(8)], 144, 128)
    k("s_branch L_p0_ld")
    k.lab("L_p0_wi")
    k("s_mov_b32 s26, s2")
    wload(k, 72, P_WIN, 576, 9216, 8, 72, LB, ld0, bars)
    k("s_cmp_lt_u32 s31, 144\ns_cselect_b32 s23, 1, 0\ns_cselect_b32 s24, 0, 144\ns_sub_u32 s26, s31, s24")
    sdiv(k, 25, 24, 26, 9, 143)
    k("s_lshl_b32 s26, s25, 1\ns_add_u32 s26, s26, s23\ns_mul_i32 s26, s26, %d\ns_lshl_b32 s31, s24, 10\ns_add_u32 s26, s26, s31\ns_add_u32 s26, s26, 0x%x" % (18*9216, WS_WI))
    k("s_mul_i32 s31, s28, 9216\ns_add_u32 s%d, s26, s31\ns_add_u32 s%d, s%d, %d\ns_lshl_b32 s31, s31, 3\ns_add_u32 s26, s26, s31" % (SO[8], SO[8], SO[8], 16*9216))
    for u in range(8): k("s_add_u32 s%d, s26, %d" % (SO[u], u*9216))
    k("s_lshl_b32 s49, s25, 12\ns_mul_i32 s31, s28, 1152\ns_add_u32 s49, s49, s31\ns_mul_i32 s31, s23, 576\ns_add_u32 s49, s49, s31\ns_lshl_b32 s31, s24, 6\ns_add_u32 s49, s49, s31\ns_add_u32 s49, s49, 0x%x" % WS_CSI)
    k("v_cmp_eq_u32 vcc, 0, v3\nv_lshlrev_b32 v15, 2, v2\nv_mov_b32 v9, v1\nv_mov_b32 v10, v1\nv_mov_b32 v14, v1\nv_cndmask_b32 v15, v6, v15, vcc")
    landed()
    trreads(k, 128, 4, dB, 4, 64)
    k.lab("L_p0_ld")
    k("s_waitcnt lgkmcnt(0)")
    stamp(k, diag, "Lp0st")
    k.nbar = 5
def prep_L_store(k, o):
    stf = o.get("st0", "sc1")
    for u in range(9):
        k("buffer_store_dwordx4 %s, v%d, %s, s%d offen %s" % (vr(F+4*u), (9 + (u & 1)) if u < 8 else 14, WS, SO[u], stf)); k.issue("p0")
    colsum(k, 15, 49, stf); k.issue("p0")
```

```python
from ph_sync import *
def proj_coords(k, o, b=23):
    k("s_and_b32 s%d, s2, 7\ns_lshr_b32 s26, s2, 3" % (b+2))
    if o.get("pmap", 0) == 0:
        k("s_lshl_b32 s%d, s%d, 2\ns_lshr_b32 s27, s26, 3\ns_add_u32 s%d, s%d, s27\ns_and_b32 s%d, s26, 7" % (b, b+2, b, b, b+1))
    else:
        k("s_lshr_b32 s%d, s%d, 1\ns_lshl_b32 s%d, s%d, 3\ns_lshr_b32 s27, s26, 2\ns_add_u32 s%d, s%d, s27" % (b, b+2, b, b, b, b))
        k("s_and_b32 s%d, s%d, 1\ns_lshl_b32 s%d, s%d, 2\ns_and_b32 s27, s26, 3\ns_add_u32 s%d, s%d, s27" % (b+1, b+2, b+1, b+1, b+1, b+1))
    k("s_add_u32 s%d, s%d, s%d\ns_and_b32 s%d, s%d, 3" % (b+2, b, b+1, b+2, b+2))
def dma_run(L, n, sm0, m0add, ssrc, srcadd, tag, fl=""):
    for j in range(n):
        if j % 4 == 0: L("s_add_u32 m0, s%d, %d\ns_add_u32 s33, s%d, %d" % (sm0, m0add + j*1024, ssrc, srcadd + j*1024))
        L("buffer_load_dwordx4 v1, %s, s33 offen offset:%d %s lds" % (WS, (j % 4)*1024, fl)); L.issue(tag)
def p2_loader(L, o, diag, after_y):
    proj_coords(L, o)
    L("s_mul_i32 s29, s24, %d\ns_add_u32 s29, s29, 0x%x" % (9*9216, WS_WO))
    L("s_mul_i32 s30, s%d, %d\ns_mul_i32 s31, s%d, %d\ns_add_u32 s31, s31, s29" % (sW, SLOT, sW, ROWH))
    dma_run(L, 18, 30, ROWH, 31, 0, "w")
    stamp(L, diag, "Lp2pre")
    L("s_mul_i32 s30, s%d, 3072\ns_add_u32 s31, s30, s29" % sW)
    L("s_barrier")
    dma_run(L, 3, 30, TOP, 31, 8*9216, "w")
    L("s_waitcnt vmcnt(0)\ns_barrier"); L.vm = []
    after_y()
class P5L:
    def __init__(s, L, o): s.L = L; s.o = o
    def setup(s):
        L = s.L
        proj_coords(L, s.o, 38)
        L("s_mul_i32 s42, s%d, 9216\ns_mul_i32 s43, s39, %d\ns_add_u32 s43, s43, s42\ns_add_u32 s43, s43, 0x%x" % (sW, 36*9216, WS_WU))
    def batch(s, tau):
        L = s.L
        L("\n".join(hoist_sel(L, 32, tau, 8, 40, s.o.get("hoist5", 1) and tau < 8)))
        L("s_mul_i32 s32, s32, %d\ns_add_u32 s32, s32, s43" % SLOT)
        dma_run(L, 9, 42, ((50 + tau) % 4)*SLOT, 32, 0, ("w", tau))
    def main(s, diag, tail):
        L = s.L
        L("s_barrier")
        for t in range(s.o.get("p5early", 3), 4): s.batch(t)
        stamp(L, diag, "Lp5pre")
        L("s_waitcnt vmcnt(%d)\ns_barrier" % L.vmn(("w", 0)))
        for m in range(1, 9):
            L("s_waitcnt vmcnt(%d)\ns_barrier" % L.vmn(("w", m)))
            if m + 3 < 9: s.batch(m + 3)
            else: tail(m)
def proj(C, kind, o, diag=None):
    p5 = kind == 5
    uid = "p%d" % kind
    npair = 36 if p5 else 9
    nst = 9 if p5 else 3
    ppst = lambda n: 4 if (p5 or n < 2) else 1
    ACT, RES = (WS_H, WS_XB) if p5 else (WS_O, WS_XA)
    rts = 73728 if p5 else 18432
    ld = o.get("ld", ""); stf = o.get("st", "")
    ho = p5 and o.get("hoist5", 1)
    ACC = 16; WF = 40; AW = 112; RR = 208; T = 220
    proj_coords(C, o)
    C("s_lshl_b32 s30, s23, 2\ns_add_u32 s30, s30, s%d" % sW)
    C("s_mul_i32 s29, s30, %d\ns_add_u32 s29, s29, s%d\ns_add_u32 s29, s29, 0x%x" % (rts, sLB, ACT))
    C("s_mul_i32 s34, s30, 18432\ns_add_u32 s34, s34, s%d\ns_add_u32 s34, s34, 0x%x" % (sLB, RES))
    C("s_lshl_b32 s35, s24, 11")
    C("s_lshr_b32 s36, s24, 2\ns_lshl_b32 s36, s36, 10\ns_and_b32 s37, s24, 3\ns_lshl_b32 s37, s37, 8\ns_add_u32 s36, s36, s37\ns_add_u32 s36, s36, 16384")
    C(vR(2)); C(vQ(3))
    C("v_add_u32 v4, s35, v1")
    C("v_lshlrev_b32 v5, 4, v2\nv_lshl_add_u32 v5, v3, 3, v5\nv_add_u32 v5, s36, v5")
    C("v_cmp_gt_u32 s[40:41], 2, v3\nv_bfrev_b32 v6, 1")
    for i in range(4): C("v_add_u32 v%d, %d, v1" % (12+i, SLOT*i))
    C("v_cndmask_b32 v5, v6, v5, s[40:41]")
    for p in range(2): C("buffer_load_dwordx4 %s, v4, %s, s34 offen offset:%d %s" % (vr(RR+4*p), WS, 1024*p, ld))
    C("buffer_load_dwordx2 %s, v5, %s, s34 offen %s" % (vr(RR+8, 2), WS, ld))
    C("s_add_u32 s34, s34, 0x%x" % ((LAYER_STRIDE + WS_XA - WS_XB) if p5 else (WS_XB - WS_XA)))
    C("s_lshl_b32 s39, s30, 10\ns_add_u32 s39, s39, s%d\ns_lshl_b32 s42, s24, 7\ns_add_u32 s39, s39, s42\ns_add_u32 s39, s39, 0x%x" % (sLB, LAYER_STRIDE + WS_STA if p5 else WS_STB))
    C("v_cmp_eq_u32 vcc, 0, v3\nv_lshlrev_b32 v10, 3, v2\nv_mov_b32 v11, 0x3f803f80")
    if p5: C("v_lshrrev_b32 v7, 1, v1")
    else: C("v_lshl_add_u32 v7, v3, 8, v10")
    C("v_cndmask_b32 v10, v6, v10, vcc")
    if p5:
        C("s_cmp_eq_u32 s%d, 0\ns_cbranch_scc1 L_p5_nf" % sLAY)
        C("v_mul_u32_u24 v9, 1152, v2\ns_mul_i32 s34, s30, %d\ns_mul_i32 s42, s24, 144\ns_add_u32 s34, s34, s42" % (16*1152))
        C("v_lshl_add_u32 v4, v3, 4, v9\nv_lshl_add_u32 v5, v3, 3, v9\nv_cndmask_b32 v5, v6, v5, s[40:41]")
        C.lab("L_p5_nf")
    C("s_lshr_b32 s44, s23, 1")
    flag_addr(C, POL, F_P4 if p5 else F_P1, 44)
    def mid():
        for i in range(10):
            C("v_lshlrev_b32 v%d, 16, v%d\nv_and_b32 v%d, 0xffff0000, v%d" % (ACC+2*i, RR+i, ACC+2*i+1, RR+i))
    edge(C, "d%d" % kind, [POL], o, diag, mid)
    def act_loads(tau):
        o_ = hoist_sel(C, 32, tau, 8, 25, ho and tau < 8) + ["s_lshl_b32 s32, s32, 13", "s_add_u32 s32, s32, s29", "s_add_u32 s33, s32, 4096"]
        lds_ = []
        for j in range(2*ppst(tau)):
            d = AW + ((tau % 3)*8 + j)*4
            if tau + 1 < nst: lds_.append(("buffer_load_dwordx4 %s, v1, %s, s%d offen offset:%d %s" % (vr(d), WS, 32 + j//4, (j % 4)*1024, ld), ("a", tau, j//2)))
            else:
                for e in range(2): lds_.append(("buffer_load_dwordx2 %s, v7, %s, s%d offen offset:%d %s" % (vr(d+2*e, 2), WS, 32 + j//4, (j % 4)*1024 + e*(512 if p5 else 128), ld), ("a", tau, j//2)))
        return o_, lds_
    def emit_act(tau):
        a, b = act_loads(tau)
        C("\n".join(a))
        for s, t in b: C(s); C.issue(t)
    def reads(gp):
        b = WF + (gp % 2)*36
        if p5: sl, off = (50 + gp//4) % 4, (gp % 4)*9216
        else: sl, off = (gp >> 1, ROWH + (gp & 1)*9216) if gp < 8 else (3, SLOT)
        return ["ds_read_b128 %s, v%d offset:%d" % (vr(b+4*j), 12 + sl, off + j*1024) for j in (0,1,2,3,8,4,5,6,7)]
    C("s_barrier")
    stamp(C, diag, uid+"Y")
    emit_act(0)
    for s in reads(0): C(s)
    emit_act(1)
    if not p5:
        emit_act(2)
        C("s_lshl_b32 s42, s23, 3\ns_add_u32 s42, s42, s24\ns_lshl_b32 s42, s42, 2\ns_add_u32 s42, s42, s%d\ns_lshl_b32 s42, s42, 8\ns_add_u32 s42, s42, s%d\ns_add_u32 s42, s42, 0x%x" % (sW, sLB, WS_ZS))
        C("v_mov_b32 v%d, -1.0\nv_lshrrev_b32 v%d, 2, v1\nbuffer_store_dword v%d, v%d, %s, s42 offen sc1" % (T, T+1, T, T+1, WS)); C.issue("zi")
    flag_addr(C, SIG, F_P5 if p5 else F_P2, 44)
    stamp(C, diag, uid+"iss")
    for gp in range(npair):
        tau, pp = gp // 4, gp % 4; b = WF + (gp % 2)*36; aw = AW + ((tau % 3)*8 + 2*pp)*4
        mm = []
        for e in range(2):
            for a in range(4): mm.append(mfma(ACC+4*a, b+16*e+4*a, aw+4*e))
            mm.append(mfma(ACC+16+4*e, b+32, aw+4*e, 'z' if (gp == 0 and e == 1) else None))
        ex = []
        newstage = p5 and gp + 1 < npair and (gp + 1) % 4 == 0
        n = C.vmn(("a", tau, pp))
        if newstage: ex += [(-1, "s_waitcnt vmcnt(%d) lgkmcnt(0)" % n), (-1, "s_barrier")]
        else: ex += [(-1, "s_waitcnt vmcnt(%d) lgkmcnt(4)" % n)]
        if gp + 1 < npair:
            for i, s in enumerate(reads(gp+1)): ex.append((i, s))
            if not newstage: ex.append((4, "s_waitcnt lgkmcnt(5)"))
        else: ex.append((4, "s_waitcnt lgkmcnt(0)"))
        if p5 and tau + 2 < nst:
            a, bl = act_loads(tau + 2)
            if pp == 0:
                for s in a: ex.append((0, s))
            m_ = len(bl)//4
            for i, (s, t) in enumerate(bl[m_*pp:m_*pp+m_]): ex.append((2 + (8//m_)*i, s)); C.issue(t)
        for s in interleave(mm, ex): C(s)
        stamp(C, diag, uid+"g%d" % gp)
    stamp(C, diag, uid+"gemm")
    C("s_nop 3")
    for i in range(8): C("v_cvt_pk_bf16_f32 v%d, v%d, v%d" % (RR+i, ACC+2*i, ACC+2*i+1))
    lab = "L_fin_" + uid
    def half():
        for j in range(4): C("v_permlane32_swap_b32 v%d, v%d" % (ACC+20+j, T+j))
        C("v_pk_add_f32 %s, %s, %s\nv_pk_add_f32 %s, %s, %s" % (vr(ACC+16,2), vr(ACC+16,2), vr(T,2), vr(ACC+18,2), vr(ACC+18,2), vr(T+2,2)))
        for i in (8, 9): C("v_cvt_pk_bf16_f32 v%d, v%d, v%d" % (RR+i, ACC+2*i, ACC+2*i+1))
    if p5: C("s_cmp_eq_u32 s%d, 1\ns_cbranch_scc1 %s" % (sLAY, lab))
    for p in range(2): C("buffer_store_dwordx4 %s, v4, %s, s34 offen offset:%d %s" % (vr(RR+4*p), WS, 1024*p, stf))
    half()
    C("buffer_store_dwordx2 %s, v5, %s, s34 offen %s" % (vr(RR+8, 2), WS, stf))
    C("v_cndmask_b32 v%d, 0, v%d, s[40:41]\nv_cndmask_b32 v%d, 0, v%d, s[40:41]" % (T+2, RR+8, T+3, RR+9))
    for i in range(10):
        r_ = RR+i if i < 8 else T+2+(i-8)
        C("v_dot2_f32_bf16 v%d, v%d, v11, %s\nv_dot2_f32_bf16 v%d, v%d, v%d, %s" % (T, r_, "v%d" % T if i else "0", T+1, r_, r_, "v%d" % (T+1) if i else "0"))
    C("s_nop 2")
    xsum_q_multi(C, [T, T+1], [T+2, T+3])
    C("buffer_store_dwordx2 %s, v10, %s, s39 offen %s" % (vr(T, 2), WS, stf))
    stamp(C, diag, uid+"end")
    if p5:
        fin = Stream(); Cs = C; C = fin
        C.lab(lab)
        for p in range(2): C("buffer_store_dwordx4 %s, v4, %s, s34 offen offset:%d" % (vr(RR+4*p), OUT, 64*p))
        half()
        C("buffer_store_dwordx2 %s, v5, %s, s34 offen offset:128" % (vr(RR+8, 2), OUT))
        stamp(C, diag, uid+"end")
        return fin
```

```python
from gen_common import *
F_P1, F_P2, F_P4, F_P5, F_Z2 = 0, 1, 2, 3, 4
SLOT, ROWH, TOP = 36864, 18432, 147456
def flag_addr(k, sd, kind, sgroup, back=0):
    if back == "prep": k("s_lshl_b32 s%d, s%d, 8\ns_add_u32 s%d, s%d, 0x%x" % (sd, sgroup, sd, sd, WS_FLAG + kind*16*256))
    else: k("s_lshl_b32 s%d, s%d, 7\ns_add_u32 s%d, s%d, s%d\ns_lshl_b32 s%d, s%d, 8\ns_add_u32 s%d, s%d, 0x%x" % (
        sd, sLAY, sd, sd, sgroup, sd, sd, sd, sd, WS_FLAG + kind*16*256 + (1-back)*32768))
    k("s_add_u32 s%d, s%d, s4\ns_addc_u32 s%d, s5, 0" % (sd, sd, sd+1))
SPIN = 1 << 16
def ssignal(k, sa, st=56):
    k("s_mov_b32 s%d, 1\ns_atomic_add s%d, s[%d:%d], 0" % (st, st, sa, sa+1))
def spoll(k, uid, addrs, sleep=4, st=57, sCnt=60, target=16, load=False):
    k("s_mov_b32 s%d, %d" % (sCnt, SPIN))
    k.lab("L_poll_%s" % uid)
    for i, sa in enumerate(addrs):
        sa, off = sa if isinstance(sa, tuple) else (sa, 0)
        if load: k("s_load_dword s%d, s[%d:%d], %d glc" % (st+i, sa, sa+1, off))
        else: k("s_mov_b32 s%d, 0\ns_atomic_add s%d, s[%d:%d], %d glc" % (st+i, st+i, sa, sa+1, off))
    k("s_waitcnt lgkmcnt(0)")
    for i in range(1, len(addrs)): k("s_min_u32 s%d, s%d, s%d" % (st, st, st+i))
    k("s_cmp_ge_u32 s%d, %d\ns_cbranch_scc1 L_pd_%s" % (st, target, uid))
    k("s_sub_u32 s%d, s%d, 1\ns_cbranch_scc1 L_pd_%s" % (sCnt, sCnt, uid))
    if sleep: k("s_sleep %d" % sleep)
    k("s_branch L_poll_%s" % uid)
    k.lab("L_pd_%s" % uid)
def vpoll(k, uid, srd_, soff, vOff, vT, target, sleep=4, sCnt=60):
    k("s_mov_b32 s%d, %d" % (sCnt, SPIN))
    k.lab("L_poll_%s" % uid)
    k("buffer_load_dword v%d, v%d, %s, %s offen sc1\ns_waitcnt vmcnt(0)" % (vT, vOff, srd_, soff))
    k("v_cmp_gt_u32 vcc, %d, v%d\ns_sub_u32 s%d, s%d, 1\ns_cbranch_scc1 L_pd_%s\ns_cbranch_vccz L_pd_%s" % (target, vT, sCnt, sCnt, uid, uid))
    k("s_sleep %d\ns_branch L_poll_%s" % (sleep, uid))
    k.lab("L_pd_%s" % uid)
SIG, POL, POL2 = 50, 52, 54
def edge(C, uid, polls, o, diag=None, mid=None, sig=None):
    stamp(C, diag, uid+"a")
    C("s_waitcnt vmcnt(0)\ns_barrier"); C.vm = []
    stamp(C, diag, uid+"X")
    C("s_cmp_lg_u32 s%d, 0\ns_cbranch_scc1 L_ns_%s" % (sW, uid))
    if sig: sig()
    else: ssignal(C, SIG)
    C.lab("L_ns_%s" % uid)
    if mid: mid()
    C("s_cmp_lg_u32 s%d, 0\ns_cbranch_scc1 L_pd_%s" % (sW, uid))
    spoll(C, uid, polls, sleep=o.get("sleep", 2))
def xsum_q(k, v, t, op="v_add_f32"):
    k("v_mov_b32 v%d, v%d\ns_nop 1\nv_permlane32_swap_b32 v%d, v%d\n%s v%d, v%d, v%d" % (t, v, v, t, op, v, v, t))
    k("v_mov_b32 v%d, v%d\ns_nop 1\nv_permlane16_swap_b32 v%d, v%d\n%s v%d, v%d, v%d" % (t, v, v, t, op, v, v, t))
def xsum_q_multi(k, vs, ts, op="v_add_f32"):
    for swp in ("v_permlane32_swap_b32", "v_permlane16_swap_b32"):
        for v, t in zip(vs, ts): k("v_mov_b32 v%d, v%d" % (t, v))
        if len(vs) < 3: k("s_nop 1")
        for v, t in zip(vs, ts): k("%s v%d, v%d" % (swp, v, t))
        for v, t in zip(vs, ts): k("%s v%d, v%d, v%d" % (op, v, v, t))
def hoist_sel(k, sd, tau, n, scls, on):
    nxt = tau + 4 if tau + 4 < n else tau % 4
    if on and nxt != tau: return ["s_cmp_eq_u32 s%d, %d" % (scls, tau % 4), "s_cselect_b32 s%d, %d, %d" % (sd, nxt, tau)]
    return ["s_mov_b32 s%d, %d" % (sd, tau)]
def vR(d): return "v_bfe_u32 v%d, v1, 4, 4" % d
def vQ(d): return "v_lshrrev_b32 v%d, 8, v1" % d
class Filler:
    def __init__(self): self.q = []
    def add(self, s): self.q += [l.strip() for l in (s.split("\n") if isinstance(s, str) else s) if l.strip()]
    def take(self, slots):
        out = []
        for p in slots:
            if not self.q: break
            out.append((p, self.q.pop(0)))
            while self.q and (self.q[0].endswith(":") ): out.append((p, self.q.pop(0)))
        return out
```

```python
import sys
from ph_prep import *
from ph_proj import *
from ph_attn import *
from ph_gmlp import *
HEADER = """; Generated by dev/gen.py (hand-written generator): LN+local attention / LN+gMLP x2 on gfx950.
; kernarg: x, wqkv, wo, (B_x unused), w_in, w_sp, b_sp, w_out, out, debug, ws"""
def mega(o={}, diag=None, name="mega_kernel"):
    o = dict(dict(ld="sc1", st="sc1"), **o)
    k = Kern(name, 256, 512, lds=163840, vgpr=256)
    k("s_cmp_ge_u32 s2, 256\ns_cbranch_scc1 L_end_m")
    stamp(k, diag, "start")
    k("s_load_dwordx16 s[36:51], s[0:1], 0\ns_load_dwordx4 s[56:59], s[0:1], %d\ns_load_dwordx2 s[24:25], s[0:1], %d" % (KA_OUT, KA_WS))
    k("v_lshrrev_b32 v2, 6, v0\nv_and_b32 v1, 63, v0\nv_lshlrev_b32 v1, 4, v1\nv_readfirstlane_b32 s23, v2")
    k("s_mov_b32 s%d, 0\ns_mov_b32 s%d, 0\ns_and_b32 s%d, s23, 3" % (sLAY, sLB, sW))
    k("s_waitcnt lgkmcnt(0)")
    srd(k, 4, 24, WS_BYTES); srd(k, 8, 46, 2048*4096); srd(k, 12, 48, 4096); srd(k, 16, 56, 2048*1152)
    k("s_cmp_ge_u32 s23, 4\ns_cbranch_scc1 L_ld_m")
    C, L = Stream(), Stream()
    def flush(st, slot, uid):
        if diag and (st is not L or any(x.startswith("L") for x in diag)):
            st("s_add_u32 s61, s%d, %d" % (sLAY, slot)); stamp_flush(st, diag, 61, uid, vt=16, wait=(st is L))
    nextlayer = "s_mov_b32 s%d, 1\ns_mov_b32 s%d, 0x%x" % (sLAY, sLB, LAYER_STRIDE)
    prep_C(C, o, diag)
    C.lab("L_m_cl")
    attn(C, o, diag); n1 = C.nbar
    proj(C, 2, o, diag); gmlp(C, o, diag)
    fin = proj(C, 5, o, diag)
    stamp(C, diag, "drain"); flush(C, 0, "c0"); stamp(C, diag, "start")
    C(nextlayer + "\ns_mov_b32 s%d, 1\ns_mov_b32 s%d, 0\ns_mov_b64 s[%d:%d], s[4:5]\ns_branch L_m_cl" % (AMT, AMT2, SIG2, SIG2+1))
    if diag: fin("s_waitcnt vmcnt(0)"); stamp(fin, diag, "drain"); flush(fin, 0, "c1")
    fin("s_endpgm")
    if o.get("codepf", 1):
        L("s_getpc_b64 s[26:27]")
        L.lab("L_m_pc")
        L("s_sub_u32 s26, s26, L_m_pc-%s\ns_subb_u32 s27, s27, 0" % name)
        L("s_lshr_b32 s28, s2, 3\ns_lshl_b32 s28, s28, 2\ns_add_u32 s28, s28, s%d\ns_lshl_b32 s28, s28, 9" % sW)
        L("v_lshrrev_b32 v4, 1, v1\nv_add_u32 v4, s28, v4\nv_min_u32 v4, L_end_m-%s-8, v4" % name)
        L("v_mov_b32 v5, s27\nv_add_co_u32 v4, vcc, s26, v4\ns_nop 1\nv_addc_co_u32 v5, vcc, 0, v5, vcc")
        L("global_load_dwordx2 v[60:61], v[4:5], off")
    prep_L(L, o, diag)
    a0 = P1L(L, o); a0.setup(0); a0.main(lambda: prep_L_store(L, o)); assert L.nbar == n1
    L.lab("L_m_ll"); L.vm = []
    p3, p5, a1 = P3L(L, o), P5L(L, o), P1L(L, o)
    p2_loader(L, o, diag, p3.pre)
    p3.main(diag, p5)
    sched = o.get("p1pre", {7: [7, 0, 1], 8: [2, 3]})
    def tail(m):
        if m == 6:
            L("s_cmp_eq_u32 s%d, 1\ns_cbranch_scc1 L_m_lfin" % sLAY)
            a1.setup(1)
        a1.issue([("g", g) for g in sched.get(m, [])])
    p5.main(diag, tail)
    assert L.nbar == C.nbar, (L.nbar, C.nbar)
    flush(L, 2, "l0")
    L(nextlayer + "\ns_barrier\ns_barrier")
    a1.issue([("g", g) for g in range(8)] + ["cs"])
    stamp(L, diag, "Lp1pre")
    a1.main()
    L("s_branch L_m_ll")
    L.lab("L_m_lfin")
    L("s_waitcnt vmcnt(9)\ns_barrier\ns_waitcnt vmcnt(0)\ns_barrier")
    flush(L, 2, "l1")
    k.L += C.L + fin.L + C.tail
    k.lab("L_ld_m"); k.L += L.L
    k.lab("L_end_m"); k("s_endpgm")
    return [k]
if __name__ == "__main__":
    out = sys.argv[1] if len(sys.argv) > 1 else "mega.s"
    o = eval(sys.argv[2]) if len(sys.argv) > 2 else {}
    NAME = "interleave_layers__sliding_local_dilated__mixer_gmlp__prompt_kernel"
    txt = build(mega(o, name=NAME), HEADER)
    if not o.get("list"): txt = txt.replace("; @launch kernel=%s " % NAME, "; @launch ")
    open(out, "w").write(txt)
```

```python
import sys
from ph_prep import *
from ph_proj import *
from ph_attn import *
from ph_gmlp import *
HEADER = """; Generated by dev/gen.py (hand-written generator): LN+local attention / LN+gMLP x2 on gfx950.
; kernarg: x, wqkv, wo, (B_x unused), w_in, w_sp, b_sp, w_out, out, debug, ws"""
def mega(o={}, diag=None, name="mega_kernel"):
    o = dict(dict(ld="sc1", st="sc1"), **o)
    k = Kern(name, 256, 512, lds=163840, vgpr=256)
    k("s_cmp_ge_u32 s2, 256\ns_cbranch_scc1 L_end_m")
    stamp(k, diag, "start")
    k("s_load_dwordx16 s[36:51], s[0:1], 0\ns_load_dwordx4 s[56:59], s[0:1], %d\ns_load_dwordx2 s[24:25], s[0:1], %d" % (KA_OUT, KA_WS))
    k("v_lshrrev_b32 v2, 6, v0\nv_and_b32 v1, 63, v0\nv_lshlrev_b32 v1, 4, v1\nv_readfirstlane_b32 s23, v2")
    k("s_mov_b32 s%d, 0\ns_mov_b32 s%d, 0\ns_and_b32 s%d, s23, 3" % (sLAY, sLB, sW))
    k("s_waitcnt lgkmcnt(0)")
    srd(k, 4, 24, WS_BYTES); srd(k, 8, 46, 2048*4096); srd(k, 12, 48, 4096); srd(k, 16, 56, 2048*1152)
    k("s_cmp_ge_u32 s23, 4\ns_cbranch_scc1 L_ld_m")
    C, L = Stream(), Stream()
    def dflush(st, uid, lo, n):
        st("s_cmp_lg_u32 s2, %d\ns_cbranch_scc1 L_df_%s\ns_cmp_lg_u32 s%d, 0\ns_cbranch_scc1 L_df_%s" % (o["dbgwg"], uid, sW, uid))
        st("s_load_dwordx2 s[58:59], s[0:1], %d\ns_waitcnt lgkmcnt(0)" % KA_DBG)
        if lo == 1: st("s_mov_b32 s3, s62")
        srd(st, 24, 58, 256)
        st("v_mov_b32 v17, 0")
        for i in range(n):
            st("s_sub_u32 s61, s%d, s3\nv_mov_b32 v16, s61\nbuffer_store_dword v16, v17, s[24:27], 0 offen offset:%d\ns_waitcnt vmcnt(0)" % (62 + 2*(len(diag) - n + i), 4*(lo + i)))
        st.lab("L_df_%s" % uid)
    def flush(st, slot, uid):
        if "padto" in o:
            if uid == "c0":
                st("s_waitcnt lgkmcnt(0)\ns_mov_b32 s3, s%d" % (62 if o.get("padlayer", 0) else 64))
            if uid == "c1":
                st("s_waitcnt lgkmcnt(0)")
                if o.get("padlayer", 0): st("s_mov_b32 s3, s64")
                st("s_add_u32 s3, s3, %d" % o["padto"])
                st.lab("L_pad")
                st("s_memrealtime s[62:63]\ns_waitcnt lgkmcnt(0)\ns_sub_u32 s61, s62, s3\ns_cmp_lt_i32 s61, 0\ns_cbranch_scc1 L_pad")
            return
        if "dbgwg" in o:
            if uid == "c0": dflush(st, uid, 1, len(diag) - 1)
            if uid == "c1": dflush(st, uid, len(diag), 1)
            return
        if diag and (st is not L or any(x.startswith("L") for x in diag)):
            st("s_add_u32 s61, s%d, %d" % (sLAY, slot)); stamp_flush(st, diag, 61, uid, vt=16, wait=(st is L))
    nextlayer = "s_mov_b32 s%d, 1\ns_mov_b32 s%d, 0x%x" % (sLAY, sLB, LAYER_STRIDE)
    prep_C(C, o, diag)
    C.lab("L_m_cl")
    attn(C, o, diag); n1 = C.nbar
    proj(C, 2, o, diag); gmlp(C, o, diag)
    fin = proj(C, 5, o, diag)
    stamp(C, diag, "drain"); flush(C, 0, "c0"); stamp(C, diag, "start")
    C(nextlayer + "\ns_mov_b32 s%d, 1\ns_mov_b32 s%d, 0\ns_mov_b64 s[%d:%d], s[4:5]\ns_branch L_m_cl" % (AMT, AMT2, SIG2, SIG2+1))
    if diag: fin("s_waitcnt vmcnt(0)"); stamp(fin, diag, "drain"); flush(fin, 0, "c1")
    fin("s_endpgm")
    if o.get("codepf", 1):
        L("s_getpc_b64 s[26:27]")
        L.lab("L_m_pc")
        L("s_sub_u32 s26, s26, L_m_pc-%s\ns_subb_u32 s27, s27, 0" % name)
        L("s_lshr_b32 s28, s2, 3\ns_lshl_b32 s28, s28, 2\ns_add_u32 s28, s28, s%d\ns_lshl_b32 s28, s28, 9" % sW)
        L("v_lshrrev_b32 v4, 1, v1\nv_add_u32 v4, s28, v4\nv_min_u32 v4, L_end_m-%s-8, v4" % name)
        L("v_mov_b32 v5, s27\nv_add_co_u32 v4, vcc, s26, v4\ns_nop 1\nv_addc_co_u32 v5, vcc, 0, v5, vcc")
        L("global_load_dwordx2 v[60:61], v[4:5], off")
    prep_L(L, o, diag)
    a0 = P1L(L, o); a0.setup(0); a0.main(lambda: prep_L_store(L, o)); assert L.nbar == n1
    L.lab("L_m_ll"); L.vm = []
    p3, p5, a1 = P3L(L, o), P5L(L, o), P1L(L, o)
    p2_loader(L, o, diag, p3.pre)
    p3.main(diag, p5)
    sched = o.get("p1pre", {7: [7, 0, 1], 8: [2, 3]})
    def tail(m):
        if m == 6:
            L("s_cmp_eq_u32 s%d, 1\ns_cbranch_scc1 L_m_lfin" % sLAY)
            a1.setup(1)
        a1.issue([("g", g) for g in sched.get(m, [])])
    p5.main(diag, tail)
    assert L.nbar == C.nbar, (L.nbar, C.nbar)
    flush(L, 2, "l0")
    L(nextlayer + "\ns_barrier\ns_barrier")
    a1.issue([("g", g) for g in range(8)] + ["cs"])
    stamp(L, diag, "Lp1pre")
    a1.main()
    L("s_branch L_m_ll")
    L.lab("L_m_lfin")
    L("s_waitcnt vmcnt(9)\ns_barrier\ns_waitcnt vmcnt(0)\ns_barrier")
    flush(L, 2, "l1")
    k.L += C.L + fin.L + C.tail
    k.lab("L_ld_m"); k.L += L.L
    k.lab("L_end_m"); k("s_endpgm")
    return [k]
if __name__ == "__main__":
    out = sys.argv[1] if len(sys.argv) > 1 else "mega.s"
    o = eval(sys.argv[2]) if len(sys.argv) > 2 else {}
    NAME = "interleave_layers__sliding_local_dilated__mixer_gmlp__prompt_kernel"
    txt = build(mega(o, name=NAME, diag=o.get('diag', '').split() or None), HEADER)
    if not o.get("list"): txt = txt.replace("; @launch kernel=%s " % NAME, "; @launch ")
    open(out, "w").write(txt)
```

```python
import numpy as np
S, D, FH = 2048, 576, 2304
MB = 1 << 20
import os
B0 = int(os.environ.get('WSB', '0'))*MB
LAYER_STRIDE = 28*MB
WS_XA  = B0+0*MB
WS_XB  = B0+3*MB
WS_O   = B0+6*MB
WS_Z2  = B0+9*MB
WS_H   = B0+18*MB
WS_STA = B0+27*MB
WS_STB = B0+27*MB + 2*65536
WS_ZS  = B0+27*MB + 4*65536
WS_W0  = B0+2*LAYER_STRIDE
WS_WQ  = WS_W0 + 0*MB
WS_WO  = WS_W0 + 2*MB
WS_WI  = WS_W0 + 3*MB
WS_WU  = WS_W0 + 9*MB
WS_CSQ = WS_W0 + 12*MB
WS_CSI = WS_W0 + 12*MB + 65536
WS_FLAG = WS_W0 + 13*MB
WS_STAMP = 100*MB
WS_BYTES = 268435456

cqi = lambda nc: np.meshgrid(np.arange(nc), np.arange(4), np.arange(8), indexing="ij")
def dmap():
    c, q, i = cqi(18)
    d = np.where(c < 16, 72*(c >> 1) + 32*(c & 1) + 8*q + i, 72*(4*(c-16) + q) + 64 + i)
    assert sorted(d.ravel()) == list(range(576)); return d
def omap():
    c, q, i = cqi(18)
    hp = 8*(c-16) + 2*q + (i >> 2)
    e = np.where(c < 16, 36*c + 20*(i >> 2) + 4*q + (i & 3), 36*hp + 16 + (i & 3))
    assert sorted(e.ravel()) == list(range(576)); return e
def hmap():
    c, q, i = cqi(72)
    fb = np.where(c < 64, c >> 2, 2*(c-64) + (i >> 2))
    tile = np.where(c < 64, 2*(c & 3) + (i >> 2), 8)
    f = 144*fb + 16*tile + 4*q + (i & 3)
    assert sorted(f.ravel()) == list(range(2304)); return f
def prow():
    p = np.arange(2048); a = (p >> 4) & 1; r = p & 15
    return (p & ~31) + 8*(r >> 2) + 4*a + (r & 3)
def pack_rows(a, kmap, porder=False):
    if porder: a = a[prow()]
    a = a.reshape(128, 16, -1)
    o = a[:, :, kmap]
    return np.ascontiguousarray(o.transpose(0, 2, 3, 1, 4))
def unsplit(p, kind):
    nc, c0 = (18, 16) if kind == 'o' else (72, 64)
    p = p.reshape(128, nc, 512).copy()
    t = p[:, c0:]
    t = t.reshape(128, nc-c0, 4, 2, 16, 4).transpose(0, 1, 2, 4, 3, 5) if kind == 'o' else t.reshape(128, nc-c0, 2, 4, 16, 4).transpose(0, 1, 3, 4, 2, 5)
    p[:, c0:] = t.reshape(128, nc-c0, 512)
    return p
def unpack_rows(p, kmap, porder=False):
    nc = kmap.shape[0]; K = nc*32
    p = p.reshape(128, nc, 4, 16, 8).transpose(0, 3, 1, 2, 4)
    a = np.empty((128, 16, K), p.dtype)
    a[:, :, kmap] = p
    a = a.reshape(2048, K)
    if porder:
        b = np.empty_like(a); b[prow()] = a; a = b
    return a
def pack_stats(x, porder=False):
    if porder: x = x[prow()]
    b = x.reshape(128, 16, 4, 2, 72).astype(np.float32)
    st = np.stack([b.sum(-1), (b*b).sum(-1)], -1)
    return np.ascontiguousarray(st.transpose(0, 2, 1, 3, 4))
def unpack_stats(p, porder=False):
    p = p.reshape(128, 8, 16, 2).sum(1).reshape(2048, 2)
    if porder:
        b = np.empty_like(p); b[prow()] = p; p = b
    return p
def pack_z2(z):
    z = z.reshape(64, 4, 8, 16, 9, 16)
    return np.ascontiguousarray(z.transpose(3, 0, 4, 1, 5, 2))
def unpack_z2(p):
    p = p.reshape(16, 64, 9, 4, 16, 8)
    return np.ascontiguousarray(p.transpose(1, 3, 5, 0, 2, 4)).reshape(2048, 2304)
def qkv_cols():
    m = -np.ones((16, 7, 16), int)
    for hp in range(16):
        for part in range(3):
            base = part*576 + 36*hp
            m[hp, 2*part, :] = base + np.arange(16)
            m[hp, 2*part + 1, :] = base + 20 + np.arange(16)
            m[hp, 6, 4*part: 4*part + 4] = base + 16 + np.arange(4)
    return m
def pack_wq(w):
    m = qkv_cols(); d = dmap()
    wz = np.concatenate([w, np.zeros((576, 1), w.dtype)], 1)
    o = wz[d[:, :, :, None, None, None], m[None, None, None]]
    return np.ascontiguousarray(o.transpose(3, 0, 4, 1, 5, 2))
def pack_csq(wf):
    o = np.zeros((4, 2048), np.float32)
    for h in range(4): o[h, :1728] = wf[144*h:144*h+144].sum(0)
    return o
def pack_wo(w, kmap):
    nc = kmap.shape[0]
    o = np.empty((8, nc//2, 9, 4, 16, 8), w.dtype)
    r = np.arange(16)
    for cb in range(8):
        for e in range(2):
            for a in range(4):
                dcol = 72*cb + 32*(a >> 1) + 8*(r >> 2) + 4*(a & 1) + (r & 3)
                o[cb, :, 4*e + a] = w[kmap[e::2][:, :, None, :], dcol[None, None, :, None]]
            dcol = 72*cb + 64 + np.arange(8)
            o[cb, :, 8, :, 8*e:8*e+8, :] = w[kmap[e::2][:, :, None, :], dcol[None, None, :, None]]
    return o
def win_cols():
    cb, ps, ft, r = np.meshgrid(np.arange(16), np.arange(2), np.arange(9), np.arange(16), indexing="ij")
    return 2304*(1-ps) + 144*cb + 16*ft + r
def pack_wi(w):
    m = win_cols(); d = dmap()
    o = w[d[None, None, :, None, :, None, :], m[:, :, None, :, None, :, None]]
    return np.ascontiguousarray(o)
def pack_csi(wf):
    m = win_cols()
    o = np.zeros((16, 1024), np.float32)
    o[:, :576] = np.stack([wf[288*h:288*h+288].sum(0).astype(np.float32)[m] for h in range(2)], 1).reshape(16, 576)
    return o
if __name__ == "__main__":
    dmap(); omap(); hmap()
    w = np.arange(576*1728).reshape(576, 1728); print(pack_wq(w).shape)
    w = np.arange(2304*576).reshape(2304, 576); p = pack_wo(w, hmap()); print(p.shape, len(np.unique(p)) == w.size)
    w = np.arange(576*4608).reshape(576, 4608); p = pack_wi(w); print(p.shape, len(np.unique(p)) == w.size)
    a = np.arange(2048*2304).reshape(2048, 2304); assert (unpack_rows(pack_rows(a, hmap(), True), hmap(), True) == a).all(); assert (unpack_z2(pack_z2(a)) == a).all()
```

```python
from ph_sync import *
L_HALO, L_EX, L_CS = 131072, 149504, 161792
def attn_coords(k, o):
    k("s_and_b32 s25, s2, 7\ns_lshr_b32 s26, s2, 3")
    m = o.get("amap", 1)
    if m == 0:
        k("s_lshl_b32 s23, s25, 1\ns_lshr_b32 s27, s26, 4\ns_add_u32 s23, s23, s27\ns_and_b32 s24, s26, 15")
    elif m == 2:
        k("s_and_b32 s23, s25, 1\ns_lshl_b32 s23, s23, 3\ns_lshr_b32 s27, s26, 2\ns_add_u32 s23, s23, s27")
        k("s_lshr_b32 s24, s25, 1\ns_lshl_b32 s24, s24, 2\ns_and_b32 s27, s26, 3\ns_add_u32 s24, s24, s27")
    elif m == 1:
        k("s_lshr_b32 s23, s25, 1\ns_lshl_b32 s23, s23, 2\ns_lshr_b32 s27, s26, 3\ns_add_u32 s23, s23, s27")
        k("s_and_b32 s24, s25, 1\ns_lshl_b32 s24, s24, 3\ns_and_b32 s27, s26, 7\ns_add_u32 s24, s24, s27")
def row_stats(raw, dst, tmp):
    k = Stream(); n = len(raw)
    for r_, d in zip(raw, dst): k("v_add_f32 v%d, v%d, v%d\nv_add_f32 v%d, v%d, v%d" % (d, r_, r_+2, d+1, r_+1, r_+3))
    vs = [d+i for d in dst for i in range(2)]; ts = [r_+i for r_ in raw for i in range(2)]
    xsum_q_multi(k, vs, ts)
    for d in dst: k("v_mul_f32 v%d, 0x%x, v%d\nv_mul_f32 v%d, 0x%x, v%d" % (d, f2u(1/576), d, d+1, f2u(1/576), d+1))
    for d in dst: k("v_fma_f32 v%d, -v%d, v%d, v%d" % (d+1, d, d, d+1))
    for d in dst: k("v_max_f32 v%d, 0, v%d" % (d+1, d+1))
    for d in dst: k("v_add_f32 v%d, 0x%x, v%d" % (d+1, f2u(1e-5), d+1))
    for d in dst: k("v_rsq_f32 v%d, v%d" % (d+1, d+1))
    k("s_nop 0")
    return [l.strip() for l in k.L]
BARS = [0, 2, 4, 6, 9, 11, 13, 16]
class P1L:
    def __init__(s, L, o): s.L = L; s.o = o; s.done = []
    def setup(s, nxt):
        L = s.L
        attn_coords(L, s.o)
        L("s_mul_i32 s29, s24, %d\ns_lshl_b32 s30, s%d, 12\ns_add_u32 s29, s29, s30\ns_add_u32 s29, s29, 0x%x" % (18*7168, sW, WS_WQ))
        L("s_lshl_b32 s31, s23, 3\ns_max_u32 s31, s31, 1\ns_sub_u32 s31, s31, 1\ns_mul_i32 s31, s31, 18432\ns_add_u32 s31, s31, 0x%x" % (WS_XA + nxt*LAYER_STRIDE))
        L("s_lshl_b32 s35, s%d, 10\ns_and_b32 s36, s35, 1024" % sW)
    def issue(s, tags):
        L = s.L
        for t in sorted([t for t in tags if t not in s.done], key=lambda t: (8, 2) if t == "cs" else ((16*t[1]/7, 1) if t[0] == "g" else (4*t[1], 0))):
            s.done.append(t)
            if t == "cs":
                L("v_lshrrev_b32 v60, 8, v1\nv_bfe_u32 v61, v1, 7, 1\nv_bfe_u32 v62, v1, 4, 3\nv_cmp_gt_u32 vcc, 3, v60")
                L("v_mul_u32_u24 v61, 80, v61\nv_lshl_add_u32 v61, v62, 3, v61\nv_lshrrev_b32 v63, 1, v62\nv_and_b32 v62, 1, v62\nv_lshl_add_u32 v62, v62, 3, 64")
                L("v_cndmask_b32 v60, v63, v60, vcc\nv_cndmask_b32 v61, v62, v61, vcc\nv_mul_u32_u24 v60, 2304, v60\nv_add_u32 v69, v60, v61\nv_lshrrev_b32 v68, 1, v1")
                for i in range(4):
                    L("s_mul_i32 s34, s24, 144\ns_add_u32 s34, s34, 0x%x" % (WS_CSQ + 8192*i))
                    L("buffer_load_dwordx2 %s, v69, %s, s34 offen" % (vr(60+2*i, 2), WS)); L.issue(t)
            elif t[0] == "g":
                L("s_add_u32 m0, s30, %d\ns_add_u32 s34, s29, %d" % (t[1]*16384, t[1]*16384))
                for j in range(4): L("buffer_load_dwordx4 v1, %s, s34 offen offset:%d lds" % (WS, j*1024)); L.issue(t)
            else:
                i = t[1]; sr = 35 if i < 4 else 36
                L("s_add_u32 m0, s%d, %d\ns_add_u32 s34, s31, s%d\ns_add_u32 s34, s34, %d" % (sr, L_HALO + i*4096, sr, i*4096))
                L("buffer_load_dwordx4 v1, %s, s34 offen %s lds" % (WS, s.o.get("ld", ""))); L.issue(t)
    def need(s, bi):
        cl = (BARS[bi+1] if bi + 1 < len(BARS) else 18) - 1
        return [("g", g) for g in range((7*(cl+1) + 15)//16)] + [("h", i) for i in range((cl - HD)//4 + 1 if cl < 17 else 5)] + (["cs"] if BARS[bi] >= 9 else [])
    def main(s, first=None, tr=None):
        L = s.L
        plan = s.o.get("p0st", {6: [0, 1, 2, 3], 7: [4, 5, 6], 8: [7, 8, 9]})
        L("s_barrier")
        for bi in range(len(BARS)):
            la = (s.o.get("la0", 1) if bi == 0 else s.o.get("la", 2)) if first else (1 if bi == 0 else 8)
            nd = s.need(min(bi + la, len(BARS)-1))
            if tr and bi <= 1: assert ("g", 5) not in nd
            s.issue(nd)
            if tr and bi == 1: tr()
            if first: first(plan.get(bi, []))
            if BARS[bi] == 9:
                if "cs" in L.vm: L("s_waitcnt vmcnt(%d)" % L.vmn("cs"))
                L("v_add_f32 v60, v60, v62\nv_add_f32 v61, v61, v63\nv_add_f32 v64, v64, v66\nv_add_f32 v65, v65, v67\nv_add_f32 v60, v60, v64\nv_add_f32 v61, v61, v65")
                L("v_cmp_gt_u32 vcc, %d, v1\nv_add_u32 v68, %d, v68\ns_nop 0\nv_cndmask_b32 v60, 0, v60, vcc\nv_cndmask_b32 v61, 0, v61, vcc" % (54*16, L_CS))
                L("ds_write_b64 v68, v[60:61]")
            L("s_waitcnt vmcnt(%d) lgkmcnt(0)\ns_barrier" % L.vmn(*s.need(bi)))
        if first:
            L("s_mov_b32 s46, 0x%x\nv_mov_b32 v4, 0" % (WS_FLAG + F_P4*16*256))
            vpoll(L, "wo", WS, "s46", 4, 5, 18)
            first(plan.get(8, []))
        L("s_barrier")
        if first: first(plan.get(9, []))
HD = 2
def attn(C, o, diag, first_sig):
    ld = o.get("ld", ""); stf = o.get("st", ""); bars = BARS
    ACC, HX, HY, BF, AW = 16, 72, 76, 80, 160
    CSA, CSV, MV, RV, MR = 208, 232, 4, 208, 240
    vW0, vW1, vH, vX0, vX1, vY0, vY1 = 1, 247, 248, 249, 250, 251, 252
    attn_coords(C, o)
    C("s_lshl_b32 s30, s23, 3\ns_lshl_b32 s31, s%d, 1\ns_add_u32 s31, s30, s31" % sW)
    C("s_mul_i32 s29, s31, 18432\ns_add_u32 s29, s29, s%d\ns_add_u32 s35, s29, 0x%x\ns_add_u32 s29, s29, 0x%x" % (sLB, WS_O, WS_XA))
    C("s_max_u32 s30, s30, 1\ns_sub_u32 s30, s30, 1\ns_lshl_b32 s30, s30, 10\ns_add_u32 s30, s30, s%d\ns_add_u32 s30, s30, 0x%x" % (sLB, WS_STA))
    C("s_lshl_b32 s32, s31, 10\ns_add_u32 s32, s32, s%d\ns_add_u32 s32, s32, 0x%x" % (sLB, WS_STA))
    C(vR(2)); C(vQ(3))
    C("s_lshl_b32 s33, s%d, 2\ns_lshr_b32 s33, 0x3362, s33\ns_and_b32 s33, s33, 15\ns_min_u32 s34, s%d, 1\ns_add_u32 s34, s34, 4" % (sW, sW))
    C("s_lshl_b32 s36, s33, 10\ns_lshl_b32 s37, s34, 10")
    C("v_add_u32 v%d, 64512, v1\nv_add_u32 v%d, %d, v1" % (vW1, vH, L_HALO))
    C("v_add_u32 v%d, s36, v1\nv_add_u32 v%d, s36, v%d\nv_add_u32 v%d, s37, v1\nv_add_u32 v%d, s37, v%d" % (vX0, vX1, vW1, vY0, vY1, vW1))
    C("v_add_u32 v253, 18432, v1\nv_lshrrev_b32 v0, 1, v1")
    for i in range(5): C("s_add_u32 s%d, s29, %d" % (38+i, 4096*i))
    C("s_max_u32 s44, s23, 1\ns_sub_u32 s44, s44, 1")
    flag_addr(C, POL, F_P5, 23, back=1); flag_addr(C, POL2, F_P5, 44, back=1); flag_addr(C, 44, F_P1, 24, back="prep")
    def sig():
        C("s_cmp_eq_u32 s%d, 0\ns_cbranch_scc1 L_d1_first" % sLAY)
        ssignal(C, SIG)
        t = Stream(); t.lab("L_d1_first"); first_sig(t); t("s_branch L_ns_d1")
        C.tail0 = t.L
    edge(C, "d1", [POL, POL2, (44, 0, 108)], o, diag, mid=lambda: C("s_barrier"), sig=sig)
    C("s_barrier")
    stamp(C, diag, "p1Y")
    win = o.get("a_win", 6); assert win <= 6
    def aload(c):
        return [("buffer_load_dwordx4 %s, v%d, %s, s%d offen offset:%d %s" % (vr(AW + (c % 6)*8 + 4*a), 253 if a else 1, WS, 38 + c//4, (c % 4)*1024, ld), ("a", c)) for a in range(2)]
    def hreads(c, b):
        hi = c >= 9; off = (c - 9*hi)*7168
        return ["ds_read_b128 %s, v%d offset:%d" % (vr(b), vH, c*1024), "ds_read_b128 %s, v%d offset:%d" % (vr(b+4), vX1 if hi else vX0, off),
                "ds_read_b128 %s, v%d offset:%d" % (vr(b+8), vY1 if hi else vY0, off)]
    def reads(c):
        b = BF + (c % 2)*40; hi = c >= 9; off = (c - 9*hi)*7168
        return ["ds_read_b128 %s, v%d offset:%d" % (vr(b+4*t), vW1 if hi else vW0, off + 1024*t) for t in range(7)] + (hreads(c - HD, b+28) if c >= HD else [])
    nxt_a = o.get("a_pre", 4)
    for c in range(nxt_a):
        for s, t in aload(c): C(s); C.issue(t)
    C("s_barrier")
    stamp(C, diag, "p1B0")
    for s in reads(0): C(s)
    for tl in range(3):
        for e in range(2): C("buffer_load_dwordx2 %s, v0, %s, s%d offen offset:%d %s" % (vr(4+4*tl+2*e, 2), WS, 32 if tl else 30, 1024*(tl//2) + 512*e, ld)); C.issue("st")
    flag_addr(C, SIG, F_P1, 23)
    acc = lambda a, t: ACC + (a*7 + t)*4
    F = Filler()
    F.add(row_stats([4, 8, 12], [MR, MR+2, MR+4], None))
    F.add("v_lshlrev_b32 v255, 4, v3\nv_add_u32 v236, %d, v255\ns_lshl_b32 s36, s33, 6\nv_add_u32 v237, s36, v236" % L_CS)
    F.add("v_lshlrev_b32 v254, 2, v2\nv_add_u32 v238, %d, v254\ns_lshl_b32 s37, s34, 6\nv_add_u32 v239, s37, v238" % L_CS)
    F.add("s_mul_i32 s36, s%d, 3072\ns_add_u32 s36, s36, %d\nv_add_u32 v254, s36, v254\nv_add_u32 v255, s36, v255" % (sW, L_EX + 4096))
    csq = {0: 0, 1: 1, 2: 2, 3: 3, 6: 4}
    pre = {7: ["ds_write2_b32 v254, v%d, v%d offset0:%d offset1:%d" % (MR+2*tl, MR+2*tl+1, 32*tl, 32*tl+16) for tl in range(3)],
           8: ["ds_read_b128 %s, v236 offset:%d" % (vr(CSA + 4*i), t*64) for t, i in csq.items()] + ["ds_read_b128 %s, v237" % vr(CSA + 20)],
           9: ["ds_read2_b32 %s, v238 offset0:64 offset1:80" % vr(CSV, 2), "ds_read_b32 v%d, v239" % (CSV+2)] + ["ds_read_b128 %s, v255 offset:%d" % (vr(MV + 4*tl), 128*tl) for tl in range(3)],
           16: ["ds_read_b128 %s, v255 offset:%d" % (vr(RV + 4*tl), 128*tl + 64) for tl in range(3)]}
    tiles = [(acc(a, t), t, a+1) for t in range(7) for a in range(2)] + [(HX, 'X', 0), (HY, 'Y', 0)]
    def mfix(p, j):
        a_, t, tl = tiles[p]
        if t in (4, 5, 'Y'): return "v_fma_f32 v%d, -v%d, v%d, v%d" % (a_+j, MV+4*tl+j, CSV + (2 if t == 'Y' else t-4), a_+j)
        return "v_fma_f32 v%d, -v%d, v%d, v%d" % (a_+j, MR+2*tl, CSA + 4*(5 if t == 'X' else csq[t]) + j, a_+j)
    C0 = 11
    KOP, VOP, ID, QOP, HT, T = 160, 178, 234, 104, 80, 220
    G = Filler()
    G.add("v_and_b32 v4, 1, v2\nv_lshl_add_u32 v5, v3, 2, v4\nv_add_u32 v6, 2, v5")
    G.add("v_cmp_eq_u32 s[40:41], 1, v4\nv_cmp_le_u32 s[42:43], v5, v2\nv_cmp_le_u32 s[44:45], v6, v2")
    G.add("v_mov_b32 v4, 0x0c0c0100\nv_mov_b32 v5, 0x01000c0c\nv_mov_b32 v6, 0x0c0c0302\nv_mov_b32 v7, 0x03020c0c\nv_mov_b32 v8, 0x0c0c0c0c")
    G.add("v_cndmask_b32 v4, v4, v5, s[40:41]\nv_cndmask_b32 v6, v6, v7, s[40:41]")
    G.add("v_cndmask_b32 v12, v4, v8, s[42:43]\nv_cndmask_b32 v13, v6, v8, s[44:45]\nv_cndmask_b32 v14, v8, v4, s[42:43]\nv_cndmask_b32 v15, v8, v6, s[44:45]")
    G.add("s_cmp_eq_u32 s31, 0\ns_cselect_b64 s[48:49], s[42:43], -1\ns_cselect_b64 s[38:39], s[44:45], -1")
    G.add("s_mul_i32 s36, s%d, 3072\ns_add_u32 s36, s36, %d\nv_add_u32 v9, s36, v0" % (sW, L_EX))
    G.add("s_lshl_b32 s37, s%d, 9\ns_add_u32 s37, s37, %d\nv_add_u32 v10, s37, v0" % (sW, L_EX))
    G.add("v_lshlrev_b32 v4, 2, v3\nv_sub_u32 v4, v2, v4\nv_lshlrev_b32 v5, 4, v4\nv_lshrrev_b32 v4, 1, v4\nv_mov_b32 v6, 0x3f80\nv_lshlrev_b32 v5, v5, v6")
    G.add("v_cmp_eq_u32 vcc, 0, v4\nv_cmp_eq_u32 s[46:47], 1, v4\ns_lshl_b32 s36, s24, 10\nv_add_u32 v4, s36, v1")
    G.add("v_cndmask_b32 v%d, 0, v5, vcc\nv_cndmask_b32 v%d, 0, v5, s[46:47]" % (ID, ID+1))
    G.add("v_add_u32 v5, 18432, v4\ns_lshl_b32 s36, s24, 7\ns_add_u32 s36, s36, 16384")
    G.add("v_cmp_eq_u32 vcc, 2, v3\nv_lshl_add_u32 v6, v2, 3, s36\nv_bfrev_b32 v7, 1\nv_cndmask_b32 v6, v7, v6, vcc\nv_add_u32 v7, 18432, v6")
    G.add("v_mov_b32 v8, 0x%x\ns_mov_b32 s33, 0x%x" % (f2u(-1e30), f2u(18**-0.5 * 1.4426950408889634)))
    for i in range(4): G.add("v_mov_b32 v%d, 0x3f803f80" % (236+i))
    Z = Filler()
    for a in range(2):
        for i in range(2, 6): Z.add("v_mov_b32 v%d, 0" % (QOP + 8*a + i))
    for c in range(18):
        b = BF + (c % 2)*40; x = lambda a: AW + (c % 6)*8 + 4*a
        z = 'z' if c == 0 else None
        mm = [mfma(acc(a, t), x(a), b+4*t, z) if t in (4, 5) else mfma(acc(a, t), b+4*t, x(a), z) for t in range(7) for a in range(2)]
        if c >= HD: z = 'z' if c == HD else None; mm += [mfma(HX, b+32, b+28, z), mfma(HY, b+28, b+36, z)]
        n = C.vmn(("a", c)) if c != 2 else C.vmn(("a", c), "st")
        ex = [(-1, "s_waitcnt vmcnt(%d) lgkmcnt(%d)" % (n, len(reads(c)) - 4 + len(pre.get(c-1, []))))]
        if c + 1 in bars: ex.append((-1, "s_barrier"))
        rd = reads(c+1) if c < 17 else sum([hreads(18 - HD + i, HT + 12*i) for i in range(HD)], [])
        for i, s in enumerate(rd): ex.append((i, s))
        ex.append((7, "s_waitcnt lgkmcnt(%d)" % min(8, len(rd))))
        pos = 10
        while nxt_a < 18 and nxt_a - win < c and pos < len(mm) - 1:
            for s, t in aload(nxt_a): ex.append((pos, s)); C.issue(t); pos += 1
            nxt_a += 1
        if 2 <= c <= 7: ex += F.take(o.get('fsl', [1, 2, 3, 4, 5, 6, 8, 9, 12, 13, 14, 14, 15]))
        if c == 7: assert not F.q and max(p for p, _ in ex[-8:]) <= 12
        for i, s in enumerate(pre.get(c, [])): ex.append((16 - len(pre[c]) + i, s))
        if C0 <= c < C0 + 4: ex += [(p, mfix((p + 8) % 16, c - C0)) for p in range(16)]
        if c >= C0 + 4: ex += G.take([1, 2, 3, 4, 5, 6, 8, 9, 10, 10, 11, 11, 12, 12, 13, 13, 14, 14, 15, 15])
        if c == 17: ex += Z.take([6, 7, 8, 9, 12, 13, 14, 15])
        for s in interleave(mm, ex): C(s)
        stamp(C, diag, "k%d" % c)
    assert not F.q and not G.q and not Z.q and nxt_a == 18
    C("s_waitcnt lgkmcnt(0)")
    for i in range(HD): C(mfma(HX, HT+12*i+4, HT+12*i)); C(mfma(HY, HT+12*i, HT+12*i+8))
    stamp(C, diag, "p1gemm")
    def conv(items):
        for a_, kd, tl, d in items:
            for p in range(2):
                if kd == 'q': C("v_pk_mul_f32 %s, %s, %s op_sel:[0,1] op_sel_hi:[1,1]" % (vr(a_+2*p, 2), vr(a_+2*p, 2), vr(MR+2*tl, 2)))
                else: C("v_pk_mul_f32 %s, %s, %s" % (vr(a_+2*p, 2), vr(a_+2*p, 2), vr(RV+4*tl+2*p, 2)))
        for a_, kd, tl, d in items:
            for p in range(2): C("v_cvt_pk_bf16_f32 v%d, v%d, v%d" % (d+p, a_+2*p, a_+2*p+1))
    krec = lambda tl: KOP + 6*tl
    def kv_items(a):
        tl = a + 1
        return [(acc(a, 2), 'q', tl, krec(tl)), (acc(a, 3), 'q', tl, krec(tl)+4), (acc(a, 4), 'v', tl, VOP + 2*tl), (acc(a, 5), 'v', tl, VOP + 6 + 2*tl), (acc(a, 6), 'q', tl, krec(tl)+2)]
    conv(kv_items(1) + [(HX, 'q', 0, T), (HY, 'v', 0, T+2)])
    C("s_cmp_eq_u32 s%d, 3\ns_cbranch_scc1 L_a_nw" % sW)
    C("ds_write2st64_b64 v9, %s, %s offset0:6 offset1:7" % (vr(krec(2), 2), vr(krec(2)+2, 2)))
    C("ds_write2st64_b64 v9, %s, %s offset0:8 offset1:9" % (vr(krec(2)+4, 2), vr(VOP+4, 2)))
    C("ds_write_b64 v9, %s offset:%d" % (vr(VOP+10, 2), 3072 + 2048))
    C("ds_write2st64_b64 v10, %s, %s offset0:0 offset1:3" % (vr(T, 2), vr(T+2, 2)))
    C.lab("L_a_nw")
    conv(kv_items(0))
    m16 = lambda d, a_, b_: "v_mfma_f32_16x16x16_bf16 %s, %s, %s, 0" % (vr(d), vr(a_, 2), vr(b_, 2))
    TV = 120
    C("s_waitcnt lgkmcnt(0)\ns_barrier")
    stamp(C, diag, "p1E")
    C("ds_read2st64_b64 %s, v9 offset0:0 offset1:1" % vr(krec(0)))
    for i, d in ((2, krec(0)+4), (3, VOP), (4, VOP+6)): C("ds_read_b64 %s, v9 offset:%d" % (vr(d, 2), 512*i))
    for tl in (2, 1): C(m16(TV + 4*tl, krec(tl)+2, ID))
    conv([(acc(a, h), 'q', a+1, QOP + 8*a + 6*h) for a in (1, 0) for h in range(2)])
    for a in (1, 0):
        for h in range(2): C("v_permlane16_swap_b32 v%d, v%d" % (QOP + 8*a + 2 + 3*h, krec(a+1) + 2 + h))
    C("s_waitcnt lgkmcnt(0)")
    C(m16(TV, krec(0)+2, ID))
    cmb = [(1, 0), (1, 1), (0, 0), (0, 1)]
    S = lambda i, cur: ACC + (i*2 + cur)*4
    for i, (a, h) in enumerate(cmb):
        C(mfma(S(i, 1), krec(a+1) + 2*h, QOP + 8*a + 4*h, 'z')); C(mfma(S(i, 0), krec(a) + 2*h, QOP + 8*a + 4*h, 'z'))
    for tl in (2, 1, 0):
        for p in range(2): C("v_cvt_pk_bf16_f32 v%d, v%d, v%d" % (VOP + 12 + 2*tl + p, TV+4*tl+2*p, TV+4*tl+2*p+1))
    VAL, MX, SM, P = 48, 56, 80, 64
    for i in range(4):
        for jj in range(2):
            C("v_cndmask_b32 v%d, v%d, v%d, s[40:41]" % (S(i, 1)+2*jj, S(i, 1)+2*jj, S(i, 1)+2*jj+1))
            C("v_cndmask_b32 v%d, v%d, v%d, s[40:41]" % (S(i, 0)+2*jj, S(i, 0)+2*jj, S(i, 0)+2*jj+1))
            C("v_cndmask_b32 v%d, v%d, v%d, s[%d:%d]" % (VAL+2*i+jj, S(i, 0)+2*jj, S(i, 1)+2*jj, 42+2*jj, 43+2*jj))
            if cmb[i][0] == 0: C("v_cndmask_b32 v%d, v8, v%d, s[%d:%d]" % (VAL+2*i+jj, VAL+2*i+jj, (48, 38)[jj], (49, 39)[jj]))
        C("v_max_f32 v%d, v%d, v%d" % (MX+i, VAL+2*i, VAL+2*i+1))
        if i == 2: C("v_permlane32_swap_b32 v%d, v%d\nv_max_f32 v%d, v%d, v%d" % (MX, MX+1, MX, MX, MX+1))
    C("s_nop 1\nv_permlane32_swap_b32 v%d, v%d\nv_max_f32 v%d, v%d, v%d\ns_nop 1" % (MX+2, MX+3, MX+2, MX+2, MX+3))
    C("v_permlane16_swap_b32 v%d, v%d\nv_max_f32 v%d, v%d, v%d" % (MX, MX+2, MX+1, MX, MX+2))
    C("v_mul_f32 v%d, s33, v%d\nv_mul_f32 v%d, s33, v%d\ns_nop 1\nv_permlane16_swap_b32 v%d, v%d" % (MX, MX+1, MX+2, MX+1, MX, MX+2))
    C("v_mov_b32 v%d, v%d\nv_mov_b32 v%d, v%d\ns_nop 0\nv_permlane32_swap_b32 v%d, v%d\nv_permlane32_swap_b32 v%d, v%d" % (MX+1, MX, MX+3, MX+2, MX, MX+1, MX+2, MX+3))
    for i in range(4):
        for jj in range(2): C("v_fma_f32 v%d, v%d, s33, -v%d" % (VAL+2*i+jj, VAL+2*i+jj, MX+i))
    for i in range(8): C("v_exp_f32 v%d, v%d" % (VAL+i, VAL+i))
    for i in range(4): C("v_cvt_pk_bf16_f32 v%d, v%d, v%d" % (MX+i, VAL+2*i, VAL+2*i+1))
    for i in range(4):
        for e in range(4): C("v_perm_b32 v%d, v%d, v%d, v%d" % (P+4*i+e, MX+i, MX+i, 12+e))
    for i in range(4): C(mfma(SM+4*i, 236, P+4*i, 'z'))
    for i, (a, h) in enumerate(cmb):
        C(mfma(S(i, 0), VOP + 6*h + 2*a, P+4*i, 'z')); C(mfma(S(i, 1), VOP + 12 + 2*a, P+4*i, 'z'))
    for i in range(4): C("v_rcp_f32 v%d, v%d" % (SM+4*i, SM+4*i))
    for ii, a in enumerate((1, 0)):
        d = T + 8*ii
        for h in range(2):
            i = 2*ii + h
            for r_ in (S(i, 0), S(i, 0)+2, S(i, 1)+2*h): C("v_pk_mul_f32 %s, %s, %s op_sel_hi:[1,0]" % (vr(r_, 2), vr(r_, 2), vr(SM+4*i, 2)))
        for h in range(2):
            i = 2*ii + h
            for dd, r_ in ((d+2*h, S(i, 0)), (d+2*h+1, S(i, 0)+2), (d+4+h, S(i, 1)+2*h)): C("v_cvt_pk_bf16_f32 v%d, v%d, v%d" % (dd, r_, r_+1))
        C("buffer_store_dwordx4 %s, v%d, %s, s35 offen %s" % (vr(d), 4+a, WS, stf))
        C("buffer_store_dwordx2 %s, v%d, %s, s35 offen %s" % (vr(d+4, 2), 6+a, WS, stf))
    stamp(C, diag, "p1end")
```

```python
from ph_sync import *
from ph_attn import row_stats
import math
L_CS3, L_SC3 = 159744, TOP
def gmlp_coords(k, o):
    k("s_and_b32 s25, s2, 7\ns_lshr_b32 s26, s2, 3")
    a, b = (23, 24) if o.get("gmap", 0) == 0 else (24, 23)
    k("s_and_b32 s%d, s25, 1\ns_lshl_b32 s%d, s%d, 3\ns_and_b32 s27, s26, 7\ns_add_u32 s%d, s%d, s27" % (a, a, a, a, a))
    k("s_lshr_b32 s%d, s25, 1\ns_lshl_b32 s%d, s%d, 2\ns_lshr_b32 s27, s26, 3\ns_add_u32 s%d, s%d, s27" % (b, b, b, b, b))
    k("s_add_u32 s28, s23, s24\ns_and_b32 s28, s28, 3")
class P3L:
    def __init__(s, L, o): s.L = L; s.o = o
    def col(s, sg, sn, base, add, fl):
        L = s.L; sl = sg % 4
        L("s_mul_i32 s50, s%d, 18432\ns_add_u32 s50, s50, s%d" % (sn, base))
        if add: L("s_add_u32 s50, s50, %d" % add)
        if sg % 2 == 1:
            L("s_cmp_ge_u32 s%d, 2\ns_cselect_b32 s52, s50, s53\ns_add_u32 m0, s31, %d\ns_add_u32 s52, s52, s49" % (sW, (sl-1)*SLOT))
            L("buffer_load_dwordx4 v1, %s, s52 offen %s lds" % (WS, fl)); L.issue(("f", sg))
        L("s_add_u32 m0, s30, %d\ns_mov_b32 s53, s50" % (sl*SLOT))
        for j in range(4): L("buffer_load_dwordx4 v1, %s, s50 offen offset:%d %s lds" % (WS, 1024*j, fl)); L.issue(("c", sg))
    def col3(s, sg):
        s.L("s_mov_b32 s48, %d" % s.ks(sg)); s.col(sg, 48, 34, (sg // 9)*9*18432, "")
    def ks(s, sg):
        return sg if sg < 9 else ((sg - 4) % 9 if s.o.get("xkeep", 1) else sg - 9)
    def xsave(s, m):
        if s.o.get("xkeep", 1) == 2 and m < 5:
            for j in range(4): s.L("ds_read_b128 %s, v%d offset:%d" % (vr(100 + 16*m + 4*j), 6 + (m % 4)//2, (m % 2)*SLOT + 1024*j))
    def row3(s, sg):
        L = s.L
        xk = s.o.get("xkeep", 1)
        if xk and 9 <= sg < 13: return
        if xk == 2 and sg >= 13:
            for j in range(4): L("ds_write_b128 v%d, %s offset:%d" % (6 + (sg % 4)//2, vr(100 + 16*(sg-13) + 4*j), (sg % 2)*SLOT + 1024*j))
            return
        L("s_add_u32 m0, s30, %d\ns_add_u32 s51, s35, %d" % (ROWH + (sg % 4)*SLOT, 2048*s.ks(sg)))
        for j in range(4): L("buffer_load_dwordx4 v%d, %s, s51 offen offset:%d %s lds" % (1 + j//2, WS, 1024*j, s.o.get("ld", ""))); L.issue(("r", sg))
    def col4(s, sg): s.col(sg, 44 + (sg - 18) % 4, 36, 0, s.o.get("ld", ""))
    def row4(s, sg):
        L = s.L
        L("s_add_u32 m0, s30, %d\ns_lshl_b32 s51, s%d, 7" % (ROWH + (sg % 4)*SLOT, 44 + (sg - 18) % 4))
        for j in range(4): L("buffer_load_dwordx4 v%d, %s, s51 offen offset:%d %s lds" % (8+j, WSP, 1024*j, s.o.get("ldsp", ""))); L.issue(("r", sg))
    def adv4(s, sg):
        sn = 44 + (sg - 18) % 4
        s.L("s_add_u32 s%d, s%d, 4\ns_and_b32 s%d, s%d, %d" % (sn, sn, sn, sn, s.o.get("p4mask", 31)))
    def pre(s):
        L = s.L; o = s.o
        gmlp_coords(L, o)
        L("s_lshl_b32 s30, s%d, 12" % sW)
        L("s_lshr_b32 s33, s%d, 1\ns_mul_i32 s31, s33, %d\ns_and_b32 s33, s%d, 1\ns_lshl_b32 s33, s33, 10\ns_add_u32 s33, s33, 16384\ns_add_u32 s31, s31, s33\ns_sub_u32 s49, s33, s30" % (sW, SLOT, sW))
        L("s_mul_i32 s34, s24, %d\ns_add_u32 s34, s34, s30\ns_add_u32 s34, s34, 0x%x" % (18*18432, WS_WI))
        L("s_lshl_b32 s35, s23, 3\ns_lshl_b32 s33, s%d, 1\ns_add_u32 s35, s35, s33\ns_mul_i32 s35, s35, 18432\ns_add_u32 s35, s35, s%d\ns_add_u32 s35, s35, 0x%x" % (sW, sLB, WS_XB))
        L("s_mul_i32 s36, s24, %d\ns_add_u32 s36, s36, s30\ns_add_u32 s36, s36, s%d\ns_add_u32 s36, s36, 0x%x" % (64*9216, sLB, WS_Z2))
        L("v_add_u32 v2, %d, v1\ns_add_u32 s33, s30, %d\nv_add_u32 v6, s33, v1\nv_add_u32 v7, %d, v6" % (18432 - 2048, ROWH, 2*SLOT))
        L("s_lshl_b32 s33, s23, 7\ns_lshl_b32 s37, s%d, 5\ns_add_u32 s33, s33, s37" % sW)
        L("v_lshrrev_b32 v8, 7, v1\nv_add_u32 v8, s33, v8\nv_lshlrev_b32 v8, 12, v8")
        L("v_lshrrev_b32 v9, 8, v1\nv_bfe_u32 v10, v1, 4, 3\nv_xor_b32 v9, v9, v10\nv_lshl_add_u32 v8, v9, 4, v8")
        L("v_xor_b32 v9, 64, v8\nv_add_u32 v9, %d, v9" % (8*4096 - 1024))
        L("v_add_u32 v10, %d, v8\nv_add_u32 v11, %d, v9" % (16*4096 - 2048, 16*4096 - 2048))
        for m in range(4): L("s_cmp_eq_u32 s28, %d\ns_cselect_b32 s%d, %d, %d" % (m, 44+m, m + 4*o.get("hoist4", 1), m))
        L("s_lshl_b32 s33, s%d, 4\ns_add_u32 s33, s33, s24" % sW)
        flag_addr(L, 54, F_Z2, 33)
        L("s_mov_b32 s33, 0x%x\nv_and_b32 v4, 0xf0, v1\nv_lshlrev_b32 v4, 4, v4" % (WS_FLAG + F_P2*16*256))
        vpoll(L, "wr", WS, "s33", 4, 5, 16)
        L("s_min_u32 s33, s%d, 2\ns_lshl_b32 s33, s33, 9\nv_lshrrev_b32 v4, 1, v1\nv_add_u32 v4, s33, v4\ns_lshl_b32 s51, s24, 12\ns_add_u32 s51, s51, 0x%x" % (sW, WS_CSI))
        for h in range(2): L("buffer_load_dwordx2 %s, v4, %s, s51 offen offset:%d" % (vr(60+2*h, 2), WS, 1152*h)); L.issue("cs")
        for sg in range(o.get("p3pre", 3)): s.col3(sg)
        L("s_waitcnt vmcnt(%d)\nv_add_u32 v4, %d, v4\nv_add_f32 v60, v60, v62\nv_add_f32 v61, v61, v63\nds_write_b64 v4, v[60:61]\ns_waitcnt lgkmcnt(0)" % (L.vmn("cs"), L_CS3))
    def main(s, diag, p5):
        L = s.L; o = s.o
        nd = lambda m: [("c", m), ("r", m), ("f", m | 1)]
        stamp(L, diag, "Lp3pre")
        L("s_barrier")
        for sg in range(o.get("p3pre", 3), 4): s.col3(sg)
        L("s_barrier")
        for sg in range(o.get("p3rows", 3)): s.row3(sg)
        L("s_waitcnt vmcnt(%d)\ns_barrier" % L.vmn(*nd(0)))
        for sg in range(o.get("p3rows", 3), 4): s.row3(sg)
        s.xsave(0)
        zb = o.get("zbar", 19); rows = [18, 19, 20]
        for m in range(1, 18):
            L("s_waitcnt vmcnt(%d) lgkmcnt(0)\ns_barrier" % L.vmn(*nd(m)))
            if m == zb: ssignal(L, 54)
            if m + 3 < 18: s.col3(m+3); s.row3(m+3); s.xsave(m)
            elif m >= zb or not o.get("row4_late", 1):
                while rows and rows[0] <= m + 3: s.row4(rows.pop(0))
            if m == o.get("warm_sp", 0):
                L("s_cmp_lg_u32 s%d, 0\ns_cbranch_scc1 L_g_nw\ns_lshl_b32 s33, s2, 15\ns_lshl_b32 s37, s%d, 13\ns_add_u32 s33, s33, s37\ns_add_u32 s37, s33, 4096" % (sLAY, sW))
                for j in range(8): L("buffer_load_dwordx4 %s, v1, %s, s%d offen offset:%d" % (vr(16+4*j), WSP, (33, 37)[j//4], (j % 4)*1024))
                L.lab("L_g_nw")
        if zb >= 18: L("s_barrier"); ssignal(L, 54)
        for sg in rows: s.row4(sg)
        p5.setup()
        spoll(L, "z2", [54], sleep=o.get("sleep", 2))
        stamp(L, diag, "Lz2ok")
        for sg in range(18, 21): s.col4(sg); s.adv4(sg)
        for m in range(18, 23):
            L("s_waitcnt vmcnt(%d)\ns_barrier" % L.vmn(*nd(m)))
            s.col4(m+3); s.row4(m+3); s.adv4(m+3)
        L("s_mov_b32 s41, 6")
        L.lab("L_g_ll")
        for m in range(23, 27):
            n = L.vmn(*nd(m)); assert n == (16 if m % 2 == 0 else 17)
            L("s_waitcnt vmcnt(%d)\ns_barrier" % n)
            i0 = len(L.L)
            s.col4(m+3); s.row4(m+3); s.adv4(m+3)
            x = o.get("p4exp")
            if x == "none": L.L[i0:] = [l for l in L.L[i0:] if "buffer_load" not in l]
            if x == "norow": L.L[i0:] = [l for l in L.L[i0:] if WSP not in l]
            if x == "reg": L.L[i0:] = [l.replace("dwordx4 v", "dwordx4 v[100:103], v").replace(" lds", "") for l in L.L[i0:]]
        L("s_sub_u32 s41, s41, 1\ns_cmp_lg_u32 s41, 0\ns_cbranch_scc1 L_g_ll")
        L.nbar += 20
        p5.at(46)
        NT = max(1, o.get("tail", 1))
        for m in range(27, 31 - NT):
            L("s_waitcnt vmcnt(%d)\ns_barrier" % L.vmn(*(nd(m) if m < 30 - NT else nd(29))))
            p5.at(m + 20)
def gmlp(C, o, diag=None):
    ld = o.get("ld", ""); stf = o.get("st", "")
    A2, A1, FR, MR = 16, 88, 160, 248
    vZ1, vR0, vR1 = 2, 3, 0
    gmlp_coords(C, o)
    C("s_lshl_b32 s30, s%d, 12\ns_lshl_b32 s31, s23, 3\ns_lshl_b32 s33, s%d, 1\ns_add_u32 s31, s31, s33" % (sW, sW))
    C("s_lshl_b32 s32, s31, 10\ns_add_u32 s32, s32, s%d\ns_add_u32 s32, s32, 0x%x" % (sLB, WS_STB))
    C("v_add_u32 v%d, %d, v1\ns_add_u32 s33, s30, %d\nv_add_u32 v%d, s33, v1\nv_add_u32 v%d, s33, v%d" % (vZ1, 2*SLOT, ROWH, vR0, vR1, vZ1))
    C("s_lshr_b32 s34, s31, 1")
    C("s_lshl_b32 s35, s34, 12\ns_add_u32 s35, s35, s%d\ns_add_u32 s35, s35, 0x%x" % (sLB, WS_ZS))
    C("s_lshl_b32 s36, s24, 8\ns_add_u32 s36, s36, s35")
    C("s_lshl_b32 s38, s24, 6\ns_add_u32 s38, s38, s34\ns_mul_i32 s38, s38, 9216\ns_add_u32 s38, s38, s%d\ns_add_u32 s38, s38, 0x%x" % (sLB, WS_Z2))
    C("s_add_u32 s39, s38, 4096\ns_add_u32 s46, s38, 8192")
    c0 = -2*math.sqrt(2/math.pi)*math.log2(math.e)
    C("s_mov_b32 s40, 0x%x\ns_mov_b32 s42, 0x%x\ns_mov_b32 s44, 0x%x\ns_mov_b32 s45, 0x%x" % (f2u(c0), f2u(0.044715), f2u(1/2304), f2u(1e-5)))
    C("v_lshrrev_b32 v4, 1, v1")
    flag_addr(C, POL, F_P2, 23)
    edge(C, "d3", [POL], o, diag)
    C("s_barrier")
    stamp(C, diag, "p3Y")
    for i in range(4): C("buffer_load_dwordx2 %s, v4, %s, s32 offen offset:%d %s" % (vr(8+2*i, 2), WS, 512*i, ld))
    flag_addr(C, SIG, F_P4, 23)
    def reads(sg, kk):
        sl = sg % 4; b = FR + kk*44; r_ = []
        for tt in range(2):
            if sg < 18: r_.append("ds_read_b128 %s, v%d offset:%d" % (vr(b+4*tt), vR0 if sl < 2 else vR1, (sl % 2)*SLOT + (2*tt + kk)*1024))
            else: r_.append("ds_read_b128 %s, v%d offset:%d" % (vr(b+4*tt), 3 + kk + (sl & 2), (sl % 2)*SLOT + tt*2048))
        for ft in range(9):
            r_.append("ds_read_b128 %s, v%d offset:%d" % (vr(b+8+4*ft), 1 if sl < 2 else vZ1, (sl % 2)*SLOT + (kk*9+ft)*1024))
        return r_
    def mfmas(sg, kk):
        b = FR + kk*44; r_ = []
        z = 'z' if (sg in (0, 9) and kk == 0) else None
        for ft in range(9):
            for tt in range(2):
                i = (ft*2+tt)*4
                if sg < 9: r_.append(mfma(A2+i, b+4*tt, b+8+4*ft, z))
                elif sg < 18: r_.append(mfma(A1+i, b+8+4*ft, b+4*tt, z))
                else: r_.append(mfma(A2+i, b+8+4*ft, b+4*tt))
        return r_
    late = [0]
    def stage(sg, nxt=True, x0=(), x1=(), p1=(), pre=()):
        ex = [(-1, "s_waitcnt lgkmcnt(%d)" % (5 + late[0]))]; late[0] = len(p1)
        for i, r_ in enumerate(reads(sg, 1)): ex.append((i, r_))
        ex.append((7, "s_waitcnt lgkmcnt(8)"))
        for s in interleave(mfmas(sg, 0), ex + list(x0)): C(s)
        ex = [(-1, "s_waitcnt lgkmcnt(0)")] + [(-1, s) for s in pre]
        if nxt:
            ex.append((-1, "s_barrier"))
            for i, r_ in enumerate(reads(sg+1, 0) + list(p1)): ex.append((i, r_))
        else: ex += [(i, s) for i, s in enumerate(p1)]; late[0] = 0
        for s in interleave(mfmas(sg, 1), ex + list(x1)): C(s)
        stamp(C, diag, "s%d" % sg)
    LITE = [9, 10, 11, 12, 13, 14, 15, 16, 17, 17]
    DENSE = {22: [1, 2, 3, 4, 5, 6, 8, 9, 10, 11, 11, 12, 12, 13, 13, 14, 14, 15, 15, 16, 16, 17],
             17: [1, 2, 3, 4, 5, 6, 8, 9, 10, 11, 12, 13, 14, 15, 16, 16, 17],
             14: [11, 11, 12, 12, 13, 13, 14, 14, 15, 15, 16, 16, 17, 17],
             7: [11, 12, 13, 14, 15, 16, 17], 0: []}[o.get("dense", 22)]
    C("s_barrier")
    stamp(C, diag, "p3B0")
    for s in reads(0, 0): C(s)
    M8, R8, C0, C1, SD, CS, SS = A1, A1+8, A1+16, A1+24, A1+32, A1+40, FR+44
    TP = FR + 60
    F = Filler()
    F.add([vQ(5), vR(6), "v_lshlrev_b32 v7, 2, v6", "s_lshl_b32 s33, s%d, 8" % sW, "s_add_u32 s33, s33, %d" % L_SC3, "v_add_u32 v4, s33, v7",
           "v_lshl_add_u32 v252, v5, 4, s33", "v_add_u32 v7, %d, v7" % L_CS3, "s_waitcnt vmcnt(0)"])
    F.add(row_stats([8, 12], [MR, MR+2], None))
    G = Filler()
    for i in range(8): G.add("v_rcp_f32 v%d, v%d\nv_mul_f32 v%d, s40, v%d\nv_mul_f32 v%d, v%d, v%d" % (SD+i, R8+i, C0+i, R8+i, C1+i, R8+i, R8+i))
    for i in range(8): G.add("v_mul_f32 v%d, s42, v%d" % (C1+i, C1+i))
    for i in range(8): G.add("v_mul_f32 v%d, v%d, v%d" % (C1+i, C1+i, C0+i))
    G.add("v_lshrrev_b32 v8, 2, v6\nv_lshlrev_b32 v8, 4, v8\nv_lshl_add_u32 v8, v5, 6, v8\nv_and_b32 v9, 3, v6\nv_cmp_eq_u32 vcc, 0, v9\nv_bfrev_b32 v10, 1")
    G.add("v_lshlrev_b32 v9, 4, v9\nv_cndmask_b32 v8, v10, v8, vcc\nv_lshl_add_u32 v9, v5, 6, v9\nv_lshrrev_b32 v255, 2, v6\nv_lshl_add_u32 v255, v255, 8, v9")
    mfix = lambda j: [(p, "v_fma_f32 v%d, -v%d, v%d, v%d" % (A2 + 4*t + j, M8 + 4*(t % 2) + j, CS + t//2, A2 + 4*t + j)) for p in range(18) for t in [(p + 9) % 18]]
    for sg in range(9):
        x0 = x1 = p1 = ()
        if sg == 0: x1 = F.take(LITE)
        elif sg <= 2: x0 = F.take(LITE); x1 = F.take(LITE)
        if sg == 1: p1 = ["ds_read2_b32 %s, v7 offset0:%d offset1:%d" % (vr(CS+2*i, 2), 32*i, 32*i+16) for i in range(5)]
        if sg == 3:
            assert not F.q
            p1 = ["ds_write2_b32 v4, v%d, v%d offset0:%d offset1:%d" % (MR+2*a, MR+2*a+1, 16*a, 32+16*a) for a in range(2)]
            p1 += ["ds_read_b128 %s, v252 offset:%d" % (vr(M8+4*i), 64*i) for i in range(4)]
        if 4 <= sg <= 6: x0 = G.take(LITE); x1 = G.take(LITE)
        if sg == 6: x1 = x1 + mfix(0)
        if sg == 7: x0 = mfix(1); x1 = mfix(2)
        if sg == 8: x0 = mfix(3)
        stage(sg, x0=x0, x1=x1, p1=p1)
    assert not F.q and not G.q
    stamp(C, diag, "pass1")
    p2 = lambda a: vr(a, 2)
    for ft in range(9):
        x = [A2 + ft*8 + 2*i for i in range(4)]; t = [TP + (ft % 2)*8 + 2*i for i in range(4)]
        for i in range(4): C("v_pk_mul_f32 %s, %s, %s" % (p2(t[i]), p2(x[i]), p2(x[i])))
        for i in range(4): C("v_pk_fma_f32 %s, %s, %s, %s" % (p2(t[i]), p2(t[i]), p2(C1+2*i), p2(C0+2*i)))
        for i in range(4): C("v_pk_mul_f32 %s, %s, %s" % (p2(t[i]), p2(t[i]), p2(x[i])))
        for i in range(8): C("v_exp_f32 v%d, v%d" % (t[0]+i, t[0]+i))
        for i in range(4): C("v_pk_fma_f32 %s, %s, %s, %s" % (p2(t[i]), p2(t[i]), p2(SD+2*i), p2(SD+2*i)))
        for i in range(8): C("v_rcp_f32 v%d, v%d" % (t[0]+i, t[0]+i))
        for i in range(4): C("v_pk_mul_f32 %s, %s, %s" % (p2(x[i]), p2(x[i]), p2(t[i])))
        for i in range(4):
            if ft == 0: C("v_pk_mul_f32 %s, %s, %s" % (p2(SS+4*i+2), p2(x[i]), p2(x[i])))
            else:
                C("v_pk_add_f32 %s, %s, %s" % (p2(SS+4*i), p2(SS+4*i) if ft > 1 else p2(A2+2*i), p2(x[i])))
                C("v_pk_fma_f32 %s, %s, %s, %s" % (p2(SS+4*i+2), p2(x[i]), p2(x[i]), p2(SS+4*i+2)))
    dpp = lambda d, s, ctl, bm: "v_add_f32_dpp v%d, v%d, v%d %s row_mask:0xf bank_mask:0x%x" % (d, s, s, ctl, bm)
    for i in range(8): C(dpp(SS+i, SS+i, "row_mirror", 0x3))
    for i in range(8): C(dpp(SS+i, SS+8+i, "row_mirror", 0xc))
    for i in range(4): C(dpp(SS+i, SS+i, "row_half_mirror", 0x5))
    for i in range(4): C(dpp(SS+i, SS+4+i, "row_half_mirror", 0xa))
    for i in range(4): C(dpp(SS+i, SS+i, "quad_perm:[1,0,3,2]", 0xf))
    for i in range(4): C(dpp((12, 14, 13, 15)[i], SS+i, "quad_perm:[2,3,0,1]", 0xf))
    C("buffer_store_dwordx4 v[12:15], v8, %s, s36 offen sc1" % WS)
    stamp(C, diag, "z2gelu")
    Q = [4, 8, 12, 252]
    slow = Stream()
    slow.lab("L_g_slow")
    slow("s_mov_b32 s60, %d" % SPIN)
    slow.lab("L_g_sl")
    slow("s_sleep 2\nv_lshrrev_b32 v4, 8, v1\nv_bfe_u32 v5, v1, 6, 2\nv_bfe_u32 v6, v1, 4, 2\nv_lshlrev_b32 v255, 6, v4\nv_lshl_add_u32 v255, v5, 8, v255\nv_lshl_add_u32 v255, v6, 4, v255")
    recl = ["buffer_load_dwordx4 %s, v255, %s, s35 offen offset:%d sc1" % (vr(Q[i]), WS, 1024*i) for i in range(4)]
    chk = ["s_waitcnt vmcnt(0)", "v_or3_b32 v%d, v5, v7, v9" % (MR+1), "v_or3_b32 v%d, v11, v13, v15" % (MR+3), "v_or3_b32 v%d, v253, v255, v%d" % (MR+1, MR+1),
           "v_or_b32 v%d, v%d, v%d" % (MR+1, MR+1, MR+3), "v_cmp_gt_i32 vcc, 0, v%d" % (MR+1)]
    H = Filler()
    H.add(chk); H.add("s_nop 0\ns_cbranch_vccnz L_g_slow\nL_g_back:")
    for s in recl + chk: slow(s)
    slow("s_sub_u32 s60, s60, 1\ns_cbranch_scc1 L_g_back\ns_cbranch_vccnz L_g_sl\ns_branch L_g_back")
    C.tail = getattr(C, "tail", []) + slow.L
    for i in range(4): H.add("v_add_f32 v%d, v%d, v%d\nv_add_f32 v%d, v%d, v%d" % (4+i, 4+i, 8+i, 252+i, 252+i, 12+i))
    for i in range(4): H.add("v_add_f32 v%d, v%d, v%d" % (252+i, 252+i, 4+i))
    for ctl in ("row_ror:4", "row_ror:8"):
        for i in range(4): H.add(dpp(252+i, 252+i, ctl, 0xf))
    for i in range(4): H.add("v_mul_f32 v%d, s44, v%d" % (252+i, 252+i))
    H.add("v_fma_f32 v253, -v252, v252, v253\nv_fma_f32 v255, -v254, v254, v255\nv_max_f32 v253, 0, v253\nv_max_f32 v255, 0, v255")
    H.add("v_add_f32 v253, s45, v253\nv_add_f32 v255, s45, v255\nv_rsq_f32 v%d, v253\nv_rsq_f32 v253, v255\ns_nop 0" % (MR+1))
    H.add("v_mul_f32 v255, v254, v253\nv_mul_f32 v254, v252, v%d\nv_mov_b32 v252, v%d\ns_nop 0" % (MR+1, MR+1))
    for kq in range(4):
        for i in (1, 3, 2, 0): H.add("v_mov_b32_dpp v%d, v%d row_newbcast:%d row_mask:0xf bank_mask:0xf" % (Q[kq]+i, 252+i, kq))
    burst = o.get("burst", 0)
    B = Filler() if burst else H
    def swp(ft, w):
        for i in range(2): B.add("v_permlane%s_swap_b32 v%d, v%d" % (w, A2+ft*8+i, A2+ft*8+2+i))
    zst = lambda ft: "buffer_store_dwordx4 %s, v1, %s, s%d offen offset:%d sc1" % (vr(A2+ft*8), WS, (38, 39, 46)[ft//4], (ft % 4)*1024)
    for ft in range(9):
        x = A2 + ft*8
        if burst:
            for i in range(4): B.add("v_pk_fma_f32 %s, %s, %s, %s neg_lo:[0,0,1] neg_hi:[0,0,1]" % (p2(x+2*i), p2(x+2*i), p2(Q[i]), p2(Q[i]+2)))
        else:
            for i in range(8): B.add("v_fma_f32 v%d, v%d, v%d, -v%d" % (x+i, x+i, Q[i//2] + i % 2, Q[i//2] + 2 + i % 2))
        if ft: swp(ft-1, "32")
        for i in range(4): B.add("v_cvt_pk_bf16_f32 v%d, v%d, v%d" % (x+i, x+2*i, x+2*i+1))
        if ft: swp(ft-1, "16"); B.add(";ok %d" % (ft-1))
    B.add("s_nop 0"); swp(8, "32"); B.add("s_nop 0"); swp(8, "16"); B.add(";ok 8")
    h_ld, h_go, st_ks, st_n = o.get("zs_ld", 4), o.get("zs_go", 6), o.get("st_ks", 12), o.get("st_n", 3)
    zb = o.get("zbar", 19)
    CS1 = FR + 8
    ready = []; nst_ = 0
    for sg in range(9, 18):
        x = [[], []]; p1 = (); pre = ()
        for kk in range(2):
            ks = 2*(sg-9) + kk
            if kk == 1 and sg + 1 == zb:
                assert nst_ == 9, nst_
                pre = ["s_waitcnt vmcnt(0)"] + (["s_barrier"] if zb == 18 else [])
            if ks == h_ld: x[kk] += [(11+2*i, s) for i, s in enumerate(recl)]
            if ks >= st_ks:
                for i in range(st_n):
                    if ready: x[kk].append((2 + i*(16//st_n), zst(ready.pop(0)))); nst_ += 1
            if ks >= h_go:
                t = H.take(DENSE)
                if burst and not H.q and B.q: t += [(17, s) for s in B.q]; B.q = []
                ready += [int(s.split()[1]) for _, s in t if s.startswith(";ok")]
                x[kk] += t
        if sg == 17:
            x[0] += [(12, "v_lshrrev_b32 v%d, 4, v1" % vR1), (13, "v_and_b32 v%d, 48, v%d" % (vR1, vR1)), (14, "v_add_u32 v%d, %d, v%d" % (vR1, L_CS3 + 576, vR1))]
            p1 = ["ds_read_b128 %s, v%d offset:%d" % (vr(CS1 + 4*ft), vR1, ft*64) for ft in range(9)]
        stage(sg, nxt=(sg < 17), x0=x[0], x1=x[1], p1=p1, pre=pre)
    assert not H.q and not B.q
    for ft in ready: C(zst(ft))
    stamp(C, diag, "pass2")
    CS1B = FR + 52; TP = FR + 44 - 44
    C("v_bfe_u32 v8, v1, 4, 4\nv_lshl_add_u32 v8, v8, 2, s33")
    C("ds_read2_b32 v[4:5], v8 offset0:32 offset1:48")
    C("v_bfe_u32 v8, v1, 4, 4\ns_lshl_b32 s33, s31, 5\nv_lshl_add_u32 v8, v8, 1, s33")
    C("buffer_load_ushort v252, v8, %s, 0 offen\nbuffer_load_ushort v254, v8, %s, 0 offen offset:32" % (BSP, BSP))
    C("s_waitcnt lgkmcnt(0)")
    C("v_rcp_f32 v%d, v4\nv_rcp_f32 v%d, v5\nv_mul_f32 v6, s40, v5\nv_mul_f32 v7, v5, v5\nv_mul_f32 v5, v4, v4\nv_mul_f32 v4, s40, v4" % (MR+1, MR+3))
    C("v_mul_f32 v5, s42, v5\nv_mul_f32 v7, s42, v7\nv_mul_f32 v5, v5, v4\nv_mul_f32 v7, v7, v6")
    for ft in range(9):
        x = [A1 + ft*8 + 2*i for i in range(4)]; t = [(FR, FR+44)[ft % 2] + 2*i for i in range(4)]
        mr = [MR + 2*(i//2) for i in range(4)]; kc = [4 + 2*(i//2) for i in range(4)]
        for i in range(4): C("v_pk_fma_f32 %s, %s, %s, %s op_sel_hi:[0,1,1] neg_lo:[1,0,0] neg_hi:[1,0,0]" % (p2(x[i]), p2(mr[i]), p2(CS1+4*ft+2*(i % 2)), p2(x[i])))
        for i in range(4): C("v_pk_mul_f32 %s, %s, %s" % (p2(t[i]), p2(x[i]), p2(x[i])))
        for i in range(4): C("v_pk_fma_f32 %s, %s, %s, %s op_sel:[0,1,0] op_sel_hi:[1,1,0]" % (p2(t[i]), p2(t[i]), p2(kc[i]), p2(kc[i])))
        for i in range(4): C("v_pk_mul_f32 %s, %s, %s" % (p2(t[i]), p2(t[i]), p2(x[i])))
        for i in range(8): C("v_exp_f32 v%d, v%d" % (t[0]+i, t[0]+i))
        for i in range(4): C("v_pk_fma_f32 %s, %s, %s, %s op_sel:[0,1,1] op_sel_hi:[1,1,1]" % (p2(t[i]), p2(t[i]), p2(mr[i]), p2(mr[i])))
        for i in range(8): C("v_rcp_f32 v%d, v%d" % (t[0]+i, t[0]+i))
        for i in range(4): C("v_pk_mul_f32 %s, %s, %s" % (p2(x[i]), p2(x[i]), p2(t[i])))
        if ft == zb - 19: C("s_waitcnt vmcnt(2)\ns_barrier")
    stamp(C, diag, "z1gelu")
    C("s_waitcnt vmcnt(0)")
    C("v_lshlrev_b32 v252, 16, v252\nv_lshlrev_b32 v254, 16, v254\nv_mov_b32 v253, v252\nv_mov_b32 v255, v254")
    C(vR(6)); C("v_lshrrev_b32 v3, 1, v6"); C(vQ(4)); C("v_xor_b32 v3, v3, v4\nv_lshlrev_b32 v3, 4, v3\nv_lshl_add_u32 v3, v6, 7, v3")
    C("s_add_u32 s33, s30, %d\nv_add_u32 v3, s33, v3\nv_xor_b32 v4, 64, v3\nv_add_u32 v5, %d, v3\nv_add_u32 v6, %d, v4" % (ROWH, 2*SLOT, 2*SLOT))
    for i in range(36): C("v_mov_b64 %s, %s" % (p2(A2+2*i), p2(252 + 2*((i//2) % 2))))
    C("s_mul_i32 s36, s31, 73728\ns_add_u32 s36, s36, s%d" % sLB)
    C("s_lshl_b32 s34, s24, 12\ns_lshl_b32 s35, s24, 9\ns_add_u32 s35, s35, 65536")
    C("v_add_u32 v14, s34, v1\nv_lshrrev_b32 v15, 1, v1\nv_add_u32 v15, s35, v15\ns_add_u32 s39, s36, 0x%x\ns_add_u32 s40, s36, 0x%x" % (WS_H, WS_H+73728))
    C("s_mov_b32 s41, 7\ns_barrier")
    stamp(C, diag, "p4B0")
    for s in reads(18, 0): C(s)
    C(".p2align 6")
    C.lab("L_g_loop")
    for sg in range(18, 22): stage(sg, x1=[(16, "s_sub_u32 s41, s41, 1"), (17, "s_cmp_lg_u32 s41, 0")] if sg == 21 else ())
    C("s_cbranch_scc1 L_g_loop")
    C.nbar += 24
    NT = o.get("tail", 1)
    if NT:
        nk = 2*NT; s0 = 22 - NT; ZB = FR + 8*nk; nz = (88 - 8*nk)//4
        wr = [reads(s0 + k//2, k % 2)[tt].replace(vr(FR + (k % 2)*44 + 4*tt), vr(FR + 8*k + 4*tt)) for k in range(nk) for tt in range(2)]
        zr = [reads(s0 + k//2, k % 2)[2+ft].replace(vr(FR + (k % 2)*44 + 8 + 4*ft), vr(ZB + 4*((ft*nk + k) % nz))) for ft in range(9) for k in range(nk)]
        n0 = 11 - 2*nk; assert n0 >= 1
        for sg in range(18, s0 - 1): stage(sg)
        first = [wr[0], wr[1], zr[0]] + wr[2:] + zr[1:n0]
        stage(s0 - 1, nxt=False, pre=["s_barrier"], p1=first)
        out = lambda u, tt: A1 + 16*u + 4*tt
        def fin(ft):
            r_ = []
            for tt in range(2):
                i = (ft*2+tt)*4
                r_ += ["v_mul_f32 v%d, v%d, v%d" % (A2+i+j, A2+i+j, A1+i+j) for j in range(4)]
                r_ += ["v_cvt_pk_bf16_f32 v%d, v%d, v%d" % (out(ft//2, tt) + 2*(ft % 2) + p, A2+i+2*p, A2+i+2*p+1) for p in range(2)]
                if ft == 8: r_.append("buffer_store_dwordx2 %s, v15, %s, s%d offen %s" % (vr(out(4, tt), 2), WS, 39+tt, stf))
                elif ft % 2: r_.append("buffer_store_dwordx4 %s, v14, %s, s%d offen offset:%d %s" % (vr(out(ft//2, tt)), WS, 39+tt, (ft//2)*1024, stf))
            return r_
        mm = [mfma(A2 + (ft*2+tt)*4, ZB + 4*((ft*nk + k) % nz), FR + 8*k + 4*tt) for ft in range(9) for k in range(nk) for tt in range(2)]
        ex = []; nr = n0; T = Filler(); LA = min(nz - 2, 8); nf = 0
        for n in range(9*nk):
            ex.append((2*n - 1, "s_waitcnt lgkmcnt(%d)" % (0 if n < n0 and n == 0 else min(15, max(0, nr - n - 1)))))
            c_ = 0
            while nr < 9*nk and nr <= n + LA and c_ < 2: ex.append((2*n + c_, zr[nr])); nr += 1; c_ += 1
            if n == (nf + 1)*nk + 2: T.add(fin(nf)); nf += 1
            ex += T.take(sorted([2*n, 2*n+1, 2*n+1] + ([2*n] if c_ == 0 else []) + ([2*n+1] if len(T.q) > 12 else [])))
        for s in interleave(mm, ex): C(s)
        stamp(C, diag, "p4loop")
        k_ = len(T.q)
        while T.q: C(T.q.pop(0))
        C("s_nop %d" % max(0, 6 - k_))
        for f in range(nf, 9):
            for s in fin(f): C(s)
        stamp(C, diag, "p4end")
        return
    for sg in range(18, 22): stage(sg, nxt=(sg < 21))
    stamp(C, diag, "p4loop")
    for u in range(5):
        for tt in range(2):
            tiles = [2*u, 2*u+1] if u < 4 else [8]
            d = FR + (u*2+tt)*4
            for ft in tiles:
                i = (ft*2+tt)*4
                for p in range(2): C("v_pk_mul_f32 %s, %s, %s" % (p2(A2+i+2*p), p2(A2+i+2*p), p2(A1+i+2*p)))
            for e, ft in enumerate(tiles):
                i = A2 + (ft*2+tt)*4
                C("v_cvt_pk_bf16_f32 v%d, v%d, v%d\nv_cvt_pk_bf16_f32 v%d, v%d, v%d" % (d+2*e, i, i+1, d+2*e+1, i+2, i+3))
            if u < 4: C("buffer_store_dwordx4 %s, v14, %s, s%d offen offset:%d %s" % (vr(d), WS, 39+tt, u*1024, stf))
            else: C("buffer_store_dwordx2 %s, v15, %s, s%d offen %s" % (vr(d, 2), WS, 39+tt, stf))
    stamp(C, diag, "p4end")
```

```python
from ph_sync import *
def magic(d, maxv):
    for sh in range(8, 20):
        m = -(-(1 << sh) // d)
        if all((v*m) >> sh == v // d for v in range(maxv+1)): return m, sh
def sdiv(k, q, r, src, d, maxv):
    m, sh = magic(d, maxv)
    k("s_mul_i32 s%d, s%d, %d\ns_lshr_b32 s%d, s%d, %d\ns_mul_i32 s%d, s%d, %d\ns_sub_u32 s%d, s%d, s%d" % (q, src, m, q, q, sh, r, q, d, r, src, r))
def vdiv(k, dst, src, d, maxv, rem):
    m, sh = magic(d, maxv)
    k("v_mul_u32_u24 v%d, %d, v%d\nv_lshrrev_b32 v%d, %d, v%d\nv_mul_u32_u24 v%d, %d, v%d\nv_sub_u32 v%d, v%d, v%d" % (dst, m, src, dst, sh, dst, rem, d, dst, rem, src, rem))
P_X, P_WQKV, P_WO, P_WIN, P_WOUT = 36, 38, 40, 44, 50
DBG = 58
SRC = "s[32:35]"
F = 16
dB = [72*(u >> 1) + 32*(u & 1) for u in range(8)]
AMT = 46
VSO, VSA, VDB = 254, 255, 246
def trreads(k, lb, B, bases, BL, baseL):
    for u in range(9):
        for ih in range(2):
            off = (bases[u] + B*ih)*lb if u < 8 else (baseL + BL*ih)*lb
            k("ds_read_b64_tr_b16 %s, v%d offset:%d" % (vr(F+4*u+2*ih, 2), 4 if u < 8 else 5, off))
def colsum(k, vaddr, sb, stf):
    for i in range(36): k("v_dot2_f32_bf16 v%d, v%d, v11, %s" % (12 + i % 2, F+i, "v%d" % (12 + i % 2) if i > 1 else "0"))
    k("s_nop 2\nv_add_f32 v12, v12, v13")
    xsum_q(k, 12, 13)
    k("buffer_store_dword v12, v%d, %s, s%d offen %s" % (vaddr, WS, sb, stf))
def stores(k, vsel, soff, stf):
    for u in range(9):
        k("s_waitcnt lgkmcnt(%d)" % min(15, 16 - 2*u))
        k(soff(u))
        k("buffer_store_dwordx4 %s, v%d, %s, s31 offen %s" % (vr(F+4*u), vsel(u), WS, stf))
SO = [37, 38, 39, 40, 41, 42, 43, 47, 48]
def wload(k, ncw, ptr, rows, stride, A, AL, LB, ld0, bars):
    sdiv(k, 28, 27, 26, ncw, 200)
    srd(k, 32, ptr, rows*stride)
    k("s_mul_i32 s29, s28, %d\ns_lshl_b32 s31, s27, 7\ns_add_u32 s29, s29, s31\ns_mul_i32 s31, s%d, %d\ns_add_u32 s29, s29, s31" % (288*stride, sW, 72*stride))
    k("v_lshrrev_b32 v4, 7, v1\nv_mul_u32_u24 v4, %d, v4\nv_and_b32 v5, 0x70, v1\nv_add_u32 v4, v4, v5" % stride)
    for j in range(-1, 9):
        if j >= 0: k("s_add_u32 m0, s30, %d\ns_add_u32 s31, s29, %d\nbuffer_load_dwordx4 v4, %s, s31 offen %s lds" % (LB + j*1024, j*8*stride, SRC, ld0))
        for _ in range(bars.get(j, 0)): k("s_barrier")
    k("v_lshrrev_b32 v7, 2, v2\nv_and_b32 v8, 3, v2\ns_lshl_b32 s31, s%d, 5\ns_add_u32 s31, s31, %d" % (sW, LB))
    k("v_lshlrev_b32 v9, 7, v7\nv_lshl_add_u32 v9, v8, 3, v9\nv_add_u32 v9, s31, v9")
    k("v_mul_u32_u24 v4, %d, v3\nv_add_u32 v4, v4, v9\nv_mul_u32_u24 v5, %d, v3\nv_add_u32 v5, v5, v9" % (A*128, AL*128))
    k("s_lshl_b32 s31, s27, 2\ns_add_u32 s31, s31, s%d\nv_lshl_add_u32 v7, s31, 2, v7\nv_lshlrev_b32 v8, 4, v8\nv_lshl_add_u32 v8, v3, 8, v8" % sW)
def proj_dst(k, ncp, base):
    vdiv(k, 9, 7, 18, 143, 10)
    k("v_lshrrev_b32 v12, 3, v10\nv_and_b32 v13, 1, v10\nv_lshl_add_u32 v12, v12, 1, v13\nv_bfe_u32 v14, v10, 1, 2\nv_cmp_gt_u32 vcc, 16, v10")
    k("v_mul_u32_u24 v9, %d, v9\nv_add_u32 v9, v9, v8" % (ncp*9216))
    k("v_cndmask_b32 v12, 8, v12, vcc\nv_cndmask_b32 v14, v13, v14, vcc\nv_mov_b32 v15, 0x1000\nv_mov_b32 v13, 0x80\nv_cndmask_b32 v15, v13, v15, vcc")
    k("v_lshl_add_u32 v9, v12, 10, v9\nv_lshl_add_u32 v9, v14, 6, v9\nv_add_u32 v10, v9, v15")
    k("s_and_b32 s31, s28, 1\ns_cmp_eq_u32 s31, 1\ns_cselect_b64 vcc, -1, 0\nv_cndmask_b32 v14, v9, v10, vcc")
    k("s_mul_i32 s31, s28, %d" % (4*9216))
    for u in range(8): k("s_add_u32 s%d, s31, 0x%x" % (SO[u], base + (u >> 1)*9216))
    k("s_lshr_b32 s31, s28, 1\ns_mul_i32 s31, s31, 9216\ns_add_u32 s%d, s31, 0x%x" % (SO[8], base + (ncp*8//9)*9216))
def prep_C(k, o, diag):
    stf = o.get("st0", "sc1"); ld0 = o.get("ld0", "")
    k(vR(2)); k(vQ(3)); k("v_bfrev_b32 v6, 1\nv_mov_b32 v11, 0x3f803f80")
    k("s_lshl_b32 s30, s%d, 12\ns_and_b32 s29, s%d, 1" % (sW, sW))
    stamp(k, diag, "p0go")
    k("s_cmp_lt_u32 s2, 128\ns_cbranch_scc1 L_p0_x\ns_cmp_lt_u32 s2, 236\ns_cbranch_scc1 L_p0_wq\ns_cmp_lt_u32 s2, 254\ns_cbranch_scc1 L_p0_wo")
    k("s_mov_b32 s%d, 0\ns_mov_b32 s27, 0x800000" % AMT)
    k("s_barrier\ns_barrier\ns_branch L_p0_cd")
    k.lab("L_p0_wo")
    k("s_mul_i32 s30, s%d, 9216\ns_sub_u32 s26, s2, 236" % sW)
    wload(k, 9, P_WO, 576, 1152, 4, 72, 0, ld0, {8: 1})
    proj_dst(k, 9, WS_WO)
    k("s_cmp_ge_u32 s26, 4\ns_cbranch_scc1 L_p0_n2\ns_lshl_b32 s31, s26, 2\ns_add_u32 s31, s31, s%d\ns_lshl_b32 s31, s31, 12\ns_add_u32 s31, s31, 0x%x" % (sW, WS_FLAG + 32768))
    zero16(k, 31)
    k.lab("L_p0_n2")
    k("s_waitcnt vmcnt(0)\ns_barrier")
    trreads(k, 128, 20, [36*u for u in range(8)], 36, 16)
    stores(k, lambda u: (9 + (u & 1)) if u < 8 else 14, lambda u: "s_mov_b32 s31, s%d" % SO[u], stf)
    k("s_mov_b32 s%d, 1\ns_mov_b32 s27, %d\ns_branch L_p0_cd" % (AMT, 16*F_P4))
    k.lab("L_p0_wq")
    srd(k, 32, P_WQKV, 576*3456)
    k("s_sub_u32 s23, s2, 128")
    sdiv(k, 25, 24, 23, 27, 107)
    k("s_mul_i32 s26, s25, %d\ns_lshl_b32 s31, s24, 7\ns_add_u32 s26, s26, s31" % (144*3456))
    k("v_lshrrev_b32 v4, 7, v1\nv_mul_u32_u24 v4, 3456, v4\nv_and_b32 v5, 0x70, v1\nv_add_u32 v4, v4, v5")
    k("s_mul_i32 s31, s%d, %d\ns_add_u32 s27, s26, s31" % (sW, 32*3456))
    for j in range(4): k("s_add_u32 m0, s30, %d\ns_add_u32 s31, s27, %d\nbuffer_load_dwordx4 v4, %s, s31 offen %s lds" % (j*1024, j*8*3456, SRC, ld0))
    k("s_cmp_ge_u32 s%d, 2\ns_cbranch_scc1 L_p0_q5" % sW)
    k("s_lshl_b32 s31, s29, 10\ns_add_u32 m0, s31, 16384\ns_mul_i32 s31, s29, %d\ns_add_u32 s31, s31, s26\ns_add_u32 s31, s31, %d" % (8*3456, 128*3456))
    k("buffer_load_dwordx4 v4, %s, s31 offen %s lds" % (SRC, ld0))
    k.lab("L_p0_q5")
    k("s_barrier")
    k("v_lshrrev_b32 v7, 2, v2\nv_and_b32 v8, 3, v2\ns_lshl_b32 s31, s%d, 5" % sW)
    k("v_lshlrev_b32 v9, 7, v7\nv_lshl_add_u32 v9, v3, 3, v9\nv_add_u32 v9, s31, v9")
    k("v_lshl_add_u32 v4, v8, 10, v9\nv_and_b32 v5, 1, v2\nv_mul_u32_u24 v5, %d, v5\nv_add_u32 v5, v5, v9" % (72*128))
    k("s_lshl_b32 s31, s24, 2\ns_add_u32 s31, s31, s%d\nv_lshl_add_u32 v7, s31, 2, v3\nv_lshlrev_b32 v8, 4, v2" % sW)
    vdiv(k, 9, 7, 144, 431, 10)
    vdiv(k, 12, 10, 9, 143, 13)
    k("v_cmp_lt_u32 s[36:37], 4, v13\nv_cmp_eq_u32 s[38:39], 4, v13\nv_cmp_eq_u32 s[40:41], 2, v9\nv_lshlrev_b32 v14, 1, v9\nv_add_u32 v15, 1, v14\nv_subrev_u32 v10, 5, v13")
    k("v_cndmask_b32 v14, v14, v15, s[36:37]\nv_cndmask_b32 v13, v13, v10, s[36:37]\nv_cndmask_b32 v14, v14, 6, s[38:39]\nv_cndmask_b32 v13, v13, v9, s[38:39]")
    k("s_and_b64 s[40:41], s[40:41], s[38:39]\ns_mov_b32 s31, %d" % (18*7168))
    k("v_mul_lo_u32 v9, v12, s31\nv_add_u32 v9, v9, v8\nv_lshl_add_u32 v9, v14, 10, v9\nv_lshl_add_u32 v9, v13, 8, v9")
    k("s_and_b32 s31, s25, 1\nv_lshrrev_b32 v8, 3, v2\nv_cmp_eq_u32 vcc, s31, v8")
    k("v_add_u32 v15, 256, v9\nv_cndmask_b32 v15, v6, v15, s[40:41]\nv_cndmask_b32 v8, v6, v9, vcc")
    k("v_lshlrev_b32 v10, 2, v2\nv_lshl_add_u32 v10, v7, 4, v10")
    k("v_cmp_gt_u32 vcc, 4, v2\ns_lshl_b32 s45, s25, 13\ns_add_u32 s45, s45, 0x%x\nv_cndmask_b32 v10, v6, v10, vcc" % WS_CSQ)
    k("s_mul_i32 s42, s25, %d\ns_add_u32 s42, s42, 0x%x\ns_lshr_b32 s44, s25, 1\ns_mul_i32 s44, s44, 7168\ns_add_u32 s44, s44, 0x%x" % (4*7168, WS_WQ, WS_WQ + 16*7168))
    sdiv(k, 26, 27, 24, 9, 26)
    k("s_lshl_b32 s27, s27, 4\ns_add_u32 s28, s27, 16\nv_lshrrev_b32 v%d, 4, v1\nv_mul_u32_u24 v7, 9, v%d\nv_add_u32 v%d, 9, v7" % (VSO, VSO, VSA))
    k("v_min_u32 v%d, s28, v%d\nv_max_u32 v7, s27, v7\nv_sub_u32 v%d, v%d, v7\nv_cmp_lt_i32 vcc, 0, v%d\nv_lshlrev_b32 v%d, 8, v%d" % (VSA, VSA, VSA, VSA, VSA, VSO, VSO))
    k("v_mov_b32 v14, 0x3f003f00\nv_cndmask_b32 v%d, v6, v%d, vcc" % (VSO, VSO))
    sq = lambda u: "s_add_u32 s31, s42, %d" % (u*7168) if u < 4 else "s_mov_b32 s31, s44"
    k("s_cmp_eq_u64 s[40:41], 0\ns_cbranch_scc1 L_p0_np")
    for i in range(4): k("v_mov_b32 v%d, 0" % (52+i))
    for u in range(5): k(sq(u)); k("buffer_store_dwordx4 v[52:55], v15, %s, s31 offen %s" % (WS, stf))
    k("s_waitcnt vmcnt(5)\ns_branch L_p0_n3")
    k.lab("L_p0_np")
    k("s_waitcnt vmcnt(0)")
    k.lab("L_p0_n3")
    k("s_barrier")
    stamp(k, diag, "p0ld")
    for u in range(5):
        for ih in range(2): k("ds_read_b64_tr_b16 %s, v%d offset:%d" % (vr(F+4*u+2*ih, 2), 4 if u < 4 else 5, ((dB[u] if u < 4 else 64) + 4*ih)*128))
    for u in range(5):
        k("s_waitcnt lgkmcnt(%d)" % (8 - 2*u)); k(sq(u))
        k("buffer_store_dwordx4 %s, v%d, %s, s31 offen %s" % (vr(F+4*u), 9 if u < 4 else 8, WS, stf))
    for i in range(20): k("v_dot2_f32_bf16 v%d, v%d, v%d, %s" % (12 + i % 2, F+i, 11 if i < 16 else 14, "v%d" % (12 + i % 2) if i > 1 else "0"))
    k("s_nop 2\nv_add_f32 v12, v12, v13\ns_nop 1\nv_add_f32_dpp v12, v12, v12 row_ror:4 row_mask:0xf bank_mask:0xf\ns_nop 1\nv_add_f32_dpp v12, v12, v12 row_ror:8 row_mask:0xf bank_mask:0xf")
    k("buffer_store_dword v12, v10, %s, s45 offen %s" % (WS, stf))
    k("s_branch L_p0_ce")
    k.lab("L_p0_x")
    srd(k, 32, P_X, 2048*1152)
    k("s_mul_i32 s26, s2, 18432\ns_mov_b32 m0, s30\ns_add_u32 s31, s26, s30")
    for j in range(4): k("buffer_load_dwordx4 v1, %s, s31 offen offset:%d %s lds" % (SRC, j*1024, ld0))
    k("s_lshl_b32 s27, s29, 10\ns_add_u32 s27, s27, 16384\ns_mov_b32 m0, s27\ns_add_u32 s31, s26, s27")
    k("buffer_load_dwordx4 v1, %s, s31 offen %s lds" % (SRC, ld0))
    k("s_barrier")
    k("s_mul_i32 s31, s%d, 288\nv_mul_u32_u24 v7, 1152, v2\nv_lshl_add_u32 v4, v3, 4, v7\nv_add_u32 v4, s31, v4" % sW)
    k("s_mul_i32 s31, s29, 576\nv_mul_u32_u24 v5, 144, v3\nv_add3_u32 v5, v5, v7, s31")
    k("s_add_u32 s26, s26, 0x%x\ns_add_u32 s42, s26, s30\ns_add_u32 s44, s26, s27" % WS_XA)
    k("s_lshl_b32 s45, s2, 10\ns_lshl_b32 s31, s%d, 8\ns_add_u32 s45, s45, s31\ns_add_u32 s45, s45, 0x%x" % (sW, WS_STA))
    k("v_cmp_gt_u32 vcc, 2, v3\nv_lshrrev_b32 v10, 1, v1\ns_mov_b32 s%d, 2\nv_cndmask_b32 v10, v6, v10, vcc" % AMT)
    k("s_lshr_b32 s27, s2, 3\ns_add_u32 s27, s27, %d" % (16*F_P5))
    stamp(k, diag, "p0w")
    k("s_waitcnt vmcnt(0)\ns_barrier")
    stamp(k, diag, "p0ld")
    for u in range(5): k("ds_read_b128 %s, v%d offset:%d" % (vr(F+4*u), 4 if u < 4 else 5, 144*(u >> 1) + 64*(u & 1) if u < 4 else 128))
    for u in range(4): k("s_waitcnt lgkmcnt(%d)\nbuffer_store_dwordx4 %s, v1, %s, s42 offen offset:%d %s" % (4-u, vr(F+4*u), WS, u*1024, stf))
    dots = lambda i: "v_dot2_f32_bf16 v12, v%d, v11, %s\nv_dot2_f32_bf16 v13, v%d, v%d, %s" % (F+i, "v12" if i else "0", F+i, F+i, "v13" if i else "0")
    for i in range(16): k(dots(i))
    k("s_waitcnt lgkmcnt(0)\ns_cmp_ge_u32 s%d, 2\ns_cbranch_scc1 L_p0_xs" % sW)
    k("buffer_store_dwordx4 %s, v1, %s, s44 offen %s" % (vr(F+16), WS, stf))
    for i in range(16, 20): k(dots(i))
    k.lab("L_p0_xs")
    k("s_nop 2\nv_mov_b32 v14, v12\nv_mov_b32 v15, v13\ns_nop 1\nv_permlane32_swap_b32 v12, v14\nv_permlane32_swap_b32 v13, v15\nv_add_f32 v12, v12, v14\nv_add_f32 v13, v13, v15")
    k("buffer_store_dwordx2 v[12:13], v10, %s, s45 offen %s" % (WS, stf))
    k.lab("L_p0_cd")
    k("v_cmp_eq_u32 vcc, 0, v1\ns_lshl_b32 s27, s27, 8\nv_mov_b32 v%d, s%d\nv_mov_b32 v%d, s27\nv_cndmask_b32 v%d, v6, v%d, vcc" % (VSA, AMT, VSO, VSO, VSO))
    k.lab("L_p0_ce")
    stamp(k, diag, "p0is")
    srd(k, DSRD, DBG, 256)
    k("v_mov_b32 v4, 0\nbuffer_load_dword v%d, v4, s[%d:%d], 0 offen sc1" % (VDB, DSRD, DSRD+3))
    k("s_barrier")
    k.nbar = 3
DSRD = 48
def prep_signal(k):
    k("v_cmp_gt_u32 vcc, 4, v%d\nv_mov_b32 v4, 0\ns_mov_b32 s46, 0x%x\ns_cbranch_vccz L_pd_dbg" % (VDB, WS_FLAG))
    vpoll(k, "dbg", "s[%d:%d]" % (DSRD, DSRD+3), "0", 4, 5, 4)
    k("buffer_atomic_add v%d, v%d, %s, s46 offen sc1" % (VSA, VSO, WS))
U_WI, U_WU, U_END = 0, 144, 216
def tr_wu(k): trreads(k, 128, 16, [144*(u >> 2) + 32*(u & 3) for u in range(8)], 144, 128)
def tr_wi(k): trreads(k, 128, 4, dB, 4, 64)
def prep_L_tr(k):
    k("s_cmp_lt_u32 s2, %d\ns_cbranch_scc1 L_p0_t1\ns_cmp_ge_u32 s2, %d\ns_cbranch_scc1 L_p0_t2" % (U_WU, U_END))
    tr_wu(k); k("s_branch L_p0_t2")
    k.lab("L_p0_t1"); tr_wi(k)
    k.lab("L_p0_t2"); k("s_waitcnt lgkmcnt(0)")
def prep_L(k, o, diag):
    ld0 = o.get("ld0", ""); LB = 36864
    late = o.get("p0late", 1)
    bars = {-1: 1, o.get("p0bar", 0): 2} if not late else o.get("p0bars", {-1: 5})
    if late: LB = 94208
    k(vR(2)); k(vQ(3)); k("v_bfrev_b32 v6, 1\nv_mov_b32 v11, 0x3f803f80")
    k("s_mul_i32 s30, s%d, 9216" % sW)
    sk = o.get("p0skip", 0)
    k("s_cmp_lt_u32 s2, %d\ns_cbranch_scc1 L_p0_wi\ns_cmp_lt_u32 s2, %d\ns_cbranch_scc1 L_p0_wu" % (U_WU if sk < 2 else 0, U_END if sk < 1 else 0))
    for r_ in (9, 10, 14, 15): k("v_mov_b32 v%d, v6" % r_)
    for r_ in SO + [49]: k("s_mov_b32 s%d, 0" % r_)
    k("s_barrier\ns_barrier\ns_barrier\ns_barrier\ns_barrier\ns_branch L_p0_ld")
    def landed():
        if late: return
        k("s_barrier\ns_waitcnt vmcnt(0)\ns_barrier")
        stamp(k, diag, "Lp0ld")
    k.lab("L_p0_wu")
    k("s_sub_u32 s26, s2, %d" % U_WU)
    wload(k, 9, P_WOUT, 2304, 1152, 4, 4, LB, ld0, bars)
    proj_dst(k, 36, WS_WU)
    k("v_mov_b32 v15, v6\ns_mov_b32 s49, 0")
    landed()
    if not late: tr_wu(k)
    k("s_branch L_p0_ld")
    k.lab("L_p0_wi")
    k("s_mov_b32 s26, s2")
    wload(k, 72, P_WIN, 576, 9216, 8, 72, LB, ld0, bars)
    k("s_cmp_lt_u32 s31, 144\ns_cselect_b32 s23, 1, 0\ns_cselect_b32 s24, 0, 144\ns_sub_u32 s26, s31, s24")
    sdiv(k, 25, 24, 26, 9, 143)
    k("s_lshl_b32 s26, s25, 1\ns_add_u32 s26, s26, s23\ns_mul_i32 s26, s26, %d\ns_lshl_b32 s31, s24, 10\ns_add_u32 s26, s26, s31\ns_add_u32 s26, s26, 0x%x" % (18*9216, WS_WI))
    k("s_mul_i32 s31, s28, 9216\ns_add_u32 s%d, s26, s31\ns_add_u32 s%d, s%d, %d\ns_lshl_b32 s31, s31, 3\ns_add_u32 s26, s26, s31" % (SO[8], SO[8], SO[8], 16*9216))
    for u in range(8): k("s_add_u32 s%d, s26, %d" % (SO[u], u*9216))
    k("s_lshl_b32 s49, s25, 12\ns_mul_i32 s31, s28, 1152\ns_add_u32 s49, s49, s31\ns_mul_i32 s31, s23, 576\ns_add_u32 s49, s49, s31\ns_lshl_b32 s31, s24, 6\ns_add_u32 s49, s49, s31\ns_add_u32 s49, s49, 0x%x" % WS_CSI)
    k("v_cmp_eq_u32 vcc, 0, v3\nv_lshlrev_b32 v15, 2, v2\nv_mov_b32 v9, v1\nv_mov_b32 v10, v1\nv_mov_b32 v14, v1\nv_cndmask_b32 v15, v6, v15, vcc")
    landed()
    if not late: tr_wi(k)
    k.lab("L_p0_ld")
    k("s_waitcnt lgkmcnt(0)")
    stamp(k, diag, "Lp0st")
    k.nbar = 5
def prep_L_store(k, o, us):
    stf = o.get("st0", "sc1")
    for u in us:
        if u < 9: k("buffer_store_dwordx4 %s, v%d, %s, s%d offen %s" % (vr(F+4*u), (9 + (u & 1)) if u < 8 else 14, WS, SO[u], stf))
        else: colsum(k, 15, 49, stf)
        k.issue("p0")
def zero16(k, sbase):
    k("v_and_b32 v56, 0x380, v1\nv_add_u32 v56, v56, v1")
    for i in range(4): k("v_mov_b32 v%d, 0" % (52+i))
    for i in range(2): k("buffer_store_dwordx4 v[52:55], v56, %s, s%d offen offset:%d sc1" % (WS, sbase, 2048*i))
def zero_counters(k):
    k("s_cmp_lg_u32 s2, 0\ns_cbranch_scc1 L_p0_nz\ns_lshl_b32 s31, s%d, 12\ns_add_u32 s31, s31, 0x%x" % (sW, WS_FLAG))
    zero16(k, 31)
    k("s_waitcnt vmcnt(0)\ns_mov_b32 s53, 1\ns_atomic_add s53, s[%d:%d], 0" % (DBG, DBG+1))
    k.lab("L_p0_nz")
```

```python
from ph_sync import *
def proj_coords(k, o, b=23):
    k("s_and_b32 s%d, s2, 7\ns_lshr_b32 s26, s2, 3" % (b+2))
    if o.get("pmap", 0) == 0:
        k("s_lshl_b32 s%d, s%d, 2\ns_lshr_b32 s27, s26, 3\ns_add_u32 s%d, s%d, s27\ns_and_b32 s%d, s26, 7" % (b, b+2, b, b, b+1))
    else:
        k("s_lshr_b32 s%d, s%d, 1\ns_lshl_b32 s%d, s%d, 3\ns_lshr_b32 s27, s26, 2\ns_add_u32 s%d, s%d, s27" % (b, b+2, b, b, b, b))
        k("s_and_b32 s%d, s%d, 1\ns_lshl_b32 s%d, s%d, 2\ns_and_b32 s27, s26, 3\ns_add_u32 s%d, s%d, s27" % (b+1, b+2, b+1, b+1, b+1, b+1))
    k("s_add_u32 s%d, s%d, s%d\ns_and_b32 s%d, s%d, 3" % (b+2, b, b+1, b+2, b+2))
def dma_run(L, n, sm0, m0add, ssrc, srcadd, tag, fl=""):
    for j in range(n):
        if j % 4 == 0: L("s_add_u32 m0, s%d, %d\ns_add_u32 s33, s%d, %d" % (sm0, m0add + j*1024, ssrc, srcadd + j*1024))
        L("buffer_load_dwordx4 v1, %s, s33 offen offset:%d %s lds" % (WS, (j % 4)*1024, fl)); L.issue(tag)
def p2_loader(L, o, diag, after_y):
    proj_coords(L, o)
    L("s_mul_i32 s29, s24, %d\ns_add_u32 s29, s29, 0x%x" % (9*9216, WS_WO))
    L("s_mul_i32 s30, s%d, %d\ns_mul_i32 s31, s%d, %d\ns_add_u32 s31, s31, s29" % (sW, SLOT, sW, ROWH))
    dma_run(L, 18, 30, ROWH, 31, 0, "w")
    stamp(L, diag, "Lp2pre")
    L("s_mul_i32 s30, s%d, 3072\ns_add_u32 s31, s30, s29" % sW)
    L("s_waitcnt vmcnt(18)\ns_barrier")
    dma_run(L, 3, 30, TOP, 31, 8*9216, "w")
    L("s_or_b32 s44, s%d, s%d\ns_cbranch_scc1 L_p2_ns\ns_and_b32 s44, s2, 15" % (sW, sLAY))
    flag_addr(L, 44, F_P2, 44, back="prep"); ssignal(L, 44)
    L.lab("L_p2_ns")
    L("s_waitcnt vmcnt(0)\ns_barrier"); L.vm = []
    after_y()
class P5L:
    def __init__(s, L, o):
        s.L = L; s.o = o; s.done = []
        s.sched = o.get("p5s", {47: [0], 48: [1], "X": [2, 3]} if o.get("tail", 1) == 2 else {47: [0], 48: [1], 49: [2], "X": [3]})
    def setup(s):
        L = s.L
        proj_coords(L, s.o, 38)
        L("s_mul_i32 s42, s%d, 9216\ns_mul_i32 s43, s39, %d\ns_add_u32 s43, s43, s42\ns_add_u32 s43, s43, 0x%x" % (sW, 36*9216, WS_WU))
        L("v_add_u32 v12, s42, v1")
        for i in range(1, 4): L("v_add_u32 v%d, %d, v12" % (12+i, SLOT*i))
    def batch(s, tau, reg=False):
        L = s.L; s.done.append(tau)
        L("\n".join(hoist_sel(L, 32, tau, 8, 40, tau < 8 and s.o.get("hoist5", 0))))
        L("s_mul_i32 s32, s32, %d\ns_add_u32 s32, s32, s43" % SLOT)
        if not reg: dma_run(L, 9, 42, ((50 + tau) % 4)*SLOT, 32, 0, ("w", tau))
        else:
            for j in range(9):
                if j and j % 4 == 0: L("s_add_u32 s32, s32, 4096")
                L("buffer_load_dwordx4 %s, v1, %s, s32 offen offset:%d" % (vr(16 + ((tau-4)*9 + j)*4), WS, (j % 4)*1024)); L.issue(("w", tau))
    def at(s, point):
        for t in s.sched.get(point, []): s.batch(t, t >= 4)
    def main(s, diag, tail):
        L = s.L
        if "R" in s.sched: L("s_barrier"); s.at("R")
        L("s_barrier")
        s.at("X")
        stamp(L, diag, "Lp5pre")
        L("s_waitcnt vmcnt(%d)\ns_barrier" % L.vmn(("w", 0)))
        s.at("Y")
        assert all(t in s.done for t in range(4))
        for m in range(1, 9):
            L("s_waitcnt vmcnt(%d) lgkmcnt(0)\ns_barrier" % (L.vmn(("w", m)) if ("w", m) in L.vm else 63))
            t = m + 3
            if t < 9 and t in s.done:
                if ("w", t) in L.vm: L("s_waitcnt vmcnt(%d)" % L.vmn(("w", t)))
                for j in range(9): L("ds_write_b128 v%d, %s offset:%d" % (12 + (50 + t) % 4, vr(16 + ((t-4)*9 + j)*4), j*1024))
            elif t < 9: s.batch(t)
            s.at(m)
            if t >= 9: tail(m)
L_PF = 163808
def proj(C, kind, o, diag=None):
    p5 = kind == 5
    uid = "p%d" % kind
    npair = 36 if p5 else 9
    nst = 9 if p5 else 3
    ppst = lambda n: 4 if (p5 or n < 2) else 1
    ACT, RES = (WS_H, WS_XB) if p5 else (WS_O, WS_XA)
    rts = 73728 if p5 else 18432
    EX = 131072 if p5 else 3*SLOT
    ld = o.get("ld", ""); stf = o.get("st", "")
    ho = p5 and o.get("hoist5", 0)
    ACC = 24; WF = 64; AW = 124; RR = 220; T = 232
    if p5 and "R" in o.get("p5s", {}): C("s_barrier")
    proj_coords(C, o)
    C("s_lshl_b32 s30, s23, 2\ns_add_u32 s30, s30, s%d\ns_and_b32 s31, s%d, 1" % (sW, sW))
    C("s_mul_i32 s34, s30, 18432\ns_add_u32 s34, s34, s%d\ns_add_u32 s34, s34, 0x%x" % (sLB, RES))
    C("s_lshl_b32 s35, s24, 11")
    C("s_lshr_b32 s36, s24, 2\ns_lshl_b32 s36, s36, 10\ns_and_b32 s37, s24, 3\ns_lshl_b32 s37, s37, 8\ns_add_u32 s36, s36, s37\ns_add_u32 s36, s36, 16384")
    C(vR(2)); C(vQ(3))
    C("v_add_u32 v4, s35, v1\nv_lshrrev_b32 v0, 1, v3\nv_and_b32 v9, 1, v3")
    C("v_cmp_eq_u32 s[40:41], s31, v0\nv_bfrev_b32 v6, 1")
    C("v_lshlrev_b32 v5, 4, v2\nv_lshl_add_u32 v5, v9, 3, v5\nv_add_u32 v5, s36, v5\nv_cndmask_b32 v5, v6, v5, s[40:41]")
    for p in range(2): C("buffer_load_dwordx4 %s, v4, %s, s34 offen offset:%d %s" % (vr(RR+4*p), WS, 1024*p, ld))
    C("buffer_load_dwordx2 %s, v5, %s, s34 offen %s" % (vr(RR+8, 2), WS, ld))
    C("s_and_b32 s29, s30, 0xfffe\ns_mul_i32 s29, s29, %d\ns_add_u32 s29, s29, s%d\ns_lshl_b32 s37, s31, 10\ns_add_u32 s29, s29, s37\ns_add_u32 s29, s29, 0x%x" % (rts, sLB, ACT))
    C("s_mul_i32 s37, s31, %d\ns_sub_u32 s38, %d, s37" % (rts, rts))
    C("v_lshlrev_b32 v10, 3, v2")
    if p5: C("v_lshrrev_b32 v7, 1, v1")
    else: C("v_lshl_add_u32 v7, v3, 8, v10")
    C("v_add_u32 v16, s37, v1\nv_add_u32 v17, s38, v1\nv_add_u32 v18, s37, v7\nv_add_u32 v19, s38, v7")
    C("s_lshl_b32 s37, s31, 12")
    for i in range(4): C("v_add_u32 v%d, %d, v1\nv_add_u32 v%d, s37, v%d" % (20+i, SLOT*i, 12+i, 20+i))
    C("s_add_u32 s34, s34, 0x%x" % ((LAYER_STRIDE + WS_XA - WS_XB) if p5 else (WS_XB - WS_XA)))
    C("s_lshl_b32 s39, s30, 10\ns_add_u32 s39, s39, s%d\ns_lshl_b32 s42, s24, 7\ns_add_u32 s39, s39, s42\ns_add_u32 s39, s39, 0x%x" % (sLB, LAYER_STRIDE + WS_STA if p5 else WS_STB))
    C("v_cmp_eq_u32 vcc, 0, v3\nv_mov_b32 v11, 0x3f803f80\ns_lshr_b32 s44, s23, 1\nv_cndmask_b32 v10, v6, v10, vcc")
    if p5:
        C("s_cmp_eq_u32 s%d, 0\ns_cbranch_scc1 L_p5_nf" % sLAY)
        C("v_mul_u32_u24 v8, 1152, v2\ns_mul_i32 s34, s30, %d\ns_mul_i32 s42, s24, 144\ns_add_u32 s34, s34, s42" % (16*1152))
        C("v_lshl_add_u32 v4, v3, 4, v8\nv_lshl_add_u32 v5, v9, 3, v8\nv_cndmask_b32 v5, v6, v5, s[40:41]")
        C.lab("L_p5_nf")
    flag_addr(C, POL, F_P4 if p5 else F_P1, 44)
    def mid():
        for i in range(10):
            C("v_lshlrev_b32 v%d, 16, v%d\nv_and_b32 v%d, 0xffff0000, v%d" % (ACC+2*i, RR+i, ACC+2*i+1, RR+i))
        C("s_mul_i32 s37, s%d, 4608\ns_add_u32 s37, s37, %d\ns_xor_b32 s38, s%d, 1\ns_mul_i32 s42, s38, 4608\ns_add_u32 s42, s42, %d" % (sW, EX, sW, EX))
        C("v_and_b32 v0, 0x1ff, v1\nv_add_u32 v2, s37, v1\nv_add_u32 v3, s37, v0\nv_add_u32 v7, s42, v1\nv_add_u32 v8, s42, v0")
        C("s_lshl_b32 s37, s%d, 2\ns_add_u32 s37, s37, %d\ns_xor_b32 s38, s37, 4\nv_mov_b32 v0, s37\nv_mov_b32 v6, s38" % (sW, L_PF))
        C("s_lshl_b32 s43, s%d, 1\ns_add_u32 s43, s43, %d\nv_mov_b32 v9, s43" % (sLAY, 2 if p5 else 1))
    edge(C, "d%d" % kind, [POL], o, diag, mid)
    def act_loads(tau):
        o_ = hoist_sel(C, 32, tau, 8, 25, tau < 8 and ho) + ["s_lshl_b32 s32, s32, 13", "s_add_u32 s32, s32, s29", "s_add_u32 s33, s32, 4096"]
        lds_ = []
        for pp in range(ppst(tau)):
            for st in range(2):
                d = AW + ((tau % 3)*8 + 2*pp + st)*4
                if tau + 1 < nst: lds_.append(("buffer_load_dwordx4 %s, v%d, %s, s%d offen offset:%d %s" % (vr(d), 16+st, WS, 32 + pp//2, (pp % 2)*2048, ld), ("a", tau, pp)))
                else:
                    for e in range(2): lds_.append(("buffer_load_dwordx2 %s, v%d, %s, s%d offen offset:%d %s" % (vr(d+2*e, 2), 18+st, WS, 32 + pp//2, (pp % 2)*2048 + e*(512 if p5 else 128), ld), ("a", tau, pp)))
        return o_, lds_
    def emit_act(tau):
        a, b = act_loads(tau)
        C("\n".join(a))
        for s, t in b: C(s); C.issue(t)
    def reads(gp):
        b = WF + (gp % 3)*20
        if p5: sl, off = (50 + gp//4) % 4, (gp % 4)*9216
        else: sl, off = (gp >> 1, ROWH + (gp & 1)*9216) if gp < 8 else (3, SLOT)
        return ["ds_read_b128 %s, v%d offset:%d" % (vr(b+4*j), 12 + sl, off + j*1024) for j in range(4)] + ["ds_read_b128 %s, v%d offset:%d" % (vr(b+16), 20 + sl, off + 8192)]
    C("s_barrier")
    stamp(C, diag, uid+"Y")
    emit_act(0)
    for s in reads(0) + reads(1): C(s)
    emit_act(1)
    if not p5:
        emit_act(2)
        C("s_lshl_b32 s42, s23, 3\ns_add_u32 s42, s42, s24\ns_lshl_b32 s42, s42, 2\ns_add_u32 s42, s42, s%d\ns_lshl_b32 s42, s42, 8\ns_add_u32 s42, s42, s%d\ns_add_u32 s42, s42, 0x%x" % (sW, sLB, WS_ZS))
        C("v_mov_b32 v%d, -1.0\nv_lshrrev_b32 v%d, 2, v1\nbuffer_store_dword v%d, v%d, %s, s42 offen sc1" % (T, T+1, T, T+1, WS)); C.issue("zi")
    flag_addr(C, SIG, F_P5 if p5 else F_P2, 44)
    stamp(C, diag, uid+"iss")
    for gp in range(npair):
        tau, pp = gp // 4, gp % 4; b = WF + (gp % 3)*20; aw = AW + ((tau % 3)*8 + 2*pp)*4
        order = [(a, st) for a in range(5) for st in (1, 0)] if gp + 1 < npair else [(a, st) for st in (1, 0) for a in range(5)]
        mm = [mfma(ACC + 20*st + 4*a, b + 4*a, aw + 4*st, 'z' if (gp == 0 and st == 1) else None) for a, st in order]
        newstage = p5 and gp + 2 < npair and (gp + 2) % 4 == 0
        n = C.vmn(("a", tau, pp))
        if newstage: ex = [(-1, "s_waitcnt vmcnt(%d) lgkmcnt(0)" % n), (-1, "s_barrier")]
        else: ex = [(-1, "s_waitcnt vmcnt(%d) lgkmcnt(%d)" % (n, 5 if gp + 1 < npair else 0))]
        if gp + 2 < npair:
            for i, s in enumerate(reads(gp+2)): ex.append((i, s))
        if p5 and tau + 2 < nst:
            a, bl = act_loads(tau + 2)
            if pp == 0:
                for s in a: ex.append((0, s))
            m_ = len(bl)//4
            for i, (s, t) in enumerate(bl[m_*pp:m_*pp+m_]): ex.append((5 + (4//m_)*i, s)); C.issue(t)
        for s in interleave(mm, ex): C(s)
        stamp(C, diag, uid+"g%d" % gp)
    stamp(C, diag, uid+"gemm")
    for a in range(4): C("ds_write_b128 v2, %s offset:%d" % (vr(ACC+20+4*a), 1024*a))
    C("s_mov_b64 exec, s[40:41]\nds_write_b128 v3, %s offset:4096\ns_mov_b64 exec, -1\nds_write_b32 v0, v9" % vr(ACC+36))
    C("s_mov_b32 s60, %d" % (SPIN*16))
    C.lab("L_px_" + uid)
    C("ds_read_b32 v%d, v6" % T)
    for a in range(4): C("ds_read_b128 %s, v7 offset:%d" % (vr(WF+4*a), 1024*a))
    C("ds_read_b128 %s, v8 offset:4096" % vr(WF+16))
    C("s_waitcnt lgkmcnt(5)\nv_cmp_ne_u32 vcc, s43, v%d\ns_sub_u32 s60, s60, 1\ns_cbranch_scc1 L_py_%s\ns_cbranch_vccnz L_px_%s" % (T, uid, uid))
    C.lab("L_py_" + uid)
    for a in range(5):
        C("s_waitcnt lgkmcnt(%d)" % (4-a))
        for p in range(2): C("v_pk_add_f32 %s, %s, %s" % (vr(ACC+4*a+2*p, 2), vr(ACC+4*a+2*p, 2), vr(WF+4*a+2*p, 2)))
        for p in range(2): C("v_cvt_pk_bf16_f32 v%d, v%d, v%d" % (RR+2*a+p, ACC+4*a+2*p, ACC+4*a+2*p+1))
    lab = "L_fin_" + uid
    if p5: C("s_cmp_eq_u32 s%d, 1\ns_cbranch_scc1 %s" % (sLAY, lab))
    for p in range(2): C("buffer_store_dwordx4 %s, v4, %s, s34 offen offset:%d %s" % (vr(RR+4*p), WS, 1024*p, stf))
    C("buffer_store_dwordx2 %s, v5, %s, s34 offen %s" % (vr(RR+8, 2), WS, stf))
    C("v_cndmask_b32 v%d, 0, v%d, s[40:41]\nv_cndmask_b32 v%d, 0, v%d, s[40:41]" % (T+2, RR+8, T+3, RR+9))
    for i in range(10):
        r_ = RR+i if i < 8 else T+2+(i-8)
        C("v_dot2_f32_bf16 v%d, v%d, v11, %s\nv_dot2_f32_bf16 v%d, v%d, v%d, %s" % (T, r_, "v%d" % T if i else "0", T+1, r_, r_, "v%d" % (T+1) if i else "0"))
    C("s_nop 2")
    xsum_q_multi(C, [T, T+1], [T+2, T+3])
    C("buffer_store_dwordx2 %s, v10, %s, s39 offen %s" % (vr(T, 2), WS, stf))
    stamp(C, diag, uid+"end")
    if p5:
        C = Stream()
        C.lab(lab)
        for p in range(2): C("buffer_store_dwordx4 %s, v4, %s, s34 offen offset:%d %s" % (vr(RR+4*p), OUT, 64*p, o.get("stout", "")))
        C("buffer_store_dwordx2 %s, v5, %s, s34 offen offset:128 %s" % (vr(RR+8, 2), OUT, o.get("stout", "")))
        stamp(C, diag, uid+"end")
        return C
def proj1(C, kind, o, diag=None):
    p5 = kind == 5
    uid = "p%d" % kind
    npair = 36 if p5 else 9
    nst = 9 if p5 else 3
    ppst = lambda n: 4 if (p5 or n < 2) else 1
    ACT, RES = (WS_H, WS_XB) if p5 else (WS_O, WS_XA)
    rts = 73728 if p5 else 18432
    ld = o.get("ld", ""); stf = o.get("st", "")
    ho = p5 and o.get("hoist5", 0)
    ACC = 16; WF = 40; AW = 112; RR = 208; T = 220
    proj_coords(C, o)
    C("s_lshl_b32 s30, s23, 2\ns_add_u32 s30, s30, s%d" % sW)
    C("s_mul_i32 s29, s30, %d\ns_add_u32 s29, s29, s%d\ns_add_u32 s29, s29, 0x%x" % (rts, sLB, ACT))
    C("s_mul_i32 s34, s30, 18432\ns_add_u32 s34, s34, s%d\ns_add_u32 s34, s34, 0x%x" % (sLB, RES))
    C("s_lshl_b32 s35, s24, 11")
    C("s_lshr_b32 s36, s24, 2\ns_lshl_b32 s36, s36, 10\ns_and_b32 s37, s24, 3\ns_lshl_b32 s37, s37, 8\ns_add_u32 s36, s36, s37\ns_add_u32 s36, s36, 16384")
    C(vR(2)); C(vQ(3))
    C("v_add_u32 v4, s35, v1")
    C("v_lshlrev_b32 v5, 4, v2\nv_lshl_add_u32 v5, v3, 3, v5\nv_add_u32 v5, s36, v5")
    C("v_cmp_gt_u32 s[40:41], 2, v3\nv_bfrev_b32 v6, 1")
    for i in range(4): C("v_add_u32 v%d, %d, v1" % (12+i, SLOT*i))
    C("v_cndmask_b32 v5, v6, v5, s[40:41]")
    for p in range(2): C("buffer_load_dwordx4 %s, v4, %s, s34 offen offset:%d %s" % (vr(RR+4*p), WS, 1024*p, ld))
    C("buffer_load_dwordx2 %s, v5, %s, s34 offen %s" % (vr(RR+8, 2), WS, ld))
    C("s_add_u32 s34, s34, 0x%x" % ((LAYER_STRIDE + WS_XA - WS_XB) if p5 else (WS_XB - WS_XA)))
    C("s_lshl_b32 s39, s30, 10\ns_add_u32 s39, s39, s%d\ns_lshl_b32 s42, s24, 7\ns_add_u32 s39, s39, s42\ns_add_u32 s39, s39, 0x%x" % (sLB, LAYER_STRIDE + WS_STA if p5 else WS_STB))
    C("v_cmp_eq_u32 vcc, 0, v3\nv_lshlrev_b32 v10, 3, v2\nv_mov_b32 v11, 0x3f803f80")
    if p5: C("v_lshrrev_b32 v7, 1, v1")
    else: C("v_lshl_add_u32 v7, v3, 8, v10")
    C("v_cndmask_b32 v10, v6, v10, vcc")
    if p5:
        C("s_cmp_eq_u32 s%d, 0\ns_cbranch_scc1 L_p5_nf" % sLAY)
        C("v_mul_u32_u24 v9, 1152, v2\ns_mul_i32 s34, s30, %d\ns_mul_i32 s42, s24, 144\ns_add_u32 s34, s34, s42" % (16*1152))
        C("v_lshl_add_u32 v4, v3, 4, v9\nv_lshl_add_u32 v5, v3, 3, v9\nv_cndmask_b32 v5, v6, v5, s[40:41]")
        C.lab("L_p5_nf")
    C("s_lshr_b32 s44, s23, 1")
    flag_addr(C, POL, F_P4 if p5 else F_P1, 44)
    def mid():
        for i in range(10):
            C("v_lshlrev_b32 v%d, 16, v%d\nv_and_b32 v%d, 0xffff0000, v%d" % (ACC+2*i, RR+i, ACC+2*i+1, RR+i))
    rl = o.get("reslate", 1)
    edge(C, "d%d" % kind, [POL], o, diag, None if rl else mid, keep=3 if rl else 0)
    if rl: C.vm = ["res"]*3
    def act_loads(tau):
        o_ = hoist_sel(C, 32, tau, 8, 25, tau < 8 and ho) + ["s_lshl_b32 s32, s32, 13", "s_add_u32 s32, s32, s29", "s_add_u32 s33, s32, 4096"]
        lds_ = []
        for j in range(2*ppst(tau)):
            d = AW + ((tau % 3)*8 + j)*4
            if tau + 1 < nst: lds_.append(("buffer_load_dwordx4 %s, v1, %s, s%d offen offset:%d %s" % (vr(d), WS, 32 + j//4, (j % 4)*1024, ld), ("a", tau, j//2)))
            else:
                for e in range(2): lds_.append(("buffer_load_dwordx2 %s, v7, %s, s%d offen offset:%d %s" % (vr(d+2*e, 2), WS, 32 + j//4, (j % 4)*1024 + e*(512 if p5 else 128), ld), ("a", tau, j//2)))
        return o_, lds_
    def emit_act(tau):
        a, b = act_loads(tau)
        C("\n".join(a))
        for s, t in b: C(s); C.issue(t)
    def reads(gp):
        b = WF + (gp % 2)*36
        if p5: sl, off = (50 + gp//4) % 4, (gp % 4)*9216
        else: sl, off = (gp >> 1, ROWH + (gp & 1)*9216) if gp < 8 else (3, SLOT)
        return ["ds_read_b128 %s, v%d offset:%d" % (vr(b+4*j), 12 + sl, off + j*1024) for j in (0,1,2,3,8,4,5,6,7)]
    C("s_barrier")
    stamp(C, diag, uid+"Y")
    emit_act(0)
    for s in reads(0): C(s)
    emit_act(1)
    if not p5:
        emit_act(2)
        C("s_lshl_b32 s42, s23, 3\ns_add_u32 s42, s42, s24\ns_lshl_b32 s42, s42, 2\ns_add_u32 s42, s42, s%d\ns_lshl_b32 s42, s42, 8\ns_add_u32 s42, s42, s%d\ns_add_u32 s42, s42, 0x%x" % (sW, sLB, WS_ZS))
        C("v_mov_b32 v%d, -1.0\nv_lshrrev_b32 v%d, 2, v1\nbuffer_store_dword v%d, v%d, %s, s42 offen sc1" % (T, T+1, T, T+1, WS)); C.issue("zi")
    flag_addr(C, SIG, F_P5 if p5 else F_P2, 44)
    if rl: C("s_waitcnt vmcnt(%d)" % C.vmn("res")); mid()
    stamp(C, diag, uid+"iss")
    for gp in range(npair):
        tau, pp = gp // 4, gp % 4; b = WF + (gp % 2)*36; aw = AW + ((tau % 3)*8 + 2*pp)*4
        mm = []
        for e in range(2):
            for a in range(4): mm.append(mfma(ACC+4*a, b+16*e+4*a, aw+4*e))
            mm.append(mfma(ACC+16+4*e, b+32, aw+4*e, 'z' if (gp == 0 and e == 1) else None))
        ex = []
        newstage = p5 and gp + 1 < npair and (gp + 1) % 4 == 0
        n = C.vmn(("a", tau, pp))
        if newstage: ex += [(-1, "s_waitcnt vmcnt(%d) lgkmcnt(0)" % n), (-1, "s_barrier")]
        else: ex += [(-1, "s_waitcnt vmcnt(%d) lgkmcnt(4)" % n)]
        if gp + 1 < npair:
            for i, s in enumerate(reads(gp+1)): ex.append((i, s))
            if not newstage: ex.append((4, "s_waitcnt lgkmcnt(5)"))
        else: ex.append((4, "s_waitcnt lgkmcnt(0)"))
        if p5 and tau + 2 < nst:
            a, bl = act_loads(tau + 2)
            if pp == 0:
                for s in a: ex.append((0, s))
            m_ = len(bl)//4
            for i, (s, t) in enumerate(bl[m_*pp:m_*pp+m_]): ex.append((2 + (8//m_)*i, s)); C.issue(t)
        for s in interleave(mm, ex): C(s)
        stamp(C, diag, uid+"g%d" % gp)
    stamp(C, diag, uid+"gemm")
    C("s_nop 3")
    for i in range(8): C("v_cvt_pk_bf16_f32 v%d, v%d, v%d" % (RR+i, ACC+2*i, ACC+2*i+1))
    lab = "L_fin_" + uid
    def half():
        for j in range(4): C("v_permlane32_swap_b32 v%d, v%d" % (ACC+20+j, T+j))
        C("v_pk_add_f32 %s, %s, %s\nv_pk_add_f32 %s, %s, %s" % (vr(ACC+16,2), vr(ACC+16,2), vr(T,2), vr(ACC+18,2), vr(ACC+18,2), vr(T+2,2)))
        for i in (8, 9): C("v_cvt_pk_bf16_f32 v%d, v%d, v%d" % (RR+i, ACC+2*i, ACC+2*i+1))
    if p5: C("s_cmp_eq_u32 s%d, 1\ns_cbranch_scc1 %s" % (sLAY, lab))
    for p in range(2): C("buffer_store_dwordx4 %s, v4, %s, s34 offen offset:%d %s" % (vr(RR+4*p), WS, 1024*p, stf))
    half()
    C("buffer_store_dwordx2 %s, v5, %s, s34 offen %s" % (vr(RR+8, 2), WS, stf))
    C("v_cndmask_b32 v%d, 0, v%d, s[40:41]\nv_cndmask_b32 v%d, 0, v%d, s[40:41]" % (T+2, RR+8, T+3, RR+9))
    for i in range(10):
        r_ = RR+i if i < 8 else T+2+(i-8)
        C("v_dot2_f32_bf16 v%d, v%d, v11, %s\nv_dot2_f32_bf16 v%d, v%d, v%d, %s" % (T, r_, "v%d" % T if i else "0", T+1, r_, r_, "v%d" % (T+1) if i else "0"))
    C("s_nop 2")
    xsum_q_multi(C, [T, T+1], [T+2, T+3])
    C("buffer_store_dwordx2 %s, v10, %s, s39 offen %s" % (vr(T, 2), WS, stf))
    stamp(C, diag, uid+"end")
    if p5:
        fin = Stream(); Cs = C; C = fin
        C.lab(lab)
        for p in range(2): C("buffer_store_dwordx4 %s, v4, %s, s34 offen offset:%d %s" % (vr(RR+4*p), OUT, 64*p, o.get("stout", "")))
        half()
        C("buffer_store_dwordx2 %s, v5, %s, s34 offen offset:128 %s" % (vr(RR+8, 2), OUT, o.get("stout", "")))
        stamp(C, diag, uid+"end")
        return fin
```

```python
from gen_common import *
F_P1, F_P2, F_P4, F_P5, F_Z2 = 0, 1, 2, 3, 4
SLOT, ROWH, TOP = 36864, 18432, 147456
def flag_addr(k, sd, kind, sgroup, back=0):
    assert back == "prep" or sd != sgroup
    if back == "prep": k("s_lshl_b32 s%d, s%d, 8\ns_add_u32 s%d, s%d, 0x%x" % (sd, sgroup, sd, sd, WS_FLAG + kind*16*256))
    else: k("s_lshl_b32 s%d, s%d, 7\ns_add_u32 s%d, s%d, s%d\ns_lshl_b32 s%d, s%d, 8\ns_add_u32 s%d, s%d, 0x%x" % (
        sd, sLAY, sd, sd, sgroup, sd, sd, sd, sd, WS_FLAG + kind*16*256 + (1-back)*32768))
    k("s_add_u32 s%d, s%d, s4\ns_addc_u32 s%d, s5, 0" % (sd, sd, sd+1))
SPIN = 1 << 18
def ssignal(k, sa, st=56):
    k("s_mov_b32 s%d, 1\ns_atomic_add s%d, s[%d:%d], 0" % (st, st, sa, sa+1))
def spoll(k, uid, addrs, sleep=4, st=57, sCnt=60, target=16, load=False):
    k("s_mov_b32 s%d, %d" % (sCnt, SPIN))
    k.lab("L_poll_%s" % uid)
    for i, sa in enumerate(addrs):
        sa, off = sa[:2] if isinstance(sa, tuple) else (sa, 0)
        if load: k("s_load_dword s%d, s[%d:%d], %d glc" % (st+i, sa, sa+1, off))
        else: k("s_mov_b32 s%d, 0\ns_atomic_add s%d, s[%d:%d], %d glc" % (st+i, st+i, sa, sa+1, off))
    k("s_waitcnt lgkmcnt(0)")
    for i, sa in enumerate(addrs):
        if isinstance(sa, tuple) and len(sa) > 2: k("s_cmp_ge_u32 s%d, %d\ns_cselect_b32 s%d, %d, 0" % (st+i, sa[2], st+i, target))
    for i in range(1, len(addrs)): k("s_min_u32 s%d, s%d, s%d" % (st, st, st+i))
    k("s_cmp_ge_u32 s%d, %d\ns_cbranch_scc1 L_pd_%s" % (st, target, uid))
    k("s_sub_u32 s%d, s%d, 1\ns_cbranch_scc1 L_pd_%s" % (sCnt, sCnt, uid))
    if sleep: k("s_sleep %d" % sleep)
    k("s_branch L_poll_%s" % uid)
    k.lab("L_pd_%s" % uid)
def vpoll(k, uid, srd_, soff, vOff, vT, target, sleep=4, sCnt=60):
    k("s_mov_b32 s%d, %d" % (sCnt, SPIN))
    k.lab("L_poll_%s" % uid)
    k("buffer_load_dword v%d, v%d, %s, %s offen sc1\ns_waitcnt vmcnt(0)" % (vT, vOff, srd_, soff))
    k("v_cmp_gt_u32 vcc, %d, v%d\ns_sub_u32 s%d, s%d, 1\ns_cbranch_scc1 L_pd_%s\ns_cbranch_vccz L_pd_%s" % (target, vT, sCnt, sCnt, uid, uid))
    k("s_sleep %d\ns_branch L_poll_%s" % (sleep, uid))
    k.lab("L_pd_%s" % uid)
SIG, POL, POL2 = 50, 52, 54
def edge(C, uid, polls, o, diag=None, mid=None, sig=None, keep=0):
    stamp(C, diag, uid+"a")
    C("s_waitcnt vmcnt(%d)\ns_barrier" % keep); C.vm = []
    stamp(C, diag, uid+"X")
    C("s_cmp_lg_u32 s%d, 0\ns_cbranch_scc1 L_ns_%s" % (sW, uid))
    if sig: sig()
    else: ssignal(C, SIG)
    C.lab("L_ns_%s" % uid)
    if mid: mid()
    C("s_cmp_lg_u32 s%d, 0\ns_cbranch_scc1 L_pd_%s" % (sW, uid))
    spoll(C, uid, polls, sleep=o.get("sleep", 2))
def xsum_q(k, v, t, op="v_add_f32"):
    k("v_mov_b32 v%d, v%d\ns_nop 1\nv_permlane32_swap_b32 v%d, v%d\n%s v%d, v%d, v%d" % (t, v, v, t, op, v, v, t))
    k("v_mov_b32 v%d, v%d\ns_nop 1\nv_permlane16_swap_b32 v%d, v%d\n%s v%d, v%d, v%d" % (t, v, v, t, op, v, v, t))
def xsum_q_multi(k, vs, ts, op="v_add_f32"):
    for swp in ("v_permlane32_swap_b32", "v_permlane16_swap_b32"):
        for v, t in zip(vs, ts): k("v_mov_b32 v%d, v%d" % (t, v))
        if len(vs) < 3: k("s_nop 1")
        for v, t in zip(vs, ts): k("%s v%d, v%d" % (swp, v, t))
        for v, t in zip(vs, ts): k("%s v%d, v%d, v%d" % (op, v, v, t))
def hoist_sel(k, sd, tau, n, scls, on):
    if on == 2: return ["s_and_b32 s%d, s%d, 1" % (sd, scls), "s_lshl_b32 s%d, s%d, 2" % (sd, sd), "s_xor_b32 s%d, s%d, %d" % (sd, sd, tau)]
    nxt = tau + 4 if tau + 4 < n else tau % 4
    if on and nxt != tau: return ["s_cmp_eq_u32 s%d, %d" % (scls, tau % 4), "s_cselect_b32 s%d, %d, %d" % (sd, nxt, tau)]
    return ["s_mov_b32 s%d, %d" % (sd, tau)]
def vR(d): return "v_bfe_u32 v%d, v1, 4, 4" % d
def vQ(d): return "v_lshrrev_b32 v%d, 8, v1" % d
class Filler:
    def __init__(self): self.q = []
    def add(self, s): self.q += [l.strip() for l in (s.split("\n") if isinstance(s, str) else s) if l.strip()]
    def take(self, slots):
        out = []; assert list(slots) == sorted(slots)
        for p in slots:
            if not self.q: break
            out.append((p, self.q.pop(0)))
            while self.q and (self.q[0].endswith(":") or self.q[0].startswith(";")): out.append((p, self.q.pop(0)))
        return out
```

```python
import sys
from ph_prep import *
from ph_proj import *
from ph_attn import *
from ph_gmlp import *
HEADER = """; Generated by dev/gen.py (hand-written generator): LN+local attention / LN+gMLP x2 on gfx950.
; kernarg: x, wqkv, wo, (B_x unused), w_in, w_sp, b_sp, w_out, out, debug, ws"""
def mega(o={}, diag=None, name="mega_kernel"):
    o = dict(dict(ld="sc1", st="sc1"), **o)
    k = Kern(name, 256, 512, lds=163840, vgpr=256)
    k("s_cmp_ge_u32 s2, 256\ns_cbranch_scc1 L_end_m")
    stamp(k, diag, "start")
    k("s_load_dwordx16 s[36:51], s[0:1], 0\ns_load_dwordx4 s[56:59], s[0:1], %d\ns_load_dwordx2 s[24:25], s[0:1], %d" % (KA_OUT, KA_WS))
    if o.get("codepf", 1):
        k("s_getpc_b64 s[26:27]")
        k.lab("L_m_pc")
        k("s_sub_u32 s26, s26, L_m_pc-%s\ns_subb_u32 s27, s27, 0\nv_lshlrev_b32 v4, 4, v0\nv_mov_b32 v5, s27" % name)
        k("v_add_co_u32 v6, vcc, s26, v4\ns_lshr_b32 s28, s2, 3\ns_lshl_b32 s28, s28, 11\nv_addc_co_u32 v7, vcc, 0, v5, vcc")
        k("global_load_dwordx4 v[60:63], v[6:7], off")
        k("v_lshl_add_u32 v4, v0, 2, s28\nv_min_u32 v4, L_end_m-%s-4, v4" % name)
        k("v_add_co_u32 v6, vcc, s26, v4\ns_nop 1\nv_addc_co_u32 v7, vcc, 0, v5, vcc")
        k("global_load_dword v64, v[6:7], off")
    k("v_lshrrev_b32 v2, 6, v0\nv_and_b32 v1, 63, v0\nv_lshlrev_b32 v1, 4, v1\nv_readfirstlane_b32 s23, v2")
    k("s_mov_b32 s%d, 0\ns_mov_b32 s%d, 0\ns_and_b32 s%d, s23, 3" % (sLAY, sLB, sW))
    k("s_waitcnt lgkmcnt(0)")
    srd(k, 4, 24, WS_BYTES); srd(k, 8, 46, 2048*4096); srd(k, 12, 48, 4096); srd(k, 16, 56, 2048*1152)
    k("s_cmp_ge_u32 s23, 4\ns_cbranch_scc1 L_ld_m")
    C, L = Stream(), Stream()
    def dflush(st, uid, lo, n):
        st("s_cmp_lg_u32 s2, %d\ns_cbranch_scc1 L_df_%s\ns_cmp_lg_u32 s%d, 0\ns_cbranch_scc1 L_df_%s" % (o["dbgwg"], uid, sW, uid))
        st("s_load_dwordx2 s[58:59], s[0:1], %d\ns_waitcnt lgkmcnt(0)" % KA_DBG)
        if lo == 1: st("s_mov_b32 s3, s62")
        srd(st, 24, 58, 256)
        st("v_mov_b32 v17, 0")
        for i in range(n):
            st("s_sub_u32 s61, s%d, s3\nv_mov_b32 v16, s61\nbuffer_store_dword v16, v17, s[24:27], 0 offen offset:%d\ns_waitcnt vmcnt(0)" % (62 + 2*(len(diag) - n + i), 4*(lo + i)))
        st.lab("L_df_%s" % uid)
    def flush(st, slot, uid):
        if "padto" in o:
            if uid == "c0":
                st("s_waitcnt lgkmcnt(0)\ns_mov_b32 s3, s%d" % (62 if o.get("padlayer", 0) else 64))
            if uid == "c1":
                st("s_waitcnt lgkmcnt(0)")
                if o.get("padlayer", 0): st("s_mov_b32 s3, s64")
                st("s_add_u32 s3, s3, %d" % o["padto"])
                st.lab("L_pad")
                st("s_memrealtime s[62:63]\ns_waitcnt lgkmcnt(0)\ns_sub_u32 s61, s62, s3\ns_cmp_lt_i32 s61, 0\ns_cbranch_scc1 L_pad")
            return
        if "dbgwg" in o:
            if uid == "c0": dflush(st, uid, 1, len(diag) - 1)
            if uid == "c1": dflush(st, uid, len(diag), 1)
            return
        if diag and (st is not L or any(x.startswith("L") for x in diag)):
            st("s_add_u32 s61, s%d, %d" % (sLAY, slot)); stamp_flush(st, diag, 61, uid, vt=16, wait=(st is L))
    nextlayer = "s_mov_b32 s%d, 1\ns_mov_b32 s%d, 0x%x" % (sLAY, sLB, LAYER_STRIDE)
    if o.get('p2x', 0) or o.get('p5x', 0): C("v_mov_b32 v2, %d\nv_mov_b32 v4, 0\nv_mov_b32 v5, 0\nds_write2_b64 v2, v[4:5], v[4:5] offset0:0 offset1:1\ns_waitcnt lgkmcnt(0)" % L_PF)
    prep_C(C, o, diag)
    C("s_branch L_m_cl"); nC0 = len(C.L)
    C.lab("L_m_cl")
    attn(C, o, diag, prep_signal); n1 = C.nbar
    (proj if o.get('p2x', 0) else proj1)(C, 2, o, diag); gmlp(C, o, diag)
    fin = (proj if o.get('p5x', 0) else proj1)(C, 5, o, diag)
    stamp(C, diag, "drain"); flush(C, 0, "c0"); stamp(C, diag, "start")
    C(nextlayer + "\ns_branch L_m_cl")
    if diag: fin("s_waitcnt vmcnt(0)"); stamp(fin, diag, "drain"); flush(fin, 0, "c1")
    fin("s_endpgm")
    zero_counters(L)
    prep_L(L, o, diag)
    L("s_branch L_m_l1"); nL0 = len(L.L); L.lab("L_m_l1")
    a0 = P1L(L, o); a0.setup(0); a0.main(lambda us: prep_L_store(L, o, us), (lambda: prep_L_tr(L)) if o.get('p0late', 1) else None); assert L.nbar == n1
    L.lab("L_m_ll"); L.vm = []
    p3, p5, a1 = P3L(L, o), P5L(L, o), P1L(L, o)
    p2_loader(L, o, diag, p3.pre)
    p3.main(diag, p5)
    sched = o.get("p1pre", {7: [7, 0, 1], 8: [2, 3]})
    def tail(m):
        if m == 6:
            L("s_cmp_eq_u32 s%d, 1\ns_cbranch_scc1 L_m_lfin" % sLAY)
            a1.setup(1)
        a1.issue([("g", g) for g in sched.get(m, [])])
    p5.main(diag, tail)
    assert L.nbar == C.nbar, (L.nbar, C.nbar)
    flush(L, 2, "l0")
    L(nextlayer + "\ns_barrier\ns_barrier")
    a1.issue([t for t in [("g", g) for g in range(8)] + ["cs"] if t not in o.get("p1post", [])])
    stamp(L, diag, "Lp1pre")
    a1.main()
    L("s_branch L_m_ll")
    L.lab("L_m_lfin")
    L("s_waitcnt vmcnt(0) lgkmcnt(0)\ns_barrier\ns_barrier")
    flush(L, 2, "l1")
    k.L += C.L[:nC0] + C.tail0
    k.lab("L_ld_m"); k.L += L.L[:nL0]
    k.L += C.L[nC0:] + fin.L + C.tail + L.L[nL0:]
    k.lab("L_end_m"); k("s_endpgm")
    return [k]
if __name__ == "__main__":
    out = sys.argv[1] if len(sys.argv) > 1 else "mega.s"
    o = eval(sys.argv[2]) if len(sys.argv) > 2 else {}
    NAME = "interleave_layers__sliding_local_dilated__mixer_gmlp__prompt_kernel"
    txt = build(mega(o, name=NAME, diag=o.get('diag', '').split() or None), HEADER)
    if not o.get("list"): txt = txt.replace("; @launch kernel=%s " % NAME, "; @launch ")
    open(out, "w").write(txt)
```

```python
from ph_sync import *
from ph_attn import row_stats
import math
L_CS3, L_SC3 = 159744, TOP
def gmlp_coords(k, o):
    k("s_and_b32 s25, s2, 7\ns_lshr_b32 s26, s2, 3")
    a, b = (23, 24) if o.get("gmap", 0) == 0 else (24, 23)
    k("s_and_b32 s%d, s25, 1\ns_lshl_b32 s%d, s%d, 3\ns_and_b32 s27, s26, 7\ns_add_u32 s%d, s%d, s27" % (a, a, a, a, a))
    k("s_lshr_b32 s%d, s25, 1\ns_lshl_b32 s%d, s%d, 2\ns_lshr_b32 s27, s26, 3\ns_add_u32 s%d, s%d, s27" % (b, b, b, b, b))
    k("s_add_u32 s28, s23, s24\ns_and_b32 s28, s28, 3")
class P3L:
    def __init__(s, L, o): s.L = L; s.o = o
    def col(s, sg, sn, base, add, fl):
        L = s.L; sl = sg % 4
        L("s_mul_i32 s50, s%d, 18432\ns_add_u32 s50, s50, s%d" % (sn, base))
        if add: L("s_add_u32 s50, s50, %d" % add)
        if sg % 2 == 1:
            L("s_cmp_ge_u32 s%d, 2\ns_cselect_b32 s52, s50, s53\ns_add_u32 m0, s31, %d\ns_add_u32 s52, s52, s49" % (sW, (sl-1)*SLOT))
            L("buffer_load_dwordx4 v1, %s, s52 offen %s lds" % (WS, fl)); L.issue(("f", sg))
        L("s_add_u32 m0, s30, %d\ns_mov_b32 s53, s50" % (sl*SLOT))
        for j in range(4): L("buffer_load_dwordx4 v1, %s, s50 offen offset:%d %s lds" % (WS, 1024*j, fl)); L.issue(("c", sg))
    def col3(s, sg):
        s.L("s_mov_b32 s48, %d" % s.ks(sg)); s.col(sg, 48, 34, (sg // 9)*9*18432, "")
    def ks(s, sg):
        return sg if sg < 9 else ((sg - 4) % 9 if s.o.get("xkeep", 1) else sg - 9)
    def xsave(s, m):
        if s.o.get("xkeep", 1) == 2 and m < 5:
            for j in range(4): s.L("ds_read_b128 %s, v%d offset:%d" % (vr(100 + 16*m + 4*j), 6 + (m % 4)//2, (m % 2)*SLOT + 1024*j))
    def row3(s, sg):
        L = s.L
        xk = s.o.get("xkeep", 1)
        if xk and 9 <= sg < 13: return
        if xk == 2 and sg >= 13:
            for j in range(4): L("ds_write_b128 v%d, %s offset:%d" % (6 + (sg % 4)//2, vr(100 + 16*(sg-13) + 4*j), (sg % 2)*SLOT + 1024*j))
            return
        L("s_add_u32 m0, s30, %d\ns_add_u32 s51, s35, %d" % (ROWH + (sg % 4)*SLOT, 2048*s.ks(sg)))
        for j in range(4): L("buffer_load_dwordx4 v%d, %s, s51 offen offset:%d %s lds" % (1 + j//2, WS, 1024*j, s.o.get("ld", ""))); L.issue(("r", sg))
    def col4(s, sg): s.col(sg, 44 + (sg - 18) % 4, 36, 0, s.o.get("ld", ""))
    def row4(s, sg):
        L = s.L
        L("s_add_u32 m0, s30, %d\ns_lshl_b32 s51, s%d, 7" % (ROWH + (sg % 4)*SLOT, 44 + (sg - 18) % 4))
        for j in range(4): L("buffer_load_dwordx4 v%d, %s, s51 offen offset:%d %s lds" % (8+j, WSP, 1024*j, s.o.get("ldsp", ""))); L.issue(("r", sg))
    def adv4(s, sg):
        sn = 44 + (sg - 18) % 4
        s.L("s_add_u32 s%d, s%d, 4\ns_and_b32 s%d, s%d, %d" % (sn, sn, sn, sn, s.o.get("p4mask", 31)))
    def rec_load(s):
        for i in range(4): s.L("buffer_load_dwordx4 %s, v3, %s, s29 offen offset:%d sc1" % (vr(72+4*i), WS, 1024*i)); s.L.issue("rec")
    def rec_stats(s):
        L = s.L
        if s.o.get("lprio", 0): L("s_setprio 2")
        L("s_mov_b32 s60, %d\ns_waitcnt vmcnt(%d)" % (SPIN, L.vmn("rec") if "rec" in L.vm else 63))
        L.lab("L_g_chk")
        L("v_or3_b32 v88, v73, v75, v77\nv_or3_b32 v89, v79, v81, v83\nv_or3_b32 v88, v85, v87, v88\nv_or_b32 v88, v88, v89\nv_cmp_gt_i32 vcc, 0, v88")
        L("s_sub_u32 s60, s60, 1\ns_cbranch_scc1 L_g_ok\ns_cbranch_vccz L_g_ok")
        keep = list(L.vm); s.rec_load(); L.vm = keep
        L("s_waitcnt vmcnt(0)\ns_branch L_g_chk")
        L.lab("L_g_ok")
        for i in range(4): L("v_add_f32 v%d, v%d, v%d\nv_add_f32 v%d, v%d, v%d" % (72+i, 72+i, 76+i, 80+i, 80+i, 84+i))
        for i in range(4): L("v_add_f32 v%d, v%d, v%d" % (72+i, 72+i, 80+i))
        for ctl in ("row_ror:4", "row_ror:8"):
            for i in range(4): L("v_add_f32_dpp v%d, v%d, v%d %s row_mask:0xf bank_mask:0xf" % (72+i, 72+i, 72+i, ctl))
        for i in range(4): L("v_mul_f32 v%d, 0x%x, v%d" % (72+i, f2u(1/2304), 72+i))
        L("v_fma_f32 v73, -v72, v72, v73\nv_fma_f32 v75, -v74, v74, v75\nv_max_f32 v73, 0, v73\nv_max_f32 v75, 0, v75")
        L("v_add_f32 v73, 0x%x, v73\nv_add_f32 v75, 0x%x, v75\nv_rsq_f32 v76, v73\nv_rsq_f32 v77, v75" % (f2u(1e-5), f2u(1e-5)))
        L("v_and_b32 v88, 0xff, v3\ns_lshl_b32 s33, s%d, 8\ns_add_u32 s33, s33, %d\nv_add_u32 v88, s33, v88" % (sW, L_SC3 + 1024))
        L("v_mul_f32 v78, v72, v76\nv_mul_f32 v79, v74, v77\nds_write_b128 v88, v[76:79]")
        if s.o.get("lprio", 0): L("s_setprio 0")
    def pre(s):
        L = s.L; o = s.o
        gmlp_coords(L, o)
        L("s_lshl_b32 s30, s%d, 12" % sW)
        L("s_lshr_b32 s33, s%d, 1\ns_mul_i32 s31, s33, %d\ns_and_b32 s33, s%d, 1\ns_lshl_b32 s33, s33, 10\ns_add_u32 s33, s33, 16384\ns_add_u32 s31, s31, s33\ns_sub_u32 s49, s33, s30" % (sW, SLOT, sW))
        L("s_mul_i32 s34, s24, %d\ns_add_u32 s34, s34, s30\ns_add_u32 s34, s34, 0x%x" % (18*18432, WS_WI))
        L("s_lshl_b32 s35, s23, 3\ns_lshl_b32 s33, s%d, 1\ns_add_u32 s35, s35, s33\ns_mul_i32 s35, s35, 18432\ns_add_u32 s35, s35, s%d\ns_add_u32 s35, s35, 0x%x" % (sW, sLB, WS_XB))
        L("s_mul_i32 s36, s24, %d\ns_add_u32 s36, s36, s30\ns_add_u32 s36, s36, s%d\ns_add_u32 s36, s36, 0x%x" % (64*9216, sLB, WS_Z2))
        L("v_add_u32 v2, %d, v1\ns_add_u32 s33, s30, %d\nv_add_u32 v6, s33, v1\nv_add_u32 v7, %d, v6" % (18432 - 2048, ROWH, 2*SLOT))
        L("s_lshl_b32 s29, s23, 2\ns_add_u32 s29, s29, s%d\ns_lshl_b32 s29, s29, 12\ns_add_u32 s29, s29, s%d\ns_add_u32 s29, s29, 0x%x" % (sW, sLB, WS_ZS))
        L("v_and_b32 v3, 48, v1\nv_lshrrev_b32 v8, 8, v1\nv_lshl_add_u32 v3, v8, 6, v3\nv_bfe_u32 v8, v1, 6, 2\nv_lshl_add_u32 v3, v8, 8, v3")
        L("s_lshl_b32 s33, s23, 7\ns_lshl_b32 s37, s%d, 5\ns_add_u32 s33, s33, s37" % sW)
        L("v_lshrrev_b32 v8, 7, v1\nv_add_u32 v8, s33, v8\nv_lshlrev_b32 v8, 12, v8")
        L("v_lshrrev_b32 v9, 8, v1\nv_bfe_u32 v10, v1, 4, 3\nv_xor_b32 v9, v9, v10\nv_lshl_add_u32 v8, v9, 4, v8")
        L("v_xor_b32 v9, 64, v8\nv_add_u32 v9, %d, v9" % (8*4096 - 1024))
        L("v_add_u32 v10, %d, v8\nv_add_u32 v11, %d, v9" % (16*4096 - 2048, 16*4096 - 2048))
        for m in range(4): L("s_cmp_eq_u32 s28, %d\ns_cselect_b32 s%d, %d, %d" % (m, 44+m, m + 4*o.get("hoist4", 1), m))
        L("s_lshl_b32 s33, s%d, 4\ns_add_u32 s33, s33, s24" % sW)
        flag_addr(L, 54, F_Z2, 33)
        L("s_mov_b32 s33, 0x%x\nv_and_b32 v4, 0xf0, v1\nv_lshlrev_b32 v4, 4, v4" % (WS_FLAG + F_P2*16*256))
        vpoll(L, "wr", WS, "s33", 4, 5, 16)
        L("s_min_u32 s33, s%d, 2\ns_lshl_b32 s33, s33, 9\nv_lshrrev_b32 v4, 1, v1\nv_add_u32 v4, s33, v4\ns_lshl_b32 s51, s24, 12\ns_add_u32 s51, s51, 0x%x" % (sW, WS_CSI))
        for h in range(2): L("buffer_load_dwordx2 %s, v4, %s, s51 offen offset:%d" % (vr(60+2*h, 2), WS, 1152*h)); L.issue("cs")
        for sg in range(o.get("p3pre", 2)): s.col3(sg)
        L("s_mov_b32 m0, %d\nv_lshrrev_b32 v5, 2, v1\ns_lshl_b32 s33, s23, 8\nbuffer_load_dword v5, %s, s33 offen lds" % (L_CS3 + 1536, BSP)); L.issue("b")
        L("s_waitcnt vmcnt(%d)\nv_add_u32 v4, %d, v4\nv_add_f32 v60, v60, v62\nv_add_f32 v61, v61, v63\nds_write_b64 v4, v[60:61]\ns_waitcnt lgkmcnt(0)" % (L.vmn("cs"), L_CS3))
    def main(s, diag, p5):
        L = s.L; o = s.o
        nd = lambda m: [("c", m), ("r", m), ("f", m | 1)]
        stamp(L, diag, "Lp3pre")
        n0 = o.get("p3pre", 2); n1 = n0 + o.get("p3R", 0)
        if n1 > n0:
            L("s_barrier")
            for sg in range(n0, n1): s.col3(sg)
        L("s_barrier")
        for sg in range(n1, 4): s.col3(sg)
        L("s_barrier")
        for sg in range(o.get("p3rows", 3)): s.row3(sg)
        L("s_waitcnt vmcnt(%d)\ns_barrier" % L.vmn(*nd(0)))
        for sg in range(o.get("p3rows", 3), 4): s.row3(sg)
        s.xsave(0)
        zb = o.get("zbar", 18); rows = [18, 19, 20]
        for m in range(1, 18):
            L("s_waitcnt vmcnt(%d) lgkmcnt(0)\ns_barrier" % L.vmn(*nd(m)))
            if m == zb: ssignal(L, 54)
            if m == o.get("lrec", 11): s.rec_load()
            lst = o.get("lrec", 11) and m == o.get("lrec", 11) + o.get("lrd", 1)
            if lst and o.get("lfirst", 0): s.rec_stats()
            if m + 3 < 18: s.col3(m+3); s.row3(m+3); s.xsave(m)
            elif m >= zb or not o.get("row4_late", 1):
                while rows and rows[0] <= m + 3: s.row4(rows.pop(0))
            if lst and not o.get("lfirst", 0): s.rec_stats()
            if m == o.get("warm_sp", 0):
                L("s_cmp_lg_u32 s%d, 0\ns_cbranch_scc1 L_g_nw\ns_lshl_b32 s33, s2, 15\ns_lshl_b32 s37, s%d, 13\ns_add_u32 s33, s33, s37\ns_add_u32 s37, s33, 4096" % (sLAY, sW))
                for j in range(8): L("buffer_load_dwordx4 %s, v1, %s, s%d offen offset:%d" % (vr(16+4*j), WSP, (33, 37)[j//4], (j % 4)*1024))
                L.lab("L_g_nw")
        if zb >= 18: L("s_barrier"); ssignal(L, 54)
        stamp(L, diag, "LZ")
        nr0, nc0 = o.get("p4r0", 3), o.get("p4c0", 3)
        while rows and rows[0] < 18 + nr0: s.row4(rows.pop(0))
        p5.setup()
        stamp(L, diag, "Lrow")
        spoll(L, "z2", [54], sleep=o.get("sleep", 2))
        stamp(L, diag, "Lz2ok")
        for sg in range(18, 18 + nc0): s.col4(sg)
        for m in range(18, 23):
            L("s_waitcnt vmcnt(%d)" % L.vmn(*nd(m)))
            if m == 18: stamp(L, diag, "Lz2ld")
            L("s_barrier")
            if m == 18:
                for sg in range(18, 21):
                    if sg >= 18 + nc0: s.col4(sg)
                    if sg in rows: s.row4(sg)
                    s.adv4(sg)
            s.col4(m+3); s.row4(m+3); s.adv4(m+3)
        L("s_mov_b32 s41, 6")
        L.lab("L_g_ll")
        for m in range(23, 27):
            n = L.vmn(*nd(m)); assert n == (16 if m % 2 == 0 else 17)
            L("s_waitcnt vmcnt(%d)\ns_barrier" % n)
            i0 = len(L.L)
            s.col4(m+3); s.row4(m+3); s.adv4(m+3)
            x = o.get("p4exp")
            if x == "none": L.L[i0:] = [l for l in L.L[i0:] if "buffer_load" not in l]
            if x == "norow": L.L[i0:] = [l for l in L.L[i0:] if WSP not in l]
            if x == "reg": L.L[i0:] = [l.replace("dwordx4 v", "dwordx4 v[100:103], v").replace(" lds", "") for l in L.L[i0:]]
        L("s_sub_u32 s41, s41, 1\ns_cmp_lg_u32 s41, 0\ns_cbranch_scc1 L_g_ll")
        L.nbar += 20
        p5.at(46)
        NT = max(1, o.get("tail", 2))
        for m in range(27, 31 - NT):
            L("s_waitcnt vmcnt(%d)\ns_barrier" % L.vmn(*(nd(m) if m < 30 - NT else nd(29))))
            p5.at(m + 20)
def gmlp(C, o, diag=None):
    ld = o.get("ld", ""); stf = o.get("st", "")
    A2, A1, FR, MR = 16, 88, 160, 248
    vZ1, vR0, vR1 = 2, 3, 0
    if o.get("p3R", 0): C("s_barrier")
    gmlp_coords(C, o)
    C("s_lshl_b32 s30, s%d, 12\ns_lshl_b32 s31, s23, 3\ns_lshl_b32 s33, s%d, 1\ns_add_u32 s31, s31, s33" % (sW, sW))
    C("s_lshl_b32 s32, s31, 10\ns_add_u32 s32, s32, s%d\ns_add_u32 s32, s32, 0x%x" % (sLB, WS_STB))
    C("v_add_u32 v%d, %d, v1\ns_add_u32 s33, s30, %d\nv_add_u32 v%d, s33, v1\nv_add_u32 v%d, s33, v%d" % (vZ1, 2*SLOT, ROWH, vR0, vR1, vZ1))
    C("s_lshr_b32 s34, s31, 1")
    C("s_lshl_b32 s35, s34, 12\ns_add_u32 s35, s35, s%d\ns_add_u32 s35, s35, 0x%x" % (sLB, WS_ZS))
    C("s_lshl_b32 s36, s24, 8\ns_add_u32 s36, s36, s35")
    C("s_lshl_b32 s38, s24, 6\ns_add_u32 s38, s38, s34\ns_mul_i32 s38, s38, 9216\ns_add_u32 s38, s38, s%d\ns_add_u32 s38, s38, 0x%x" % (sLB, WS_Z2))
    C("s_add_u32 s39, s38, 4096\ns_add_u32 s46, s38, 8192")
    c0 = -2*math.sqrt(2/math.pi)*math.log2(math.e)
    C("s_mov_b32 s40, 0x%x\ns_mov_b32 s42, 0x%x\ns_mov_b32 s44, 0x%x\ns_mov_b32 s45, 0x%x" % (f2u(c0), f2u(0.044715), f2u(1/2304), f2u(1e-5)))
    C("v_lshrrev_b32 v4, 1, v1")
    flag_addr(C, POL, F_P2, 23)
    edge(C, "d3", [POL], o, diag)
    C("s_barrier")
    stamp(C, diag, "p3Y")
    for i in range(4): C("buffer_load_dwordx2 %s, v4, %s, s32 offen offset:%d %s" % (vr(8+2*i, 2), WS, 512*i, ld))
    flag_addr(C, SIG, F_P4, 23)
    def reads(sg, kk):
        sl = sg % 4; b = FR + kk*44; r_ = []
        for tt in range(2):
            if sg < 18: r_.append("ds_read_b128 %s, v%d offset:%d" % (vr(b+4*tt), vR0 if sl < 2 else vR1, (sl % 2)*SLOT + (2*tt + kk)*1024))
            else: r_.append("ds_read_b128 %s, v%d offset:%d" % (vr(b+4*tt), 8 + kk + (sl & 2), (sl % 2)*SLOT + tt*2048))
        for ft in range(9):
            r_.append("ds_read_b128 %s, v%d offset:%d" % (vr(b+8+4*ft), 1 if sl < 2 else vZ1, (sl % 2)*SLOT + (kk*9+ft)*1024))
        return r_
    def mfmas(sg, kk, cinit=None):
        b = FR + kk*44; r_ = []
        z = 'z' if (sg in (0, 9) and kk == 0) else None
        for ft in range(9):
            for tt in range(2):
                i = (ft*2+tt)*4
                if sg < 9: r_.append(mfma(A2+i, b+4*tt, b+8+4*ft, z))
                elif sg < 18: r_.append(mfma(A1+i, b+8+4*ft, b+4*tt, z))
                else: r_.append(mfma(A2+i, b+8+4*ft, b+4*tt, cinit[tt] if cinit else None))
        return r_
    late = [0]
    def stage(sg, nxt=True, x0=(), x1=(), p1=(), pre=(), cinit=None):
        ex = [(-1, "s_waitcnt lgkmcnt(%d)" % (5 + late[0]))]; late[0] = len(p1)
        for i, r_ in enumerate(reads(sg, 1)): ex.append((i, r_))
        ex.append((7, "s_waitcnt lgkmcnt(8)"))
        for s in interleave(mfmas(sg, 0, cinit), ex + list(x0)): C(s)
        ex = [(-1, "s_waitcnt lgkmcnt(0)")] + [(-1, s) for s in pre]
        if nxt:
            ex.append((-1, "s_barrier"))
            for i, r_ in enumerate(reads(sg+1, 0) + list(p1)): ex.append((i, r_))
        else: ex += [(i, s) for i, s in enumerate(p1)]; late[0] = 0
        for s in interleave(mfmas(sg, 1), ex + list(x1)): C(s)
        stamp(C, diag, "s%d" % sg)
    LITE = [9, 10, 11, 12, 13, 14, 15, 16, 17, 17]
    DENSE = {22: [1, 2, 3, 4, 5, 6, 8, 9, 10, 11, 11, 12, 12, 13, 13, 14, 14, 15, 15, 16, 16, 17],
             26: [0, 1, 2, 3, 4, 5, 6, 7, 8, 9, 10, 11, 11, 12, 12, 13, 13, 14, 14, 15, 15, 16, 16, 17, 17, 17],
             17: [1, 2, 3, 4, 5, 6, 8, 9, 10, 11, 12, 13, 14, 15, 16, 16, 17],
             14: [11, 11, 12, 12, 13, 13, 14, 14, 15, 15, 16, 16, 17, 17],
             7: [11, 12, 13, 14, 15, 16, 17], 0: []}[o.get("dense", 22)]
    C("s_barrier")
    stamp(C, diag, "p3B0")
    for s in reads(0, 0): C(s)
    M8, R8, C0, C1, SD, CS, SS = A1, A1+8, A1+16, A1+24, A1+32, A1+40, FR+44
    TP = FR + 60
    F = Filler()
    F.add([vQ(5), vR(6), "v_lshlrev_b32 v7, 2, v6", "s_lshl_b32 s33, s%d, 8" % sW, "s_add_u32 s33, s33, %d" % L_SC3, "v_add_u32 v4, s33, v7",
           "v_lshl_add_u32 v252, v5, 4, s33", "v_add_u32 v7, %d, v7" % L_CS3, "s_waitcnt vmcnt(0)"])
    F.add(row_stats([8, 12], [MR, MR+2], None))
    G = Filler()
    for i in range(8): G.add("v_rcp_f32 v%d, v%d\nv_mul_f32 v%d, s40, v%d\nv_mul_f32 v%d, v%d, v%d" % (SD+i, R8+i, C0+i, R8+i, C1+i, R8+i, R8+i))
    for i in range(8): G.add("v_mul_f32 v%d, s42, v%d" % (C1+i, C1+i))
    for i in range(8): G.add("v_mul_f32 v%d, v%d, v%d" % (C1+i, C1+i, C0+i))
    G.add("v_lshrrev_b32 v8, 2, v6\nv_lshlrev_b32 v8, 4, v8\nv_lshl_add_u32 v8, v5, 6, v8\nv_and_b32 v9, 3, v6\nv_cmp_eq_u32 vcc, 0, v9\nv_bfrev_b32 v10, 1")
    G.add("v_lshlrev_b32 v9, 4, v9\nv_cndmask_b32 v8, v10, v8, vcc\nv_lshl_add_u32 v9, v5, 6, v9\nv_lshrrev_b32 v255, 2, v6\nv_lshl_add_u32 v255, v255, 8, v9")
    mfix = lambda j: [(p, "v_fma_f32 v%d, -v%d, v%d, v%d" % (A2 + 4*t + j, M8 + 4*(t % 2) + j, CS + t//2, A2 + 4*t + j)) for p in range(18) for t in [(p + 9) % 18]]
    for sg in range(9):
        x0 = x1 = p1 = ()
        if sg == 0: x1 = F.take(LITE)
        elif sg <= 2: x0 = F.take(LITE); x1 = F.take(LITE)
        if sg == 1: p1 = ["ds_read2_b32 %s, v7 offset0:%d offset1:%d" % (vr(CS+2*i, 2), 32*i, 32*i+16) for i in range(5)]
        if sg == 3:
            assert not F.q
            p1 = ["ds_write2_b32 v4, v%d, v%d offset0:%d offset1:%d" % (MR+2*a, MR+2*a+1, 16*a, 32+16*a) for a in range(2)]
            p1 += ["ds_read_b128 %s, v252 offset:%d" % (vr(M8+4*i), 64*i) for i in range(4)]
        if 4 <= sg <= 6: x0 = G.take(LITE); x1 = G.take(LITE)
        if sg == 6: x1 = x1 + mfix(0)
        if sg == 7: x0 = mfix(1); x1 = mfix(2)
        if sg == 8: x0 = mfix(3)
        stage(sg, x0=x0, x1=x1, p1=p1)
    assert not F.q and not G.q
    stamp(C, diag, "pass1")
    p2 = lambda a: vr(a, 2)
    for ft in range(9):
        x = [A2 + ft*8 + 2*i for i in range(4)]; t = [TP + (ft % 2)*8 + 2*i for i in range(4)]
        for i in range(4): C("v_pk_mul_f32 %s, %s, %s" % (p2(t[i]), p2(x[i]), p2(x[i])))
        for i in range(4): C("v_pk_fma_f32 %s, %s, %s, %s" % (p2(t[i]), p2(t[i]), p2(C1+2*i), p2(C0+2*i)))
        for i in range(4): C("v_pk_mul_f32 %s, %s, %s" % (p2(t[i]), p2(t[i]), p2(x[i])))
        for i in range(8): C("v_exp_f32 v%d, v%d" % (t[0]+i, t[0]+i))
        for i in range(4): C("v_pk_fma_f32 %s, %s, %s, %s" % (p2(t[i]), p2(t[i]), p2(SD+2*i), p2(SD+2*i)))
        for i in range(8): C("v_rcp_f32 v%d, v%d" % (t[0]+i, t[0]+i))
        for i in range(4): C("v_pk_mul_f32 %s, %s, %s" % (p2(x[i]), p2(x[i]), p2(t[i])))
        for i in range(4):
            if ft == 0: C("v_pk_mul_f32 %s, %s, %s" % (p2(SS+4*i+2), p2(x[i]), p2(x[i])))
            else:
                C("v_pk_add_f32 %s, %s, %s" % (p2(SS+4*i), p2(SS+4*i) if ft > 1 else p2(A2+2*i), p2(x[i])))
                C("v_pk_fma_f32 %s, %s, %s, %s" % (p2(SS+4*i+2), p2(x[i]), p2(x[i]), p2(SS+4*i+2)))
    dpp = lambda d, s, ctl, bm: "v_add_f32_dpp v%d, v%d, v%d %s row_mask:0xf bank_mask:0x%x" % (d, s, s, ctl, bm)
    for i in range(8): C(dpp(SS+i, SS+i, "row_mirror", 0x3))
    for i in range(8): C(dpp(SS+i, SS+8+i, "row_mirror", 0xc))
    for i in range(4): C(dpp(SS+i, SS+i, "row_half_mirror", 0x5))
    for i in range(4): C(dpp(SS+i, SS+4+i, "row_half_mirror", 0xa))
    for i in range(4): C(dpp(SS+i, SS+i, "quad_perm:[1,0,3,2]", 0xf))
    for i in range(4): C(dpp((12, 14, 13, 15)[i], SS+i, "quad_perm:[2,3,0,1]", 0xf))
    C("buffer_store_dwordx4 v[12:15], v8, %s, s36 offen sc1" % WS)
    stamp(C, diag, "z2gelu")
    Q = [4, 8, 12, 252]
    slow = Stream()
    slow.lab("L_g_slow")
    slow("s_mov_b32 s60, %d" % SPIN)
    slow.lab("L_g_sl")
    slow("s_sleep 2\nv_lshrrev_b32 v4, 8, v1\nv_bfe_u32 v5, v1, 6, 2\nv_bfe_u32 v6, v1, 4, 2\nv_lshlrev_b32 v255, 6, v4\nv_lshl_add_u32 v255, v5, 8, v255\nv_lshl_add_u32 v255, v6, 4, v255")
    recl = ["buffer_load_dwordx4 %s, v255, %s, s35 offen offset:%d sc1" % (vr(Q[i]), WS, 1024*i) for i in range(4)]
    chk = ["s_waitcnt vmcnt(0)", "v_or3_b32 v%d, v5, v7, v9" % (MR+1), "v_or3_b32 v%d, v11, v13, v15" % (MR+3), "v_or3_b32 v%d, v253, v255, v%d" % (MR+1, MR+1),
           "v_or_b32 v%d, v%d, v%d" % (MR+1, MR+1, MR+3), "v_cmp_gt_i32 vcc, 0, v%d" % (MR+1)]
    H = Filler()
    H.add(chk); H.add("s_nop 0\ns_cbranch_vccnz L_g_slow\nL_g_back:")
    for s in recl + chk: slow(s)
    slow("s_sub_u32 s60, s60, 1\ns_cbranch_scc1 L_g_back\ns_cbranch_vccnz L_g_sl\ns_branch L_g_back")
    C.tail = getattr(C, "tail", []) + slow.L
    for i in range(4): H.add("v_add_f32 v%d, v%d, v%d\nv_add_f32 v%d, v%d, v%d" % (4+i, 4+i, 8+i, 252+i, 252+i, 12+i))
    for i in range(4): H.add("v_add_f32 v%d, v%d, v%d" % (252+i, 252+i, 4+i))
    for ctl in ("row_ror:4", "row_ror:8"):
        for i in range(4): H.add(dpp(252+i, 252+i, ctl, 0xf))
    for i in range(4): H.add("v_mul_f32 v%d, s44, v%d" % (252+i, 252+i))
    H.add("v_fma_f32 v253, -v252, v252, v253\nv_fma_f32 v255, -v254, v254, v255\nv_max_f32 v253, 0, v253\nv_max_f32 v255, 0, v255")
    H.add("v_add_f32 v253, s45, v253\nv_add_f32 v255, s45, v255\nv_rsq_f32 v%d, v253\nv_rsq_f32 v253, v255\ns_nop 0" % (MR+1))
    H.add("v_mul_f32 v255, v254, v253\nv_mul_f32 v254, v252, v%d\nv_mov_b32 v252, v%d\ns_nop 0" % (MR+1, MR+1))
    for kq in range(4):
        for i in (1, 3, 2, 0): H.add("v_mov_b32_dpp v%d, v%d row_newbcast:%d row_mask:0xf bank_mask:0xf" % (Q[kq]+i, 252+i, kq))
    lrec = o.get("lrec", 11)
    if lrec: H.q = []; C.tail = C.tail[:len(C.tail) - len(slow.L)]
    burst = o.get("burst", 0)
    B = Filler() if burst else H
    def swp(ft, w):
        for i in range(2): B.add("v_permlane%s_swap_b32 v%d, v%d" % (w, A2+ft*8+i, A2+ft*8+2+i))
    zst = lambda ft: "buffer_store_dwordx4 %s, v1, %s, s%d offen offset:%d sc1" % (vr(A2+ft*8), WS, (38, 39, 46)[ft//4], (ft % 4)*1024)
    for ft in range(9):
        x = A2 + ft*8
        if burst:
            for i in range(4): B.add("v_pk_fma_f32 %s, %s, %s, %s neg_lo:[0,0,1] neg_hi:[0,0,1]" % (p2(x+2*i), p2(x+2*i), p2(Q[i]), p2(Q[i]+2)))
        else:
            for i in range(8): B.add("v_fma_f32 v%d, v%d, v%d, -v%d" % (x+i, x+i, Q[i//2] + i % 2, Q[i//2] + 2 + i % 2))
        if ft: swp(ft-1, "32")
        for i in range(4): B.add("v_cvt_pk_bf16_f32 v%d, v%d, v%d" % (x+i, x+2*i, x+2*i+1))
        if ft: swp(ft-1, "16"); B.add(";ok %d" % (ft-1))
    B.add("s_nop 0"); swp(8, "32"); B.add("s_nop 0"); swp(8, "16"); B.add(";ok 8")
    h_ld, h_go, st_ks, st_n = o.get("zs_ld", 4), o.get("zs_go", 6), o.get("st_ks", 0), o.get("st_n", 3)
    if lrec:
        rb_ = lrec + o.get("lrd", 1) + 1; h_ld = -1; h_go = 2*(rb_ - 9)
        B.add("v_mul_f32 v4, s40, v%d\nv_mul_f32 v6, s40, v%d\nv_mul_f32 v5, v%d, v%d\nv_mul_f32 v7, v%d, v%d" % (MR+1, MR+3, MR+1, MR+1, MR+3, MR+3))
        B.add("v_rcp_f32 v%d, v%d\nv_rcp_f32 v%d, v%d\nv_mul_f32 v5, s42, v5\nv_mul_f32 v7, s42, v7\nv_mul_f32 v5, v5, v4\nv_mul_f32 v7, v7, v6" % (MR+1, MR+1, MR+3, MR+3))
        B.add([vR(13), "v_lshrrev_b32 v8, 1, v13", vQ(9), "v_xor_b32 v8, v8, v9", "v_lshlrev_b32 v8, 4, v8", "v_lshl_add_u32 v8, v13, 7, v8"])
        B.add("s_add_u32 s33, s30, %d\nv_add_u32 v8, s33, v8\nv_xor_b32 v9, 64, v8\nv_add_u32 v10, %d, v8\nv_add_u32 v11, %d, v9" % (ROWH, 2*SLOT, 2*SLOT))
        B.add("s_lshl_b32 s33, s%d, 6\ns_add_u32 s33, s33, %d\nv_lshl_add_u32 v13, v13, 1, s33" % (sW, L_CS3 + 1536))
    zb = o.get("zbar", 18)
    CS1 = FR + 8
    ready = []; nst_ = 0
    for sg in range(9, 18):
        x = [[], []]; p1 = (); pre = ()
        for kk in range(2):
            ks = 2*(sg-9) + kk
            if kk == 1 and sg + 1 == zb:
                assert nst_ == 9, nst_
                pre = ["s_waitcnt vmcnt(0)"] + (["s_barrier"] if zb == 18 else [])
            if ks == h_ld: x[kk] += [(11+2*i, s) for i, s in enumerate(recl)]
            if ks >= st_ks:
                for i in range(st_n):
                    if ready: x[kk].append((2 + i*(16//st_n), zst(ready.pop(0)))); nst_ += 1
            if ks >= h_go:
                t = H.take([p for p in DENSE if p > 7 or ks > h_go or not lrec])
                if burst and not H.q and B.q: t += [(17, s) for s in B.q]; B.q = []
                if st_ks == 0:
                    nst_ += sum(s.startswith(";ok") for _, s in t)
                    t = [(p, zst(int(s.split()[1])) if s.startswith(";ok") else s) for p, s in t]
                ready += [int(s.split()[1]) for _, s in t if s.startswith(";ok")]
                x[kk] += t
        if lrec and sg == 9: x[0] += [(12, "v_lshrrev_b32 v255, 8, v1"), (13, "v_lshl_add_u32 v255, v255, 6, s33")]
        if lrec and sg + 1 == rb_: p1 = ["ds_read_b128 %s, v255 offset:%d" % (vr(Q[i]), 1024 + 16*i) for i in range(4)]
        if sg == 17:
            x[0] += [(12, "v_lshrrev_b32 v%d, 4, v1" % vR1), (13, "v_and_b32 v%d, 48, v%d" % (vR1, vR1)), (14, "v_add_u32 v%d, %d, v%d" % (vR1, L_CS3 + 576, vR1))]
            p1 = ["ds_read_b128 %s, v%d offset:%d" % (vr(CS1 + 4*ft), vR1, ft*64) for ft in range(9)]
            assert not H.q and not x[1]
            p1 += ["ds_read_u16 v12, v13", "ds_read_u16 v252, v13 offset:32"]
        stage(sg, nxt=(sg < 17), x0=x[0], x1=x[1], p1=p1, pre=pre)
    assert not H.q and not B.q
    for ft in ready: C(zst(ft))
    stamp(C, diag, "pass2")
    assert lrec and zb <= 18
    n1 = o.get("n1", 7); NP = o.get("peel", 4)
    C("s_waitcnt lgkmcnt(0)")
    for i in (3, 2, 1, 0): C("v_lshlrev_b32 v%d, 16, v12\nv_lshlrev_b32 v%d, 16, v252" % (12+i, 252+i))
    mr = [MR + 2*(i//2) for i in range(4)]; kc = [4 + 2*(i//2) for i in range(4)]
    for ft in range(9):
        for i in range(4): C("v_pk_fma_f32 %s, %s, %s, %s op_sel_hi:[0,1,1] neg_lo:[1,0,0] neg_hi:[1,0,0]" % (p2(A1+ft*8+2*i), p2(mr[i]), p2(CS1+4*ft+2*(i % 2)), p2(A1+ft*8+2*i)))
    for ft in range(n1):
        x = [A1 + ft*8 + 2*i for i in range(4)]; t = [FR + 44 + 8*(ft % 2) + 2*i for i in range(4)]
        if ft == n1 - 1 and o.get("earlyB", 1):
            C("s_barrier"); stamp(C, diag, "p4B0")
            for s in reads(18, 0): C(s)
        for i in range(4): C("v_pk_mul_f32 %s, %s, %s" % (p2(t[i]), p2(x[i]), p2(x[i])))
        for i in range(4): C("v_pk_fma_f32 %s, %s, %s, %s op_sel:[0,1,0] op_sel_hi:[1,1,0]" % (p2(t[i]), p2(t[i]), p2(kc[i]), p2(kc[i])))
        for i in range(4): C("v_pk_mul_f32 %s, %s, %s" % (p2(t[i]), p2(t[i]), p2(x[i])))
        for i in range(8): C("v_exp_f32 v%d, v%d" % (t[0]+i, t[0]+i))
        for i in range(4): C("v_pk_fma_f32 %s, %s, %s, %s op_sel:[0,1,1] op_sel_hi:[1,1,1]" % (p2(t[i]), p2(t[i]), p2(mr[i]), p2(mr[i])))
        for i in range(8): C("v_rcp_f32 v%d, v%d" % (t[0]+i, t[0]+i))
        for i in range(4): C("v_pk_mul_f32 %s, %s, %s" % (p2(x[i]), p2(x[i]), p2(t[i])))
    stamp(C, diag, "z1gelu")
    if not (n1 and o.get("earlyB", 1)):
        C("s_barrier"); stamp(C, diag, "p4B0")
        for s in reads(18, 0): C(s)
    J = Filler()
    tq = [12, 13, 14, 15, 252, 253, 254, 255]
    for ft in range(n1, 9):
        x = A1 + ft*8
        for i in range(8): J.add("v_mul_f32 v%d, v%d, v%d" % (tq[i], x+i, x+i))
        for i in range(8): J.add("v_fma_f32 v%d, v%d, v%d, v%d" % (tq[i], tq[i], 5 + 2*(i//4), 4 + 2*(i//4)))
        for i in range(8): J.add("v_mul_f32 v%d, v%d, v%d" % (tq[i], tq[i], x+i))
        for i in range(8): J.add("v_exp_f32 v%d, v%d" % (tq[i], tq[i]))
        for i in range(8): J.add("v_fma_f32 v%d, v%d, v%d, v%d" % (tq[i], tq[i], MR+1+2*(i//4), MR+1+2*(i//4)))
        for i in range(8): J.add("v_rcp_f32 v%d, v%d" % (tq[i], tq[i]))
        for i in range(8): J.add("v_mul_f32 v%d, v%d, v%d" % (x+i, x+i, tq[i]))
    J.add("s_mul_i32 s36, s31, 73728\ns_add_u32 s36, s36, s%d" % sLB)
    J.add("s_lshl_b32 s34, s24, 12\ns_lshl_b32 s35, s24, 9\ns_add_u32 s35, s35, 65536")
    J.add("v_add_u32 v14, s34, v1\nv_lshrrev_b32 v15, 1, v1\nv_add_u32 v15, s35, v15\ns_add_u32 s39, s36, 0x%x\ns_add_u32 s40, s36, 0x%x" % (WS_H, WS_H+73728))
    def jtake(lo=0):
        out = []
        for p in range(lo, 18):
            room = 1 if p <= 10 else 2
            if p in (0, 7) or (p == 17): room -= 1
            while room > 0 and J.q:
                tr = J.q[0].startswith(("v_exp", "v_rcp"))
                if tr and room < 2 and p <= 10 and not o.get("trany", 1): break
                out.append((p, J.q.pop(0))); room -= 2 if tr else 1
        return out
    for sg in range(18, 18 + NP):
        stage(sg, x0=jtake() if sg > 18 else (), x1=jtake(3 if sg == 18 else 0), cinit=(12, 252) if sg == 18 else None)
    while J.q: C(J.q.pop(0))
    C("s_mov_b32 s41, %d" % (7 - NP//4))
    C(".p2align 6")
    C.lab("L_g_loop")
    for sg in range(18, 22): stage(sg, x1=[(16, "s_sub_u32 s41, s41, 1"), (17, "s_cmp_lg_u32 s41, 0")] if sg == 21 else ())
    C("s_cbranch_scc1 L_g_loop")
    C.nbar += 24 - NP
    NT = o.get("tail", 2)
    if NT:
        nk = 2*NT; s0 = 22 - NT; ZB = FR + 8*nk; nz = (88 - 8*nk)//4
        wr = [reads(s0 + k//2, k % 2)[tt].replace(vr(FR + (k % 2)*44 + 4*tt), vr(FR + 8*k + 4*tt)) for k in range(nk) for tt in range(2)]
        zr = [reads(s0 + k//2, k % 2)[2+ft].replace(vr(FR + (k % 2)*44 + 8 + 4*ft), vr(ZB + 4*((ft*nk + k) % nz))) for ft in range(9) for k in range(nk)]
        n0 = 11 - 2*nk; assert n0 >= 1
        for sg in range(18, s0 - 1): stage(sg)
        first = [wr[0], wr[1], zr[0]] + wr[2:] + zr[1:n0]
        stage(s0 - 1, nxt=False, pre=["s_barrier"], p1=first)
        out = lambda u, tt: A1 + 16*u + 4*tt
        def fin(ft):
            r_ = []
            for tt in range(2):
                i = (ft*2+tt)*4
                r_ += ["v_mul_f32 v%d, v%d, v%d" % (A2+i+j, A2+i+j, A1+i+j) for j in range(4)]
                r_ += ["v_cvt_pk_bf16_f32 v%d, v%d, v%d" % (out(ft//2, tt) + 2*(ft % 2) + p, A2+i+2*p, A2+i+2*p+1) for p in range(2)]
                if ft == 8: r_.append("buffer_store_dwordx2 %s, v15, %s, s%d offen %s" % (vr(out(4, tt), 2), WS, 39+tt, stf))
                elif ft % 2: r_.append("buffer_store_dwordx4 %s, v14, %s, s%d offen offset:%d %s" % (vr(out(ft//2, tt)), WS, 39+tt, (ft//2)*1024, stf))
            return r_
        mm = [mfma(A2 + (ft*2+tt)*4, ZB + 4*((ft*nk + k) % nz), FR + 8*k + 4*tt) for ft in range(9) for k in range(nk) for tt in range(2)]
        ex = []; nr = n0; T = Filler(); LA = min(nz - 2, 8); nf = 0
        for n in range(9*nk):
            ex.append((2*n - 1, "s_waitcnt lgkmcnt(%d)" % (0 if n < n0 and n == 0 else min(15, max(0, nr - n - 1)))))
            c_ = 0
            while nr < 9*nk and nr <= n + LA and c_ < 2: ex.append((2*n + c_, zr[nr])); nr += 1; c_ += 1
            if n == (nf + 1)*nk + 2: T.add(fin(nf)); nf += 1
            ex += T.take(sorted([2*n, 2*n+1, 2*n+1] + ([2*n] if c_ == 0 else []) + ([2*n+1] if len(T.q) > 12 else [])))
        for s in interleave(mm, ex): C(s)
        stamp(C, diag, "p4loop")
        k_ = len(T.q)
        while T.q: C(T.q.pop(0))
        C("s_nop %d" % max(0, 6 - k_))
        for f in range(nf, 9):
            for s in fin(f): C(s)
        stamp(C, diag, "p4end")
        return
    for sg in range(18, 22): stage(sg, nxt=(sg < 21))
    stamp(C, diag, "p4loop")
    for u in range(5):
        for tt in range(2):
            tiles = [2*u, 2*u+1] if u < 4 else [8]
            d = FR + (u*2+tt)*4
            for ft in tiles:
                i = (ft*2+tt)*4
                for p in range(2): C("v_pk_mul_f32 %s, %s, %s" % (p2(A2+i+2*p), p2(A2+i+2*p), p2(A1+i+2*p)))
            for e, ft in enumerate(tiles):
                i = A2 + (ft*2+tt)*4
                C("v_cvt_pk_bf16_f32 v%d, v%d, v%d\nv_cvt_pk_bf16_f32 v%d, v%d, v%d" % (d+2*e, i, i+1, d+2*e+1, i+2, i+3))
            if u < 4: C("buffer_store_dwordx4 %s, v14, %s, s%d offen offset:%d %s" % (vr(d), WS, 39+tt, u*1024, stf))
            else: C("buffer_store_dwordx2 %s, v15, %s, s%d offen %s" % (vr(d, 2), WS, 39+tt, stf))
    stamp(C, diag, "p4end")
```

```python
from ph_sync import *
def proj_coords(k, o, b=23):
    k("s_and_b32 s%d, s2, 7\ns_lshr_b32 s26, s2, 3" % (b+2))
    if o.get("pmap", 1) == 0:
        k("s_lshl_b32 s%d, s%d, 2\ns_lshr_b32 s27, s26, 3\ns_add_u32 s%d, s%d, s27\ns_and_b32 s%d, s26, 7" % (b, b+2, b, b, b+1))
    else:
        k("s_lshr_b32 s%d, s%d, 1\ns_lshl_b32 s%d, s%d, 3\ns_lshr_b32 s27, s26, 2\ns_add_u32 s%d, s%d, s27" % (b, b+2, b, b, b, b))
        k("s_and_b32 s%d, s%d, 1\ns_lshl_b32 s%d, s%d, 2\ns_and_b32 s27, s26, 3\ns_add_u32 s%d, s%d, s27" % (b+1, b+2, b+1, b+1, b+1, b+1))
    k("s_add_u32 s%d, s%d, s%d\ns_and_b32 s%d, s%d, 3" % (b+2, b, b+1, b+2, b+2))
def dma_run(L, n, sm0, m0add, ssrc, srcadd, tag, fl=""):
    for j in range(n):
        if j % 4 == 0: L("s_add_u32 m0, s%d, %d\ns_add_u32 s33, s%d, %d" % (sm0, m0add + j*1024, ssrc, srcadd + j*1024))
        L("buffer_load_dwordx4 v1, %s, s33 offen offset:%d %s lds" % (WS, (j % 4)*1024, fl)); L.issue(tag)
def p2_loader(L, o, diag, after_y):
    proj_coords(L, o)
    L("s_mul_i32 s29, s24, %d\ns_add_u32 s29, s29, 0x%x" % (9*9216, WS_WO))
    L("s_mul_i32 s30, s%d, %d\ns_mul_i32 s31, s%d, %d\ns_add_u32 s31, s31, s29" % (sW, SLOT, sW, ROWH))
    dma_run(L, 18, 30, ROWH, 31, 0, "w")
    stamp(L, diag, "Lp2pre")
    L("s_mul_i32 s30, s%d, 3072\ns_add_u32 s31, s30, s29" % sW)
    L("s_waitcnt vmcnt(18)\ns_barrier")
    dma_run(L, 3, 30, TOP, 31, 8*9216, "w")
    L("s_or_b32 s44, s%d, s%d\ns_cbranch_scc1 L_p2_ns\ns_and_b32 s44, s2, 15" % (sW, sLAY))
    flag_addr(L, 44, F_P2, 44, back="prep"); ssignal(L, 44)
    L.lab("L_p2_ns")
    L("s_waitcnt vmcnt(0)\ns_barrier"); L.vm = []
    after_y()
def p5sched(o): return o.get("p5s", {47: [0], 48: [1], "R": [2, 3], "X": [4]} if o.get("tail", 2) == 2 else {47: [0], 48: [1], 49: [2], "X": [3]})
class P5L:
    def __init__(s, L, o):
        s.L = L; s.o = o; s.done = []
        s.sched = p5sched(o)
    def setup(s):
        L = s.L
        proj_coords(L, s.o, 38)
        L("s_mul_i32 s42, s%d, 9216\ns_mul_i32 s43, s39, %d\ns_add_u32 s43, s43, s42\ns_add_u32 s43, s43, 0x%x" % (sW, 36*9216, WS_WU))

    def batch(s, tau, reg=False):
        L = s.L; s.done.append(tau)
        L("\n".join(hoist_sel(L, 32, tau, 8, 40, tau < 8 and s.o.get("hoist5", 0))))
        L("s_mul_i32 s32, s32, %d\ns_add_u32 s32, s32, s43" % SLOT)
        if not reg: dma_run(L, 9, 42, ((50 + tau) % 4)*SLOT, 32, 0, ("w", tau))
        else:
            for j in range(9):
                if j and j % 4 == 0: L("s_add_u32 s32, s32, 4096")
                L("buffer_load_dwordx4 %s, v1, %s, s32 offen offset:%d" % (vr(16 + ((tau-4)*9 + j)*4), WS, (j % 4)*1024)); L.issue(("w", tau))
    def warm(s, what):
        L = s.L
        if what == "h":
            L("s_lshl_b32 s32, s38, 2\ns_add_u32 s32, s32, s%d\ns_mul_i32 s32, s32, 73728\ns_add_u32 s32, s32, s%d\ns_add_u32 s32, s32, 0x%x" % (sW, sLB, WS_H))
            L("s_lshl_b32 s33, s39, 10\ns_add_u32 s33, s33, s32\ns_add_u32 s33, s33, 65536\nbuffer_load_dwordx4 v[200:203], v1, %s, s33 offen sc1" % WS); L.issue("x")
            L("s_lshl_b32 s33, s39, 13\ns_add_u32 s32, s32, s33"); n = 8
        else:
            L("s_and_b32 s32, s38, 3\ns_lshl_b32 s32, s32, 2\ns_add_u32 s32, s32, s%d\ns_mul_i32 s32, s32, %d\ns_add_u32 s32, s32, s43\ns_sub_u32 s32, s32, s42\ns_add_u32 s32, s32, %d" % (sW, 11520, 4*SLOT)); n = 12
        for j in range(n):
            if j and j % 4 == 0: L("s_add_u32 s32, s32, 4096")
            L("buffer_load_dwordx4 v[200:203], v1, %s, s32 offen offset:%d sc1" % (WS, (j % 4)*1024)); L.issue("x")
    def at(s, point):
        for t in s.sched.get(point, []):
            if isinstance(t, str): s.warm(t)
            else: s.batch(t, t >= 4)
    def main(s, diag, tail):
        L = s.L
        if "R" in s.sched: L("s_barrier"); s.at("R")
        L("s_barrier")
        s.at("X")
        stamp(L, diag, "Lp5pre")
        L("s_waitcnt vmcnt(%d)\ns_barrier" % L.vmn(("w", 0)))
        s.at("Y")
        if any(isinstance(t, int) and t >= 4 for v in s.sched.values() for t in v):
            L("v_add_u32 v12, s42, v1")
            for i in range(1, 4): L("v_add_u32 v%d, %d, v12" % (12+i, SLOT*i))
        assert all(t in s.done for t in range(4))
        for m in range(1, 9):
            L("s_waitcnt vmcnt(%d) lgkmcnt(0)\ns_barrier" % (L.vmn(("w", m)) if ("w", m) in L.vm else 63))
            t = m + 3
            if t < 9 and t in s.done:
                if ("w", t) in L.vm: L("s_waitcnt vmcnt(%d)" % L.vmn(("w", t)))
                for j in range(9): L("ds_write_b128 v%d, %s offset:%d" % (12 + (50 + t) % 4, vr(16 + ((t-4)*9 + j)*4), j*1024))
            elif t < 9: s.batch(t)
            s.at(m)
            if t >= 9: tail(m)
L_PF = 163808
def proj(C, kind, o, diag=None):
    p5 = kind == 5
    uid = "p%d" % kind
    npair = 36 if p5 else 9
    nst = 9 if p5 else 3
    ppst = lambda n: 4 if (p5 or n < 2) else 1
    ACT, RES = (WS_H, WS_XB) if p5 else (WS_O, WS_XA)
    rts = 73728 if p5 else 18432
    EX = 131072 if p5 else 3*SLOT
    ld = o.get("ld", ""); stf = o.get("st", "")
    ho = p5 and o.get("hoist5", 0)
    ACC = 24; WF = 64; AW = 124; RR = 220; T = 232
    if p5 and "R" in p5sched(o): C("s_barrier")
    proj_coords(C, o)
    C("s_lshl_b32 s30, s23, 2\ns_add_u32 s30, s30, s%d\ns_and_b32 s31, s%d, 1" % (sW, sW))
    C("s_mul_i32 s34, s30, 18432\ns_add_u32 s34, s34, s%d\ns_add_u32 s34, s34, 0x%x" % (sLB, RES))
    C("s_lshl_b32 s35, s24, 11")
    C("s_lshr_b32 s36, s24, 2\ns_lshl_b32 s36, s36, 10\ns_and_b32 s37, s24, 3\ns_lshl_b32 s37, s37, 8\ns_add_u32 s36, s36, s37\ns_add_u32 s36, s36, 16384")
    C(vR(2)); C(vQ(3))
    C("v_add_u32 v4, s35, v1\nv_lshrrev_b32 v0, 1, v3\nv_and_b32 v9, 1, v3")
    C("v_cmp_eq_u32 s[40:41], s31, v0\nv_bfrev_b32 v6, 1")
    C("v_lshlrev_b32 v5, 4, v2\nv_lshl_add_u32 v5, v9, 3, v5\nv_add_u32 v5, s36, v5\nv_cndmask_b32 v5, v6, v5, s[40:41]")
    for p in range(2): C("buffer_load_dwordx4 %s, v4, %s, s34 offen offset:%d %s" % (vr(RR+4*p), WS, 1024*p, ld))
    C("buffer_load_dwordx2 %s, v5, %s, s34 offen %s" % (vr(RR+8, 2), WS, ld))
    C("s_and_b32 s29, s30, 0xfffe\ns_mul_i32 s29, s29, %d\ns_add_u32 s29, s29, s%d\ns_lshl_b32 s37, s31, 10\ns_add_u32 s29, s29, s37\ns_add_u32 s29, s29, 0x%x" % (rts, sLB, ACT))
    C("s_mul_i32 s37, s31, %d\ns_sub_u32 s38, %d, s37" % (rts, rts))
    C("v_lshlrev_b32 v10, 3, v2")
    if p5: C("v_lshrrev_b32 v7, 1, v1")
    else: C("v_lshl_add_u32 v7, v3, 8, v10")
    C("v_add_u32 v16, s37, v1\nv_add_u32 v17, s38, v1\nv_add_u32 v18, s37, v7\nv_add_u32 v19, s38, v7")
    C("s_lshl_b32 s37, s31, 12")
    for i in range(4): C("v_add_u32 v%d, %d, v1\nv_add_u32 v%d, s37, v%d" % (20+i, SLOT*i, 12+i, 20+i))
    C("s_add_u32 s34, s34, 0x%x" % ((LAYER_STRIDE + WS_XA - WS_XB) if p5 else (WS_XB - WS_XA)))
    C("s_lshl_b32 s39, s30, 10\ns_add_u32 s39, s39, s%d\ns_lshl_b32 s42, s24, 7\ns_add_u32 s39, s39, s42\ns_add_u32 s39, s39, 0x%x" % (sLB, LAYER_STRIDE + WS_STA if p5 else WS_STB))
    C("v_cmp_eq_u32 vcc, 0, v3\nv_mov_b32 v11, 0x3f803f80\ns_lshr_b32 s44, s23, 1\nv_cndmask_b32 v10, v6, v10, vcc")
    if p5:
        C("s_cmp_eq_u32 s%d, 0\ns_cbranch_scc1 L_p5_nf" % sLAY)
        C("v_mul_u32_u24 v8, 1152, v2\ns_mul_i32 s34, s30, %d\ns_mul_i32 s42, s24, 144\ns_add_u32 s34, s34, s42" % (16*1152))
        C("v_lshl_add_u32 v4, v3, 4, v8\nv_lshl_add_u32 v5, v9, 3, v8\nv_cndmask_b32 v5, v6, v5, s[40:41]")
        C.lab("L_p5_nf")
    flag_addr(C, POL, F_P4 if p5 else F_P1, 44)
    def mid():
        for i in range(10):
            C("v_lshlrev_b32 v%d, 16, v%d\nv_and_b32 v%d, 0xffff0000, v%d" % (ACC+2*i, RR+i, ACC+2*i+1, RR+i))
        C("s_mul_i32 s37, s%d, 4608\ns_add_u32 s37, s37, %d\ns_xor_b32 s38, s%d, 1\ns_mul_i32 s42, s38, 4608\ns_add_u32 s42, s42, %d" % (sW, EX, sW, EX))
        C("v_and_b32 v0, 0x1ff, v1\nv_add_u32 v2, s37, v1\nv_add_u32 v3, s37, v0\nv_add_u32 v7, s42, v1\nv_add_u32 v8, s42, v0")
        C("s_lshl_b32 s37, s%d, 2\ns_add_u32 s37, s37, %d\ns_xor_b32 s38, s37, 4\nv_mov_b32 v0, s37\nv_mov_b32 v6, s38" % (sW, L_PF))
        C("s_lshl_b32 s43, s%d, 1\ns_add_u32 s43, s43, %d\nv_mov_b32 v9, s43" % (sLAY, 2 if p5 else 1))
    edge(C, "d%d" % kind, [POL], o, diag, mid)
    def act_loads(tau):
        o_ = hoist_sel(C, 32, tau, 8, 25, tau < 8 and ho) + ["s_lshl_b32 s32, s32, 13", "s_add_u32 s32, s32, s29", "s_add_u32 s33, s32, 4096"]
        lds_ = []
        for pp in range(ppst(tau)):
            for st in range(2):
                d = AW + ((tau % 3)*8 + 2*pp + st)*4
                if tau + 1 < nst: lds_.append(("buffer_load_dwordx4 %s, v%d, %s, s%d offen offset:%d %s" % (vr(d), 16+st, WS, 32 + pp//2, (pp % 2)*2048, ld), ("a", tau, pp)))
                else:
                    for e in range(2): lds_.append(("buffer_load_dwordx2 %s, v%d, %s, s%d offen offset:%d %s" % (vr(d+2*e, 2), 18+st, WS, 32 + pp//2, (pp % 2)*2048 + e*(512 if p5 else 128), ld), ("a", tau, pp)))
        return o_, lds_
    def emit_act(tau):
        a, b = act_loads(tau)
        C("\n".join(a))
        for s, t in b: C(s); C.issue(t)
    def reads(gp):
        b = WF + (gp % 3)*20
        if p5: sl, off = (50 + gp//4) % 4, (gp % 4)*9216
        else: sl, off = (gp >> 1, ROWH + (gp & 1)*9216) if gp < 8 else (3, SLOT)
        return ["ds_read_b128 %s, v%d offset:%d" % (vr(b+4*j), 12 + sl, off + j*1024) for j in range(4)] + ["ds_read_b128 %s, v%d offset:%d" % (vr(b+16), 20 + sl, off + 8192)]
    C("s_barrier")
    stamp(C, diag, uid+"Y")
    emit_act(0)
    for s in reads(0) + reads(1): C(s)
    emit_act(1)
    if not p5:
        emit_act(2)
        C("s_lshl_b32 s42, s23, 3\ns_add_u32 s42, s42, s24\ns_lshl_b32 s42, s42, 2\ns_add_u32 s42, s42, s%d\ns_lshl_b32 s42, s42, 8\ns_add_u32 s42, s42, s%d\ns_add_u32 s42, s42, 0x%x" % (sW, sLB, WS_ZS))
        C("v_mov_b32 v%d, -1.0\nv_lshrrev_b32 v%d, 2, v1\nbuffer_store_dword v%d, v%d, %s, s42 offen sc1" % (T, T+1, T, T+1, WS)); C.issue("zi")
    flag_addr(C, SIG, F_P5 if p5 else F_P2, 44)
    stamp(C, diag, uid+"iss")
    for gp in range(npair):
        tau, pp = gp // 4, gp % 4; b = WF + (gp % 3)*20; aw = AW + ((tau % 3)*8 + 2*pp)*4
        order = [(a, st) for a in range(5) for st in (1, 0)] if gp + 1 < npair else [(a, st) for st in (1, 0) for a in range(5)]
        mm = [mfma(ACC + 20*st + 4*a, b + 4*a, aw + 4*st, 'z' if (gp == 0 and st == 1) else None) for a, st in order]
        newstage = p5 and gp + 2 < npair and (gp + 2) % 4 == 0
        n = C.vmn(("a", tau, pp))
        if newstage: ex = [(-1, "s_waitcnt vmcnt(%d) lgkmcnt(0)" % n), (-1, "s_barrier")]
        else: ex = [(-1, "s_waitcnt vmcnt(%d) lgkmcnt(%d)" % (n, 5 if gp + 1 < npair else 0))]
        if gp + 2 < npair:
            for i, s in enumerate(reads(gp+2)): ex.append((i, s))
        if p5 and tau + 2 < nst:
            a, bl = act_loads(tau + 2)
            if pp == 0:
                for s in a: ex.append((0, s))
            m_ = len(bl)//4
            for i, (s, t) in enumerate(bl[m_*pp:m_*pp+m_]): ex.append((5 + (4//m_)*i, s)); C.issue(t)
        for s in interleave(mm, ex): C(s)
        stamp(C, diag, uid+"g%d" % gp)
    stamp(C, diag, uid+"gemm")
    for a in range(4): C("ds_write_b128 v2, %s offset:%d" % (vr(ACC+20+4*a), 1024*a))
    C("s_mov_b64 exec, s[40:41]\nds_write_b128 v3, %s offset:4096\ns_mov_b64 exec, -1\nds_write_b32 v0, v9" % vr(ACC+36))
    C("s_mov_b32 s60, %d" % (SPIN*16))
    C.lab("L_px_" + uid)
    C("ds_read_b32 v%d, v6" % T)
    for a in range(4): C("ds_read_b128 %s, v7 offset:%d" % (vr(WF+4*a), 1024*a))
    C("ds_read_b128 %s, v8 offset:4096" % vr(WF+16))
    C("s_waitcnt lgkmcnt(5)\nv_cmp_ne_u32 vcc, s43, v%d\ns_sub_u32 s60, s60, 1\ns_cbranch_scc1 L_py_%s\ns_cbranch_vccnz L_px_%s" % (T, uid, uid))
    C.lab("L_py_" + uid)
    for a in range(5):
        C("s_waitcnt lgkmcnt(%d)" % (4-a))
        for p in range(2): C("v_pk_add_f32 %s, %s, %s" % (vr(ACC+4*a+2*p, 2), vr(ACC+4*a+2*p, 2), vr(WF+4*a+2*p, 2)))
        for p in range(2): C("v_cvt_pk_bf16_f32 v%d, v%d, v%d" % (RR+2*a+p, ACC+4*a+2*p, ACC+4*a+2*p+1))
    lab = "L_fin_" + uid
    if p5: C("s_cmp_eq_u32 s%d, 1\ns_cbranch_scc1 %s" % (sLAY, lab))
    for p in range(2): C("buffer_store_dwordx4 %s, v4, %s, s34 offen offset:%d %s" % (vr(RR+4*p), WS, 1024*p, stf))
    C("buffer_store_dwordx2 %s, v5, %s, s34 offen %s" % (vr(RR+8, 2), WS, stf))
    C("v_cndmask_b32 v%d, 0, v%d, s[40:41]\nv_cndmask_b32 v%d, 0, v%d, s[40:41]" % (T+2, RR+8, T+3, RR+9))
    for i in range(10):
        r_ = RR+i if i < 8 else T+2+(i-8)
        C("v_dot2_f32_bf16 v%d, v%d, v11, %s\nv_dot2_f32_bf16 v%d, v%d, v%d, %s" % (T, r_, "v%d" % T if i else "0", T+1, r_, r_, "v%d" % (T+1) if i else "0"))
    C("s_nop 2")
    xsum_q_multi(C, [T, T+1], [T+2, T+3])
    C("buffer_store_dwordx2 %s, v10, %s, s39 offen %s" % (vr(T, 2), WS, stf))
    stamp(C, diag, uid+"end")
    if p5:
        C = Stream()
        C.lab(lab)
        for p in range(2): C("buffer_store_dwordx4 %s, v4, %s, s34 offen offset:%d %s" % (vr(RR+4*p), OUT, 64*p, o.get("stout", "")))
        C("buffer_store_dwordx2 %s, v5, %s, s34 offen offset:128 %s" % (vr(RR+8, 2), OUT, o.get("stout", "")))
        stamp(C, diag, uid+"end")
        return C
def proj1(C, kind, o, diag=None):
    p5 = kind == 5
    uid = "p%d" % kind
    npair = 36 if p5 else 9
    nst = 9 if p5 else 3
    ppst = lambda n: 4 if (p5 or n < 2) else 1
    ACT, RES = (WS_H, WS_XB) if p5 else (WS_O, WS_XA)
    rts = 73728 if p5 else 18432
    ld = o.get("ld", ""); stf = o.get("st", "")
    ho = p5 and o.get("hoist5", 0)
    ACC = 16; WF = 40; AW = 112; RR = 208; T = 220
    if p5 and "R" in p5sched(o): C("s_barrier")
    proj_coords(C, o)
    C("s_lshl_b32 s30, s23, 2\ns_add_u32 s30, s30, s%d" % sW)
    C("s_mul_i32 s29, s30, %d\ns_add_u32 s29, s29, s%d\ns_add_u32 s29, s29, 0x%x" % (rts, sLB, ACT))
    C("s_mul_i32 s34, s30, 18432\ns_add_u32 s34, s34, s%d\ns_add_u32 s34, s34, 0x%x" % (sLB, RES))
    C("s_lshl_b32 s35, s24, 11")
    C("s_lshr_b32 s36, s24, 2\ns_lshl_b32 s36, s36, 10\ns_and_b32 s37, s24, 3\ns_lshl_b32 s37, s37, 8\ns_add_u32 s36, s36, s37\ns_add_u32 s36, s36, 16384")
    C(vR(2)); C(vQ(3))
    C("v_add_u32 v4, s35, v1")
    C("v_lshlrev_b32 v5, 4, v2\nv_lshl_add_u32 v5, v3, 3, v5\nv_add_u32 v5, s36, v5")
    C("v_cmp_gt_u32 s[40:41], 2, v3\nv_bfrev_b32 v6, 1")
    for i in range(4): C("v_add_u32 v%d, %d, v1" % (12+i, SLOT*i))
    C("v_cndmask_b32 v5, v6, v5, s[40:41]")
    for p in range(2): C("buffer_load_dwordx4 %s, v4, %s, s34 offen offset:%d %s" % (vr(RR+4*p), WS, 1024*p, ld))
    C("buffer_load_dwordx2 %s, v5, %s, s34 offen %s" % (vr(RR+8, 2), WS, ld))
    C("s_add_u32 s34, s34, 0x%x" % ((LAYER_STRIDE + WS_XA - WS_XB) if p5 else (WS_XB - WS_XA)))
    C("s_lshl_b32 s39, s30, 10\ns_add_u32 s39, s39, s%d\ns_lshl_b32 s42, s24, 7\ns_add_u32 s39, s39, s42\ns_add_u32 s39, s39, 0x%x" % (sLB, LAYER_STRIDE + WS_STA if p5 else WS_STB))
    C("v_cmp_eq_u32 vcc, 0, v3\nv_lshlrev_b32 v10, 3, v2\nv_mov_b32 v11, 0x3f803f80")
    if p5: C("v_lshrrev_b32 v7, 1, v1")
    else: C("v_lshl_add_u32 v7, v3, 8, v10")
    C("v_cndmask_b32 v10, v6, v10, vcc")
    if p5:
        C("s_cmp_eq_u32 s%d, 0\ns_cbranch_scc1 L_p5_nf" % sLAY)
        C("v_mul_u32_u24 v9, 1152, v2\ns_mul_i32 s34, s30, %d\ns_mul_i32 s42, s24, 144\ns_add_u32 s34, s34, s42" % (16*1152))
        C("v_lshl_add_u32 v4, v3, 4, v9\nv_lshl_add_u32 v5, v3, 3, v9\nv_cndmask_b32 v5, v6, v5, s[40:41]")
        C.lab("L_p5_nf")
    C("s_lshr_b32 s44, s23, 1")
    flag_addr(C, POL, F_P4 if p5 else F_P1, 44)
    def mid():
        for i in range(10):
            C("v_lshlrev_b32 v%d, 16, v%d\nv_and_b32 v%d, 0xffff0000, v%d" % (ACC+2*i, RR+i, ACC+2*i+1, RR+i))
    rl = o.get("reslate", 1)
    edge(C, "d%d" % kind, [POL], o, diag, None if rl else mid, keep=3 if rl else 0)
    if rl: C.vm = ["res"]*3
    def act_loads(tau):
        o_ = hoist_sel(C, 32, tau, 8, 25, tau < 8 and ho) + ["s_lshl_b32 s32, s32, 13", "s_add_u32 s32, s32, s29", "s_add_u32 s33, s32, 4096"]
        lds_ = []
        for j in range(2*ppst(tau)):
            d = AW + ((tau % 3)*8 + j)*4
            if tau + 1 < nst: lds_.append(("buffer_load_dwordx4 %s, v1, %s, s%d offen offset:%d %s" % (vr(d), WS, 32 + j//4, (j % 4)*1024, ld), ("a", tau, j//2)))
            else:
                for e in range(2): lds_.append(("buffer_load_dwordx2 %s, v7, %s, s%d offen offset:%d %s" % (vr(d+2*e, 2), WS, 32 + j//4, (j % 4)*1024 + e*(512 if p5 else 128), ld), ("a", tau, j//2)))
        return o_, lds_
    def emit_act(tau):
        a, b = act_loads(tau)
        C("\n".join(a))
        for s, t in b: C(s); C.issue(t)
    def reads(gp):
        b = WF + (gp % 2)*36
        if p5: sl, off = (50 + gp//4) % 4, (gp % 4)*9216
        else: sl, off = (gp >> 1, ROWH + (gp & 1)*9216) if gp < 8 else (3, SLOT)
        return ["ds_read_b128 %s, v%d offset:%d" % (vr(b+4*j), 12 + sl, off + j*1024) for j in (0,1,2,3,8,4,5,6,7)]
    C("s_barrier")
    stamp(C, diag, uid+"Y")
    emit_act(0)
    for s in reads(0): C(s)
    lazy = (not p5) and o.get("p2lazy", 1)
    if not lazy: emit_act(1)
    pend = []
    if not p5:
        if lazy:
            C("s_add_u32 s45, s29, 8192\ns_add_u32 s46, s29, 12288\ns_add_u32 s47, s29, 16384")
            pend = [(x.replace("s32", "s45").replace("s33", "s46"), y) for x, y in act_loads(1)[1]] + [(x.replace("s32", "s47"), y) for x, y in act_loads(2)[1]]
            for _ in range(o.get("p2n0", 2)): x, y = pend.pop(0); C(x); C.issue(y)
        else: emit_act(2)
        C("s_lshl_b32 s42, s23, 3\ns_add_u32 s42, s42, s24\ns_lshl_b32 s42, s42, 2\ns_add_u32 s42, s42, s%d\ns_lshl_b32 s42, s42, 8\ns_add_u32 s42, s42, s%d\ns_add_u32 s42, s42, 0x%x" % (sW, sLB, WS_ZS))
        C("v_mov_b32 v%d, -1.0\nv_lshrrev_b32 v%d, 2, v1\nbuffer_store_dword v%d, v%d, %s, s42 offen sc1" % (T, T+1, T, T+1, WS)); C.issue("zi")
    flag_addr(C, SIG, F_P5 if p5 else F_P2, 44)
    if rl: C("s_waitcnt vmcnt(%d)" % C.vmn("res")); mid()
    stamp(C, diag, uid+"iss")
    for gp in range(npair):
        tau, pp = gp // 4, gp % 4; b = WF + (gp % 2)*36; aw = AW + ((tau % 3)*8 + 2*pp)*4
        mm = []
        for e in range(2):
            for a in range(4): mm.append(mfma(ACC+4*a, b+16*e+4*a, aw+4*e))
            mm.append(mfma(ACC+16+4*e, b+32, aw+4*e, 'z' if (gp == 0 and e == 1) else None))
        ex = []
        newstage = p5 and gp + 1 < npair and (gp + 1) % 4 == 0
        n = C.vmn(("a", tau, pp))
        if newstage: ex += [(-1, "s_waitcnt vmcnt(%d) lgkmcnt(0)" % n), (-1, "s_barrier")]
        else: ex += [(-1, "s_waitcnt vmcnt(%d) lgkmcnt(4)" % n)]
        if gp + 1 < npair:
            for i, s in enumerate(reads(gp+1)): ex.append((i, s))
            if not newstage: ex.append((4, "s_waitcnt lgkmcnt(5)"))
        else: ex.append((4, "s_waitcnt lgkmcnt(0)"))
        for pos in (1, 4, 7):
            if pend: x, y = pend.pop(0); ex.append((pos, x)); C.issue(y)
        if p5 and tau + 2 < nst:
            a, bl = act_loads(tau + 2)
            if pp == 0:
                for s in a: ex.append((0, s))
            m_ = len(bl)//4
            for i, (s, t) in enumerate(bl[m_*pp:m_*pp+m_]): ex.append((2 + (8//m_)*i, s)); C.issue(t)
        for s in interleave(mm, ex): C(s)
        stamp(C, diag, uid+"g%d" % gp)
    stamp(C, diag, uid+"gemm")
    C("s_nop 3")
    for i in range(8): C("v_cvt_pk_bf16_f32 v%d, v%d, v%d" % (RR+i, ACC+2*i, ACC+2*i+1))
    lab = "L_fin_" + uid
    def half():
        for j in range(4): C("v_permlane32_swap_b32 v%d, v%d" % (ACC+20+j, T+j))
        C("v_pk_add_f32 %s, %s, %s\nv_pk_add_f32 %s, %s, %s" % (vr(ACC+16,2), vr(ACC+16,2), vr(T,2), vr(ACC+18,2), vr(ACC+18,2), vr(T+2,2)))
        for i in (8, 9): C("v_cvt_pk_bf16_f32 v%d, v%d, v%d" % (RR+i, ACC+2*i, ACC+2*i+1))
    if p5: C("s_cmp_eq_u32 s%d, 1\ns_cbranch_scc1 %s" % (sLAY, lab))
    for p in range(2): C("buffer_store_dwordx4 %s, v4, %s, s34 offen offset:%d %s" % (vr(RR+4*p), WS, 1024*p, stf))
    half()
    C("buffer_store_dwordx2 %s, v5, %s, s34 offen %s" % (vr(RR+8, 2), WS, stf))
    stamp(C, diag, uid+"e1")
    C("v_cndmask_b32 v%d, 0, v%d, s[40:41]\nv_cndmask_b32 v%d, 0, v%d, s[40:41]" % (T+2, RR+8, T+3, RR+9))
    nd_ = o.get("ndot", 2)
    for i in range(10):
        r_ = RR+i if i < 8 else T+2+(i-8); d = T + 4*(i % nd_)
        C("v_dot2_f32_bf16 v%d, v%d, v11, %s\nv_dot2_f32_bf16 v%d, v%d, v%d, %s" % (d, r_, "v%d" % d if i >= nd_ else "0", d+1, r_, r_, "v%d" % (d+1) if i >= nd_ else "0"))
    C("s_nop 2")
    if nd_ == 2: C("v_pk_add_f32 %s, %s, %s" % (vr(T, 2), vr(T, 2), vr(T+4, 2)))
    stamp(C, diag, uid+"e2")
    xsum_q_multi(C, [T, T+1], [T+2, T+3])
    C("buffer_store_dwordx2 %s, v10, %s, s39 offen %s" % (vr(T, 2), WS, stf))
    stamp(C, diag, uid+"end")
    if p5:
        fin = Stream(); Cs = C; C = fin
        C.lab(lab)
        for p in range(2): C("buffer_store_dwordx4 %s, v4, %s, s34 offen offset:%d %s" % (vr(RR+4*p), OUT, 64*p, o.get("stout", "")))
        half()
        C("buffer_store_dwordx2 %s, v5, %s, s34 offen offset:128 %s" % (vr(RR+8, 2), OUT, o.get("stout", "")))
        stamp(C, diag, uid+"end")
        return fin
```

```python
import sys
from ph_prep import *
from ph_proj import *
from ph_attn import *
from ph_gmlp import *
HEADER = """; Generated by dev/gen.py (hand-written generator): LN+local attention / LN+gMLP x2 on gfx950.
; kernarg: x, wqkv, wo, (B_x unused), w_in, w_sp, b_sp, w_out, out, debug, ws"""
def mega(o={}, diag=None, name="mega_kernel"):
    o = dict(dict(ld="sc1", st="sc1", p1R=[7, 2]), **o)
    k = Kern(name, 256, 512, lds=163840, vgpr=256)
    k("s_cmp_ge_u32 s2, 256\ns_cbranch_scc1 L_end_m")
    stamp(k, diag, "start")
    k("s_load_dwordx16 s[36:51], s[0:1], 0\ns_load_dwordx4 s[56:59], s[0:1], %d\ns_load_dwordx2 s[24:25], s[0:1], %d" % (KA_OUT, KA_WS))
    if o.get("codepf", 1):
        k("s_getpc_b64 s[26:27]")
        k.lab("L_m_pc")
        k("s_sub_u32 s26, s26, L_m_pc-%s\ns_subb_u32 s27, s27, 0\nv_lshlrev_b32 v4, 4, v0\nv_mov_b32 v5, s27" % name)
        k("v_add_co_u32 v6, vcc, s26, v4\ns_lshr_b32 s28, s2, 3\ns_lshl_b32 s28, s28, 11\nv_addc_co_u32 v7, vcc, 0, v5, vcc")
        k("global_load_dwordx4 v[60:63], v[6:7], off")
        k("v_lshl_add_u32 v4, v0, 2, s28\nv_min_u32 v4, L_end_m-%s-4, v4" % name)
        k("v_add_co_u32 v6, vcc, s26, v4\ns_nop 1\nv_addc_co_u32 v7, vcc, 0, v5, vcc")
        k("global_load_dword v64, v[6:7], off")
    k("v_lshrrev_b32 v2, 6, v0\nv_and_b32 v1, 63, v0\nv_lshlrev_b32 v1, 4, v1\nv_readfirstlane_b32 s23, v2")
    k("s_mov_b32 s%d, 0\ns_mov_b32 s%d, 0\ns_and_b32 s%d, s23, 3" % (sLAY, sLB, sW))
    k("s_waitcnt lgkmcnt(0)")
    srd(k, 4, 24, WS_BYTES); srd(k, 8, 46, 2048*4096); srd(k, 12, 48, 4096); srd(k, 16, 56, 2048*1152)
    k("s_cmp_ge_u32 s23, 4\ns_cbranch_scc1 L_ld_m")
    C, L = Stream(), Stream()
    def dflush(st, uid, lo, n):
        st("s_cmp_lg_u32 s2, %d\ns_cbranch_scc1 L_df_%s\ns_cmp_lg_u32 s%d, 0\ns_cbranch_scc1 L_df_%s" % (o["dbgwg"], uid, sW, uid))
        st("s_load_dwordx2 s[58:59], s[0:1], %d\ns_waitcnt lgkmcnt(0)" % KA_DBG)
        if lo == 1: st("s_mov_b32 s3, s62")
        srd(st, 24, 58, 256)
        st("v_mov_b32 v17, 0")
        for i in range(n):
            st("s_sub_u32 s61, s%d, s3\nv_mov_b32 v16, s61\nbuffer_store_dword v16, v17, s[24:27], 0 offen offset:%d\ns_waitcnt vmcnt(0)" % (62 + 2*(len(diag) - n + i), 4*(lo + i)))
        st.lab("L_df_%s" % uid)
    def flush(st, slot, uid):
        if "padto" in o:
            if uid == "c0":
                st("s_waitcnt lgkmcnt(0)\ns_mov_b32 s3, s%d" % (62 if o.get("padlayer", 0) else 64))
            if uid == "c1":
                st("s_waitcnt lgkmcnt(0)")
                if o.get("padlayer", 0): st("s_mov_b32 s3, s64")
                st("s_add_u32 s3, s3, %d" % o["padto"])
                st.lab("L_pad")
                st("s_memrealtime s[62:63]\ns_waitcnt lgkmcnt(0)\ns_sub_u32 s61, s62, s3\ns_cmp_lt_i32 s61, 0\ns_cbranch_scc1 L_pad")
            return
        if "dbgwg" in o:
            if uid == "c0": dflush(st, uid, 1, len(diag) - 1)
            if uid == "c1": dflush(st, uid, len(diag), 1)
            return
        if diag and (st is not L or any(x.startswith("L") for x in diag)):
            st("s_add_u32 s61, s%d, %d" % (sLAY, slot)); stamp_flush(st, diag, 61, uid, vt=16, wait=(st is L))
    nextlayer = "s_mov_b32 s%d, 1\ns_mov_b32 s%d, 0x%x" % (sLAY, sLB, LAYER_STRIDE)
    if o.get('p2x', 0) or o.get('p5x', 0): C("v_mov_b32 v2, %d\nv_mov_b32 v4, 0\nv_mov_b32 v5, 0\nds_write2_b64 v2, v[4:5], v[4:5] offset0:0 offset1:1\ns_waitcnt lgkmcnt(0)" % L_PF)
    prep_C(C, o, diag)
    C("s_branch L_m_cl"); nC0 = len(C.L)
    C.lab("L_m_cl")
    attn(C, o, diag, prep_signal); n1 = C.nbar
    (proj if o.get('p2x', 0) else proj1)(C, 2, o, diag); gmlp(C, o, diag)
    fin = (proj if o.get('p5x', 0) else proj1)(C, 5, o, diag)
    stamp(C, diag, "drain"); flush(C, 0, "c0"); stamp(C, diag, "start")
    if o.get("p1R"): C("s_barrier"); C.nbar -= 1
    C(nextlayer + "\ns_branch L_m_cl")
    if diag: fin("s_waitcnt vmcnt(0)"); stamp(fin, diag, "drain"); flush(fin, 0, "c1")
    fin("s_endpgm")
    if o.get("lp", 0): L("s_setprio %d" % o.get("lp", 0))
    zero_counters(L)
    prep_L(L, o, diag)
    L("s_branch L_m_l1"); nL0 = len(L.L); L.lab("L_m_l1")
    a0 = P1L(L, o); a0.setup(0); a0.main(lambda us: prep_L_store(L, o, us), (lambda: prep_L_tr(L)) if o.get('p0late', 1) else None); assert L.nbar == n1
    L.lab("L_m_ll"); L.vm = []
    p3, p5, a1 = P3L(L, o), P5L(L, o), P1L(L, o)
    p2_loader(L, o, diag, p3.pre)
    p3.main(diag, p5)
    sched = o.get("p1pre", {7: [0, 1]})
    def tail(m):
        if m == 6:
            L("s_cmp_eq_u32 s%d, 1\ns_cbranch_scc1 L_m_lfin" % sLAY)
            a1.setup(1)
        a1.issue([("g", g) for g in sched.get(m, [])])
    p5.main(diag, tail)
    assert L.nbar == C.nbar, (L.nbar, C.nbar)
    flush(L, 2, "l0")
    if o.get("p1R"): L("s_barrier"); a1.issue([("g", g) for g in o["p1R"]])
    L(nextlayer + "\ns_barrier\ns_barrier")
    a1.issue([t for t in [("g", g) for g in range(8)] + ["cs"] if t not in o.get("p1post", [("g", 6)])])
    stamp(L, diag, "Lp1pre")
    a1.main()
    L("s_branch L_m_ll")
    L.lab("L_m_lfin")
    L("s_waitcnt vmcnt(0) lgkmcnt(0)\ns_barrier\ns_barrier")
    flush(L, 2, "l1")
    k.L += C.L[:nC0] + C.tail0
    k.lab("L_ld_m"); k.L += L.L[:nL0]
    k.L += C.L[nC0:] + fin.L + C.tail + L.L[nL0:]
    k.lab("L_end_m"); k("s_endpgm")
    if o.get("allsc1", 1):
        import re
        k.L = [re.sub(r"( lds)?\s*$", lambda m: " sc1" + (m.group(1) or ""), l, count=1) if ("buffer_load" in l and WS in l and "sc1" not in l) else l for l in k.L]
    return [k]
if __name__ == "__main__":
    out = sys.argv[1] if len(sys.argv) > 1 else "mega.s"
    o = eval(sys.argv[2]) if len(sys.argv) > 2 else {}
    NAME = "interleave_layers__sliding_local_dilated__mixer_gmlp__prompt_kernel"
    txt = build(mega(o, name=NAME, diag=o.get('diag', '').split() or None), HEADER)
    if not o.get("list"): txt = txt.replace("; @launch kernel=%s " % NAME, "; @launch ")
    open(out, "w").write(txt)
```

```python
from ph_sync import *
def magic(d, maxv):
    for sh in range(8, 20):
        m = -(-(1 << sh) // d)
        if all((v*m) >> sh == v // d for v in range(maxv+1)): return m, sh
def sdiv(k, q, r, src, d, maxv):
    m, sh = magic(d, maxv)
    k("s_mul_i32 s%d, s%d, %d\ns_lshr_b32 s%d, s%d, %d\ns_mul_i32 s%d, s%d, %d\ns_sub_u32 s%d, s%d, s%d" % (q, src, m, q, q, sh, r, q, d, r, src, r))
def vdiv(k, dst, src, d, maxv, rem):
    m, sh = magic(d, maxv)
    k("v_mul_u32_u24 v%d, %d, v%d\nv_lshrrev_b32 v%d, %d, v%d\nv_mul_u32_u24 v%d, %d, v%d\nv_sub_u32 v%d, v%d, v%d" % (dst, m, src, dst, sh, dst, rem, d, dst, rem, src, rem))
P_X, P_WQKV, P_WO, P_WIN, P_WOUT = 36, 38, 40, 44, 50
DBG = 58
SRC = "s[32:35]"
F = 16
dB = [72*(u >> 1) + 32*(u & 1) for u in range(8)]
AMT = 46
VSO, VSA, VDB = 254, 255, 246
def trreads(k, lb, B, bases, BL, baseL):
    for u in range(9):
        for ih in range(2):
            off = (bases[u] + B*ih)*lb if u < 8 else (baseL + BL*ih)*lb
            k("ds_read_b64_tr_b16 %s, v%d offset:%d" % (vr(F+4*u+2*ih, 2), 4 if u < 8 else 5, off))
def colsum(k, vaddr, sb, stf):
    for i in range(36): k("v_dot2_f32_bf16 v%d, v%d, v11, %s" % (12 + i % 2, F+i, "v%d" % (12 + i % 2) if i > 1 else "0"))
    k("s_nop 2\nv_add_f32 v12, v12, v13")
    xsum_q(k, 12, 13)
    k("buffer_store_dword v12, v%d, %s, s%d offen %s" % (vaddr, WS, sb, stf))
def stores(k, vsel, soff, stf):
    for u in range(9):
        k("s_waitcnt lgkmcnt(%d)" % min(15, 16 - 2*u))
        k(soff(u))
        k("buffer_store_dwordx4 %s, v%d, %s, s31 offen %s" % (vr(F+4*u), vsel(u), WS, stf))
SO = [37, 38, 39, 40, 41, 42, 43, 47, 48]
def wload(k, ncw, ptr, rows, stride, A, AL, LB, ld0, bars):
    sdiv(k, 28, 27, 26, ncw, 200)
    srd(k, 32, ptr, rows*stride)
    k("s_mul_i32 s29, s28, %d\ns_lshl_b32 s31, s27, 7\ns_add_u32 s29, s29, s31\ns_mul_i32 s31, s%d, %d\ns_add_u32 s29, s29, s31" % (288*stride, sW, 72*stride))
    k("v_lshrrev_b32 v4, 7, v1\nv_mul_u32_u24 v4, %d, v4\nv_and_b32 v5, 0x70, v1\nv_add_u32 v4, v4, v5" % stride)
    for j in range(-1, 9):
        if j >= 0: k("s_add_u32 m0, s30, %d\ns_add_u32 s31, s29, %d\nbuffer_load_dwordx4 v4, %s, s31 offen %s lds" % (LB + j*1024, j*8*stride, SRC, ld0))
        for _ in range(bars.get(j, 0)): k("s_barrier")
    k("v_lshrrev_b32 v7, 2, v2\nv_and_b32 v8, 3, v2\ns_lshl_b32 s31, s%d, 5\ns_add_u32 s31, s31, %d" % (sW, LB))
    k("v_lshlrev_b32 v9, 7, v7\nv_lshl_add_u32 v9, v8, 3, v9\nv_add_u32 v9, s31, v9")
    k("v_mul_u32_u24 v4, %d, v3\nv_add_u32 v4, v4, v9\nv_mul_u32_u24 v5, %d, v3\nv_add_u32 v5, v5, v9" % (A*128, AL*128))
    k("s_lshl_b32 s31, s27, 2\ns_add_u32 s31, s31, s%d\nv_lshl_add_u32 v7, s31, 2, v7\nv_lshlrev_b32 v8, 4, v8\nv_lshl_add_u32 v8, v3, 8, v8" % sW)
def proj_dst(k, ncp, base):
    vdiv(k, 9, 7, 18, 143, 10)
    k("v_lshrrev_b32 v12, 3, v10\nv_and_b32 v13, 1, v10\nv_lshl_add_u32 v12, v12, 1, v13\nv_bfe_u32 v14, v10, 1, 2\nv_cmp_gt_u32 vcc, 16, v10")
    k("v_mul_u32_u24 v9, %d, v9\nv_add_u32 v9, v9, v8" % (ncp*9216))
    k("v_cndmask_b32 v12, 8, v12, vcc\nv_cndmask_b32 v14, v13, v14, vcc\nv_mov_b32 v15, 0x1000\nv_mov_b32 v13, 0x80\nv_cndmask_b32 v15, v13, v15, vcc")
    k("v_lshl_add_u32 v9, v12, 10, v9\nv_lshl_add_u32 v9, v14, 6, v9\nv_add_u32 v10, v9, v15")
    k("s_and_b32 s31, s28, 1\ns_cmp_eq_u32 s31, 1\ns_cselect_b64 vcc, -1, 0\nv_cndmask_b32 v14, v9, v10, vcc")
    k("s_mul_i32 s31, s28, %d" % (4*9216))
    for u in range(8): k("s_add_u32 s%d, s31, 0x%x" % (SO[u], base + (u >> 1)*9216))
    k("s_lshr_b32 s31, s28, 1\ns_mul_i32 s31, s31, 9216\ns_add_u32 s%d, s31, 0x%x" % (SO[8], base + (ncp*8//9)*9216))
def prep_C(k, o, diag):
    stf = o.get("st0", "sc1"); ld0 = o.get("ld0", "")
    k(vR(2)); k(vQ(3)); k("v_bfrev_b32 v6, 1\nv_mov_b32 v11, 0x3f803f80")
    k("s_lshl_b32 s30, s%d, 12\ns_and_b32 s29, s%d, 1" % (sW, sW))
    stamp(k, diag, "p0go")
    k("s_cmp_lt_u32 s2, 128\ns_cbranch_scc1 L_p0_x\ns_cmp_lt_u32 s2, 236\ns_cbranch_scc1 L_p0_wq\ns_cmp_lt_u32 s2, 254\ns_cbranch_scc1 L_p0_wo")
    k("s_mov_b32 s%d, 0\ns_mov_b32 s27, 0x800000" % AMT)
    k("s_barrier\ns_barrier\ns_branch L_p0_cd")
    k.lab("L_p0_wo")
    k("s_mul_i32 s30, s%d, 9216\ns_sub_u32 s26, s2, 236" % sW)
    wload(k, 9, P_WO, 576, 1152, 4, 72, 0, ld0, {8: 1})
    proj_dst(k, 9, WS_WO)
    k("s_cmp_ge_u32 s26, 4\ns_cbranch_scc1 L_p0_n2\ns_lshl_b32 s31, s26, 2\ns_add_u32 s31, s31, s%d\ns_lshl_b32 s31, s31, 12\ns_add_u32 s31, s31, 0x%x" % (sW, WS_FLAG + 32768))
    zero16(k, 31)
    k.lab("L_p0_n2")
    k("s_waitcnt vmcnt(0)\ns_barrier")
    trreads(k, 128, 20, [36*u for u in range(8)], 36, 16)
    stores(k, lambda u: (9 + (u & 1)) if u < 8 else 14, lambda u: "s_mov_b32 s31, s%d" % SO[u], stf)
    k("s_mov_b32 s%d, 1\ns_mov_b32 s27, %d\ns_branch L_p0_cd" % (AMT, 16*F_P4))
    k.lab("L_p0_wq")
    srd(k, 32, P_WQKV, 576*3456)
    k("s_sub_u32 s23, s2, 128")
    sdiv(k, 25, 24, 23, 27, 107)
    k("s_mul_i32 s26, s25, %d\ns_lshl_b32 s31, s24, 7\ns_add_u32 s26, s26, s31" % (144*3456))
    k("v_lshrrev_b32 v4, 7, v1\nv_mul_u32_u24 v4, 3456, v4\nv_and_b32 v5, 0x70, v1\nv_add_u32 v4, v4, v5")
    k("s_mul_i32 s31, s%d, %d\ns_add_u32 s27, s26, s31" % (sW, 32*3456))
    for j in range(4): k("s_add_u32 m0, s30, %d\ns_add_u32 s31, s27, %d\nbuffer_load_dwordx4 v4, %s, s31 offen %s lds" % (j*1024, j*8*3456, SRC, ld0))
    k("s_cmp_ge_u32 s%d, 2\ns_cbranch_scc1 L_p0_q5" % sW)
    k("s_lshl_b32 s31, s29, 10\ns_add_u32 m0, s31, 16384\ns_mul_i32 s31, s29, %d\ns_add_u32 s31, s31, s26\ns_add_u32 s31, s31, %d" % (8*3456, 128*3456))
    k("buffer_load_dwordx4 v4, %s, s31 offen %s lds" % (SRC, ld0))
    k.lab("L_p0_q5")
    k("s_barrier")
    k("v_lshrrev_b32 v7, 2, v2\nv_and_b32 v8, 3, v2\ns_lshl_b32 s31, s%d, 5" % sW)
    k("v_lshlrev_b32 v9, 7, v7\nv_lshl_add_u32 v9, v3, 3, v9\nv_add_u32 v9, s31, v9")
    k("v_lshl_add_u32 v4, v8, 10, v9\nv_and_b32 v5, 1, v2\nv_mul_u32_u24 v5, %d, v5\nv_add_u32 v5, v5, v9" % (72*128))
    k("s_lshl_b32 s31, s24, 2\ns_add_u32 s31, s31, s%d\nv_lshlrev_b32 v8, 4, v8\nv_lshl_add_u32 v8, v7, 8, v8\nv_lshl_add_u32 v7, s31, 2, v3" % sW)
    vdiv(k, 9, 7, 144, 431, 10)
    vdiv(k, 12, 10, 9, 143, 13)
    k("v_cmp_lt_u32 s[36:37], 4, v13\nv_cmp_eq_u32 s[38:39], 4, v13\nv_cmp_eq_u32 s[40:41], 2, v9\nv_lshlrev_b32 v14, 1, v9\nv_add_u32 v15, 1, v14\nv_subrev_u32 v10, 5, v13")
    k("v_cndmask_b32 v14, v14, v15, s[36:37]\nv_cndmask_b32 v13, v13, v10, s[36:37]\nv_cndmask_b32 v14, v14, 6, s[38:39]\nv_cndmask_b32 v13, v13, v9, s[38:39]")
    k("s_and_b64 s[40:41], s[40:41], s[38:39]\ns_mov_b32 s31, %d" % (18*7168))
    k("v_mul_lo_u32 v9, v12, s31\nv_add_u32 v9, v9, v8\nv_lshl_add_u32 v9, v14, 10, v9\nv_lshl_add_u32 v9, v13, 6, v9")
    k("s_and_b32 s31, s25, 1\nv_lshrrev_b32 v8, 3, v2\nv_cmp_eq_u32 vcc, s31, v8")
    k("v_add_u32 v15, 64, v9\nv_cndmask_b32 v15, v6, v15, s[40:41]\nv_cndmask_b32 v8, v6, v9, vcc")
    k("v_lshlrev_b32 v10, 2, v2\nv_lshl_add_u32 v10, v7, 4, v10")
    k("v_cmp_gt_u32 vcc, 4, v2\ns_lshl_b32 s45, s25, 13\ns_add_u32 s45, s45, 0x%x\nv_cndmask_b32 v10, v6, v10, vcc" % WS_CSQ)
    k("s_mul_i32 s42, s25, %d\ns_add_u32 s42, s42, 0x%x\ns_lshr_b32 s44, s25, 1\ns_mul_i32 s44, s44, 7168\ns_add_u32 s44, s44, 0x%x" % (4*7168, WS_WQ, WS_WQ + 16*7168))
    sdiv(k, 26, 27, 24, 9, 26)
    k("s_lshl_b32 s27, s27, 4\ns_add_u32 s28, s27, 16\nv_lshrrev_b32 v%d, 4, v1\nv_mul_u32_u24 v7, 9, v%d\nv_add_u32 v%d, 9, v7" % (VSO, VSO, VSA))
    k("v_min_u32 v%d, s28, v%d\nv_max_u32 v7, s27, v7\nv_sub_u32 v%d, v%d, v7\nv_cmp_lt_i32 vcc, 0, v%d\nv_lshlrev_b32 v%d, 8, v%d" % (VSA, VSA, VSA, VSA, VSA, VSO, VSO))
    k("v_mov_b32 v14, 0x3f003f00\nv_cndmask_b32 v%d, v6, v%d, vcc" % (VSO, VSO))
    sq = lambda u: "s_add_u32 s31, s42, %d" % (u*7168) if u < 4 else "s_mov_b32 s31, s44"
    k("s_cmp_eq_u64 s[40:41], 0\ns_cbranch_scc1 L_p0_np")
    for i in range(4): k("v_mov_b32 v%d, 0" % (52+i))
    for u in range(5): k(sq(u)); k("buffer_store_dwordx4 v[52:55], v15, %s, s31 offen %s" % (WS, stf))
    k("s_waitcnt vmcnt(5)\ns_branch L_p0_n3")
    k.lab("L_p0_np")
    k("s_waitcnt vmcnt(0)")
    k.lab("L_p0_n3")
    k("s_barrier")
    stamp(k, diag, "p0ld")
    for u in range(5):
        for ih in range(2): k("ds_read_b64_tr_b16 %s, v%d offset:%d" % (vr(F+4*u+2*ih, 2), 4 if u < 4 else 5, ((dB[u] if u < 4 else 64) + 4*ih)*128))
    for u in range(5):
        k("s_waitcnt lgkmcnt(%d)" % (8 - 2*u)); k(sq(u))
        k("buffer_store_dwordx4 %s, v%d, %s, s31 offen %s" % (vr(F+4*u), 9 if u < 4 else 8, WS, stf))
    for i in range(20): k("v_dot2_f32_bf16 v%d, v%d, v%d, %s" % (12 + i % 2, F+i, 11 if i < 16 else 14, "v%d" % (12 + i % 2) if i > 1 else "0"))
    k("s_nop 2\nv_add_f32 v12, v12, v13\ns_nop 1\nv_add_f32_dpp v12, v12, v12 row_ror:4 row_mask:0xf bank_mask:0xf\ns_nop 1\nv_add_f32_dpp v12, v12, v12 row_ror:8 row_mask:0xf bank_mask:0xf")
    k("buffer_store_dword v12, v10, %s, s45 offen %s" % (WS, stf))
    k("s_branch L_p0_ce")
    k.lab("L_p0_x")
    srd(k, 32, P_X, 2048*1152)
    k("s_mul_i32 s26, s2, 18432\ns_mov_b32 m0, s30\ns_add_u32 s31, s26, s30")
    for j in range(4): k("buffer_load_dwordx4 v1, %s, s31 offen offset:%d %s lds" % (SRC, j*1024, ld0))
    k("s_lshl_b32 s27, s29, 10\ns_add_u32 s27, s27, 16384\ns_mov_b32 m0, s27\ns_add_u32 s31, s26, s27")
    k("buffer_load_dwordx4 v1, %s, s31 offen %s lds" % (SRC, ld0))
    k("s_barrier")
    k("s_mul_i32 s31, s%d, 288\nv_mul_u32_u24 v7, 1152, v2\nv_lshl_add_u32 v4, v3, 4, v7\nv_add_u32 v4, s31, v4" % sW)
    k("s_mul_i32 s31, s29, 576\nv_mul_u32_u24 v5, 144, v3\nv_add3_u32 v5, v5, v7, s31")
    k("s_add_u32 s26, s26, 0x%x\ns_add_u32 s42, s26, s30\ns_add_u32 s44, s26, s27" % WS_XA)
    k("s_lshl_b32 s45, s2, 10\ns_lshl_b32 s31, s%d, 8\ns_add_u32 s45, s45, s31\ns_add_u32 s45, s45, 0x%x" % (sW, WS_STA))
    k("v_cmp_gt_u32 vcc, 2, v3\nv_lshrrev_b32 v10, 1, v1\ns_mov_b32 s%d, 2\nv_cndmask_b32 v10, v6, v10, vcc" % AMT)
    k("s_lshr_b32 s27, s2, 3\ns_add_u32 s27, s27, %d" % (16*F_P5))
    stamp(k, diag, "p0w")
    k("s_waitcnt vmcnt(0)\ns_barrier")
    stamp(k, diag, "p0ld")
    for u in range(5): k("ds_read_b128 %s, v%d offset:%d" % (vr(F+4*u), 4 if u < 4 else 5, 144*(u >> 1) + 64*(u & 1) if u < 4 else 128))
    for u in range(4): k("s_waitcnt lgkmcnt(%d)\nbuffer_store_dwordx4 %s, v1, %s, s42 offen offset:%d %s" % (4-u, vr(F+4*u), WS, u*1024, stf))
    dots = lambda i: "v_dot2_f32_bf16 v12, v%d, v11, %s\nv_dot2_f32_bf16 v13, v%d, v%d, %s" % (F+i, "v12" if i else "0", F+i, F+i, "v13" if i else "0")
    for i in range(16): k(dots(i))
    k("s_waitcnt lgkmcnt(0)\ns_cmp_ge_u32 s%d, 2\ns_cbranch_scc1 L_p0_xs" % sW)
    k("buffer_store_dwordx4 %s, v1, %s, s44 offen %s" % (vr(F+16), WS, stf))
    for i in range(16, 20): k(dots(i))
    k.lab("L_p0_xs")
    k("s_nop 2\nv_mov_b32 v14, v12\nv_mov_b32 v15, v13\ns_nop 1\nv_permlane32_swap_b32 v12, v14\nv_permlane32_swap_b32 v13, v15\nv_add_f32 v12, v12, v14\nv_add_f32 v13, v13, v15")
    k("buffer_store_dwordx2 v[12:13], v10, %s, s45 offen %s" % (WS, stf))
    k.lab("L_p0_cd")
    k("v_cmp_eq_u32 vcc, 0, v1\ns_lshl_b32 s27, s27, 8\nv_mov_b32 v%d, s%d\nv_mov_b32 v%d, s27\nv_cndmask_b32 v%d, v6, v%d, vcc" % (VSA, AMT, VSO, VSO, VSO))
    k.lab("L_p0_ce")
    stamp(k, diag, "p0is")
    srd(k, DSRD, DBG, 256)
    k("v_mov_b32 v4, 0\nbuffer_load_dword v%d, v4, s[%d:%d], 0 offen sc1" % (VDB, DSRD, DSRD+3))
    k("s_barrier")
    k.nbar = 3
DSRD = 48
def prep_signal(k):
    k("v_cmp_gt_u32 vcc, 4, v%d\nv_mov_b32 v4, 0\ns_mov_b32 s46, 0x%x\ns_cbranch_vccz L_pd_dbg" % (VDB, WS_FLAG))
    vpoll(k, "dbg", "s[%d:%d]" % (DSRD, DSRD+3), "0", 4, 5, 4)
    k("buffer_atomic_add v%d, v%d, %s, s46 offen sc1" % (VSA, VSO, WS))
U_WI, U_WU, U_END = 0, 144, 216
def tr_wu(k): trreads(k, 128, 16, [144*(u >> 2) + 32*(u & 3) for u in range(8)], 144, 128)
def tr_wi(k): trreads(k, 128, 4, dB, 4, 64)
def prep_L_tr(k):
    k("s_cmp_lt_u32 s2, %d\ns_cbranch_scc1 L_p0_t1\ns_cmp_ge_u32 s2, %d\ns_cbranch_scc1 L_p0_t2" % (U_WU, U_END))
    tr_wu(k); k("s_branch L_p0_t2")
    k.lab("L_p0_t1"); tr_wi(k)
    k.lab("L_p0_t2"); k("s_waitcnt lgkmcnt(0)")
def prep_L(k, o, diag):
    ld0 = o.get("ld0", ""); LB = 36864
    late = o.get("p0late", 1)
    bars = {-1: 1, o.get("p0bar", 0): 2} if not late else o.get("p0bars", {-1: 5})
    if late: LB = 94208
    k(vR(2)); k(vQ(3)); k("v_bfrev_b32 v6, 1\nv_mov_b32 v11, 0x3f803f80")
    k("s_mul_i32 s30, s%d, 9216" % sW)
    sk = o.get("p0skip", 0)
    k("s_cmp_lt_u32 s2, %d\ns_cbranch_scc1 L_p0_wi\ns_cmp_lt_u32 s2, %d\ns_cbranch_scc1 L_p0_wu" % (U_WU if sk < 2 else 0, U_END if sk < 1 else 0))
    for r_ in (9, 10, 14, 15): k("v_mov_b32 v%d, v6" % r_)
    for r_ in SO + [49]: k("s_mov_b32 s%d, 0" % r_)
    k("s_barrier\ns_barrier\ns_barrier\ns_barrier\ns_barrier\ns_branch L_p0_ld")
    def landed():
        if late: return
        k("s_barrier\ns_waitcnt vmcnt(0)\ns_barrier")
        stamp(k, diag, "Lp0ld")
    k.lab("L_p0_wu")
    k("s_sub_u32 s26, s2, %d" % U_WU)
    wload(k, 9, P_WOUT, 2304, 1152, 4, 4, LB, ld0, bars)
    proj_dst(k, 36, WS_WU)
    k("v_mov_b32 v15, v6\ns_mov_b32 s49, 0")
    landed()
    if not late: tr_wu(k)
    k("s_branch L_p0_ld")
    k.lab("L_p0_wi")
    k("s_mov_b32 s26, s2")
    wload(k, 72, P_WIN, 576, 9216, 8, 72, LB, ld0, bars)
    k("s_cmp_lt_u32 s31, 144\ns_cselect_b32 s23, 1, 0\ns_cselect_b32 s24, 0, 144\ns_sub_u32 s26, s31, s24")
    sdiv(k, 25, 24, 26, 9, 143)
    k("s_lshl_b32 s26, s25, 1\ns_add_u32 s26, s26, s23\ns_mul_i32 s26, s26, %d\ns_lshl_b32 s31, s24, 10\ns_add_u32 s26, s26, s31\ns_add_u32 s26, s26, 0x%x" % (18*9216, WS_WI))
    k("s_mul_i32 s31, s28, 9216\ns_add_u32 s%d, s26, s31\ns_add_u32 s%d, s%d, %d\ns_lshl_b32 s31, s31, 3\ns_add_u32 s26, s26, s31" % (SO[8], SO[8], SO[8], 16*9216))
    for u in range(8): k("s_add_u32 s%d, s26, %d" % (SO[u], u*9216))
    k("s_lshl_b32 s49, s25, 12\ns_mul_i32 s31, s28, 1152\ns_add_u32 s49, s49, s31\ns_mul_i32 s31, s23, 576\ns_add_u32 s49, s49, s31\ns_lshl_b32 s31, s24, 6\ns_add_u32 s49, s49, s31\ns_add_u32 s49, s49, 0x%x" % WS_CSI)
    k("v_cmp_eq_u32 vcc, 0, v3\nv_lshlrev_b32 v15, 2, v2\nv_mov_b32 v9, v1\nv_mov_b32 v10, v1\nv_mov_b32 v14, v1\nv_cndmask_b32 v15, v6, v15, vcc")
    landed()
    if not late: tr_wi(k)
    k.lab("L_p0_ld")
    k("s_waitcnt lgkmcnt(0)")
    stamp(k, diag, "Lp0st")
    k.nbar = 5
def prep_L_store(k, o, us):
    stf = o.get("st0", "sc1")
    for u in us:
        if u < 9: k("buffer_store_dwordx4 %s, v%d, %s, s%d offen %s" % (vr(F+4*u), (9 + (u & 1)) if u < 8 else 14, WS, SO[u], stf))
        else: colsum(k, 15, 49, stf)
        k.issue("p0")
def zero16(k, sbase):
    k("v_and_b32 v56, 0x380, v1\nv_add_u32 v56, v56, v1")
    for i in range(4): k("v_mov_b32 v%d, 0" % (52+i))
    for i in range(2): k("buffer_store_dwordx4 v[52:55], v56, %s, s%d offen offset:%d sc1" % (WS, sbase, 2048*i))
def zero_counters(k):
    k("s_cmp_lg_u32 s2, 0\ns_cbranch_scc1 L_p0_nz\ns_lshl_b32 s31, s%d, 12\ns_add_u32 s31, s31, 0x%x" % (sW, WS_FLAG))
    zero16(k, 31)
    k("s_waitcnt vmcnt(0)\ns_mov_b32 s53, 1\ns_atomic_add s53, s[%d:%d], 0" % (DBG, DBG+1))
    k.lab("L_p0_nz")
```

```python
import sys
sys.path.insert(0, "dev"); sys.path.insert(0, "dev")
from asmlib import *
STAMP = 0xC000000; FLAG = 0xB000000
def gen(name, idx, nst, same_xcd, mode, fstride=128, sleep=0, nld=8, sflag='sc1', lflag='sc1', rounds=16, npoll=1, pre=0, thr=63, prewhen=0, fflag='sc1', rep=4, npipe=4):
    k = Kern(name, 256, 512, lds=131072, vgpr=64)
    k("s_cmp_ge_u32 s2, 256\ns_cbranch_scc1 L_end_%s" % name)
    k("s_load_dwordx2 s[4:5], s[0:1], 80")
    k("v_and_b32 v1, 63, v0\nv_lshrrev_b32 v2, 6, v0\ns_nop 0\nv_readfirstlane_b32 s19, v2\nv_lshlrev_b32 v3, 4, v1")
    nfl = {'w': 64, 'g': 16, 'a': 1, 'aw': 1, 'c': 1, 's': 1, 'S': 1, 'P': 1, 'T': 64}[mode]
    k("v_and_b32 v7, %d, v1\nv_mul_u32_u24 v7, %d, v7" % (nfl-1, fstride))
    if mode == 'T': k("v_mul_u32_u24 v7, %d, v1\nv_add_u32 v7, %d, v7" % (nst*1024, (nst-1)*1024 + 1008))
    k("s_waitcnt lgkmcnt(0)")
    srd(k, 8, 4, 0x10000000)
    k("s_and_b32 s20, s19, 3")
    if same_xcd:
        k("s_and_b32 s21, s2, 7\ns_lshl_b32 s21, s21, 1\ns_lshr_b32 s23, s2, 7\ns_add_u32 s21, s21, s23\ns_lshr_b32 s22, s2, 3\ns_and_b32 s22, s22, 15")
    else:
        k("s_lshr_b32 s21, s2, 4\ns_and_b32 s22, s2, 15")
    per_wg = 4*nst*1024
    k("s_mul_i32 s24, s21, %d" % (16*per_wg))
    k("s_mul_i32 s25, s22, %d\ns_add_u32 s25, s25, s24\ns_mul_i32 s23, s20, %d\ns_add_u32 s25, s25, s23" % (per_wg, nst*1024))
    k("s_mul_i32 s26, s21, %d\ns_add_u32 s26, s26, 0x%x" % (8192 + 256, FLAG + idx*0x40000))
    if mode == 'w': k("s_lshl_b32 s27, s22, 2\ns_add_u32 s27, s27, s20\ns_mul_i32 s27, s27, %d\ns_add_u32 s27, s27, s26" % fstride)
    elif mode == 'g': k("s_mul_i32 s27, s22, %d\ns_add_u32 s27, s27, s26" % fstride)
    else: k("s_mov_b32 s27, s26")
    inc = {'w': 1, 'g': 1, 'a': 16, 'aw': 64, 'c': 16, 's': 16, 'S': 16, 'P': 16, 'T': 1}[mode]
    k('s_add_u32 s48, s4, s26\ns_addc_u32 s49, s5, 0')
    k("s_mov_b32 s28, 1\ns_mov_b32 s44, 0\ns_mov_b32 s45, 0\ns_mov_b32 s46, 0\ns_mov_b32 s47, %d" % inc)
    k("v_mov_b32 v12, 0\nv_mov_b32 v14, 1\nv_mov_b32 v15, 0x10000\nds_write_b32 v15, v12\ns_waitcnt lgkmcnt(0)")
    k("s_barrier\ns_memrealtime s[34:35]\ns_waitcnt lgkmcnt(0)")
    k("s_cmp_ge_u32 s19, 4\ns_cbranch_scc1 L_ld_%s" % name)
    k.lab("L_loop_%s" % name)
    k("s_memtime s[30:31]")
    k("v_mov_b32 v8, s28\nv_mov_b32 v9, s28\nv_mov_b32 v10, s28\nv_mov_b32 v11, s28")
    for i in range(nst):
        k("s_add_u32 s23, s25, %d\nbuffer_store_dwordx4 v[8:11], v3, s[8:11], s23 offen %s" % (i*1024, sflag))
    if prewhen == 1: k("s_barrier")
    k("s_waitcnt vmcnt(%d)\ns_memtime s[32:33]" % (63 if mode == 'T' else 0))
    if prewhen == 2: k("s_barrier")
    k("s_mov_b64 exec, 1")
    if mode in ('g', 'a', 'c', 's', 'S', 'P'):
        k("ds_add_rtn_u32 v16, v15, v14\ns_waitcnt lgkmcnt(0)\nv_and_b32 v16, 3, v16\nv_cmp_eq_u32 vcc, 3, v16\ns_cbranch_vccz L_nf_%s" % name)
    if mode == 'T': pass
    elif mode in ('w', 'g'): k("buffer_store_dword v8, v12, s[8:11], s27 offen %s" % fflag)
    elif mode == 'P':
        k("s_mov_b32 s50, 1")
        for r in range(rep): k("s_atomic_add s50, s[48:49], %d" % (256*r))
        k("s_and_b32 s54, s22, %d\ns_lshl_b32 s54, s54, 8\ns_add_u32 s54, s48, s54\ns_addc_u32 s55, s49, 0" % (rep-1))
        for i in range(npipe): k("s_mov_b32 s%d, 0" % (60+i))
        k("s_mov_b32 s40, 20000")
        k.lab("L_pp_%s" % name)
        for i in range(npipe):
            k("s_atomic_umax s%d, s[54:55], 0 glc" % (60+i))
            for _ in range(sleep):
                k("s_sleep 1")
                k("s_max_u32 s51, s60, s61")
                for j in range(2, npipe): k("s_max_u32 s51, s51, s%d" % (60+j))
                k("s_cmp_ge_u32 s51, s47\ns_cbranch_scc1 L_nf_%s" % name)
        k("s_sub_u32 s40, s40, 1\ns_cbranch_scc0 L_pp_%s" % name)
    elif mode in ('s', 'S'): k("s_mov_b32 s50, 1\ns_atomic_add s50, s[48:49], 0")
    else: k("buffer_atomic_add v14, v12, s[8:11], s27 offen %s" % fflag)
    if mode in ('c', 's', 'S'):
        k("s_mov_b32 s40, 20000")
        k.lab("L_cpoll_%s" % name)
        if sleep: k("s_sleep %d" % sleep)
        if mode == 'c':
            k("buffer_load_dword v8, v12, s[8:11], s26 offen sc1\ns_waitcnt vmcnt(0)\nv_cmp_gt_u32 vcc, s47, v8\ns_sub_u32 s40, s40, 1\ns_cbranch_scc1 L_nf_%s\ns_cbranch_vccnz L_cpoll_%s" % (name, name))
        else:
            if mode == 's': k("s_load_dword s51, s[48:49], 0 glc")
            else: k("s_mov_b32 s51, 0\ns_atomic_add s51, s[48:49], 0 glc")
            k("s_waitcnt lgkmcnt(0)\ns_sub_u32 s40, s40, 1\ns_cbranch_scc1 L_nf_%s\ns_cmp_lt_u32 s51, s47\ns_cbranch_scc1 L_cpoll_%s" % (name, name))
    k.lab("L_nf_%s" % name)
    k("s_mov_b64 exec, -1")
    k("s_barrier\ns_memtime s[38:39]\ns_barrier")
    k("s_lshl_b32 s23, s20, 13\nv_add_u32 v13, s23, v3")
    k("ds_read_b128 v[16:19], v13\ns_waitcnt lgkmcnt(0)\nv_cmp_ne_u32 vcc, s28, v16\ns_bcnt1_i32_b64 s23, vcc\ns_add_u32 s44, s44, s23\nv_cmp_ne_u32 vcc, s28, v19\ns_bcnt1_i32_b64 s23, vcc\ns_add_u32 s44, s44, s23")
    k("s_sub_u32 s23, s32, s30\ns_add_u32 s45, s45, s23\ns_sub_u32 s23, s38, s32\ns_add_u32 s46, s46, s23")
    k("s_add_u32 s47, s47, %d" % inc)
    k("s_add_u32 s25, s25, %d\ns_add_u32 s28, s28, 1\ns_cmp_le_u32 s28, %d\ns_cbranch_scc1 L_loop_%s" % (256*per_wg, rounds, name))
    k("s_memrealtime s[36:37]\ns_waitcnt lgkmcnt(0)")
    k("s_sub_u32 s36, s36, s34")
    k("v_mov_b32 v4, s44\nv_mov_b32 v5, s36\nv_mov_b32 v6, s45\nv_mov_b32 v7, s46\ns_lshl_b32 s26, s2, 4\ns_add_u32 s26, s26, 0x%x" % (STAMP + idx*4096))
    k("v_cmp_eq_u32 vcc, 0, v0\ns_and_saveexec_b64 s[28:29], vcc\ns_cbranch_execz L_end_%s" % name)
    k("buffer_store_dwordx4 v[4:7], v12, s[8:11], s26 offen\ns_waitcnt vmcnt(0)")
    k("s_endpgm")
    k.lab("L_ld_%s" % name)
    if mode == 'T': k("s_mov_b32 s26, s24")
    k("s_lshl_b32 s29, s20, 13")
    k("s_mul_i32 s23, s20, %d\ns_add_u32 s24, s24, s23" % (4*per_wg))
    k.lab("L_ll_%s" % name)
    if prewhen: k("s_barrier")
    if pre:
        k("s_bfe_u32 s52, s2, 0x20003\ns_mul_i32 s52, s52, %d\ns_mul_i32 s53, s28, %d\ns_add_u32 s52, s52, s53\ns_mul_i32 s53, s20, %d\ns_add_u32 s52, s52, s53\ns_add_u32 s52, s52, 0xD000000" % (4*pre*1024, 16*pre*1024, pre*1024))
        for i in range(pre):
            k("s_add_u32 m0, s29, %d\ns_add_u32 s23, s52, %d\nbuffer_load_dwordx4 v3, s[8:11], s23 offen lds" % (32768 + (i%8)*1024, i*1024))
            if thr < 63: k("s_waitcnt vmcnt(%d)" % thr)
    if mode in ('c', 's', 'S', 'P'): npoll = 0
    k("s_cmp_ge_u32 s20, %d\ns_cbranch_scc1 L_pd_%s" % (npoll, name))
    k("s_mov_b32 s40, 20000")
    if nfl < 64: k("s_mov_b64 exec, 0x%x" % ((1 << nfl) - 1))
    k.lab("L_poll_%s" % name)
    if sleep: k("s_sleep %d" % sleep)
    k("buffer_load_dword v8, v7, s[8:11], s26 offen sc1\ns_waitcnt vmcnt(0)\nv_cmp_gt_u32 vcc, s47, v8\ns_sub_u32 s40, s40, 1\ns_cbranch_scc1 L_pd_%s\ns_cbranch_vccnz L_poll_%s" % (name, name))
    k.lab("L_pd_%s" % name)
    k("s_mov_b64 exec, -1\ns_barrier")
    for i in range(nld):
        k("s_add_u32 m0, s29, %d\ns_add_u32 s23, s24, %d\nbuffer_load_dwordx4 v3, s[8:11], s23 offen %s lds" % ((i%8)*1024, (i*per_wg//2 + (nst-1)*1024) % (4*per_wg), lflag))
    k("s_waitcnt vmcnt(0)\ns_barrier")
    if mode == 'T': k("s_add_u32 s26, s26, %d" % (256*per_wg))
    k("s_add_u32 s47, s47, %d\ns_add_u32 s24, s24, %d\ns_add_u32 s28, s28, 1\ns_cmp_le_u32 s28, %d\ns_cbranch_scc1 L_ll_%s" % (inc, 256*per_wg, rounds, name))
    k.lab("L_end_%s" % name)
    k("s_endpgm")
    k.rounds = rounds
    return k
cfgs = eval(sys.argv[1])
import os
ks = [gen("f%d_kernel"%i, i, **c) for i,c in enumerate(cfgs)]
if os.path.exists('/dev/kfd'):
    from h import *
    c = Ctx()
    for i,(cf,k) in enumerate(zip(cfgs,ks)):
        open("mb_h.s","w").write(build([k]))
        kl,_ = assemble("mb_h.s")
        for rep in range(2):
            c.reinit(pat=0, upload=False); c.ws(0xD000000, 16<<20, np.uint8)
            c.run(kl)
            st = c.ws(STAMP+i*4096, 256*16, np.uint32).reshape(256,4)
        print(cf, "us/round %.2f  stale %d  store cyc %d  flag->polled cyc %d" % (np.median(st[:,1])/100/k.rounds, st[:,0].sum(), np.median(st[:,2])/k.rounds, np.median(st[:,3])/k.rounds))
        kl.unload()
else:
    open("mb_h.s","w").write(build(ks))
```

```python
from asmlib import *
from layout import *
KA_X, KA_WQKV, KA_WO, KA_BX, KA_WIN, KA_WSP, KA_BSP, KA_WOUT, KA_OUT, KA_DBG, KA_WS = [8*i for i in range(11)]
import struct
def f2u(x): return struct.unpack("<I", struct.pack("<f", x))[0]

def interleave(main, extras):
    out = []
    byp = {}
    for p, s in extras: byp.setdefault(p, []).append(s)
    out += byp.get(-1, [])
    for i, m in enumerate(main):
        out.append(m); out += byp.get(i, [])
    for p in byp: assert -1 <= p < len(main), p
    return out

class Stream:
    def __init__(self): self.L = []; self.vm = []; self.nbar = 0
    def __call__(self, s):
        for ln in s.split("\n"):
            ln = ln.strip()
            if not ln: continue
            if ln == "s_barrier": self.nbar += 1
            self.L.append(ln if ln.endswith(":") else "    " + ln)
    def lab(self, l): self.L.append(l + ":")
    def issue(self, tag): self.vm.append(tag)
    def vmn(self, *tags):
        last = max([i for i, t in enumerate(self.vm) if t in tags], default=-1)
        n = len(self.vm) - 1 - last
        self.vm = self.vm[last+1:]
        return min(n, 63)

    def waitv(self, tags, extra=""):
        n0 = self.vmn(*tags); n1 = min(63, len([t for t in self.vm if t != "L0"]))
        if n1 >= n0: return self("s_waitcnt vmcnt(%d) %s" % (n0, extra))
        lab = "L_wv_%d" % len(self.L)
        self("s_waitcnt vmcnt(%d) %s\ns_cmp_eq_u32 s22, 0\ns_cbranch_scc1 %s\ns_waitcnt vmcnt(%d)" % (n0, extra, lab, n1)); self.lab(lab)
def vr(a, n=4): return "v[%d:%d]" % (a, a+n-1)
def mfma(d, a, b, c=None):
    return "v_mfma_f32_16x16x32_bf16 %s, %s, %s, %s" % (vr(d), vr(a), vr(b), vr(d) if c is None else (vr(c) if c != 'z' else "0"))

WS, WSP, BSP, OUT = "s[4:7]", "s[8:11]", "s[12:15]", "s[16:19]"
sW, sLB, sLAY = 20, 21, 22
LDS_CNT = 163832
NSTAMP = 20
def stamp(k, on, n):
    if not on: return
    if isinstance(n, str):
        grp = [x for x in on if x.startswith("L") == n.startswith("L")]
        if n not in grp: return
        n = grp.index(n); assert n < NSTAMP
    k("s_memrealtime s[%d:%d]" % (62 + 2*n, 63 + 2*n))
def stamp_flush(k, on, slot_sgpr, uid, vt=2, wait=True):
    if not on: return
    k("s_waitcnt lgkmcnt(0)")
    k("s_lshl_b32 s58, s%d, 18\ns_lshl_b32 s59, s2, 9\ns_add_u32 s58, s58, s59\ns_lshl_b32 s59, s%d, 7\ns_add_u32 s58, s58, s59\ns_add_u32 s58, s58, 0x%x" % (slot_sgpr, sW, WS_STAMP))
    for i in range(NSTAMP): k("v_mov_b32 v%d, s%d" % (vt+i, 62+2*i))
    k("v_mov_b32 v%d, 0\ns_mov_b64 exec, 1" % (vt+NSTAMP))
    for i in range(NSTAMP//4): k("buffer_store_dwordx4 %s, v%d, %s, s58 offen offset:%d" % (vr(vt+4*i), vt+NSTAMP, WS, 16*i))
    k("s_mov_b64 exec, -1\ns_nop 1")
    if wait: k("s_waitcnt vmcnt(0)")
```

```python
import numpy as np
S, D, FH = 2048, 576, 2304
MB = 1 << 20
import os
B0 = int(os.environ.get('WSB', '0'))*MB
LAYER_STRIDE = int(os.environ.get('LSTR', '28'))*MB
WS_XA  = B0+0*MB
WS_XB  = B0+3*MB
WS_O   = B0+6*MB
WS_Z2  = B0+9*MB
WS_H   = B0+18*MB
WS_STA = B0+27*MB
WS_STB = B0+27*MB + 2*65536
WS_ZS  = B0+27*MB + 4*65536
WS_W0  = B0+28*MB+LAYER_STRIDE
WS_WQ  = WS_W0 + 0*MB
WS_WO  = WS_W0 + 2*MB
WS_WI  = WS_W0 + 3*MB
WS_WU  = WS_W0 + 9*MB
WS_CSQ = WS_W0 + 12*MB
WS_CSI = WS_W0 + 12*MB + 65536
WS_FLAG = WS_W0 + 13*MB
WS_STAMP = 100*MB
WS_BYTES = 268435456

cqi = lambda nc: np.meshgrid(np.arange(nc), np.arange(4), np.arange(8), indexing="ij")
def dmap():
    c, q, i = cqi(18)
    d = np.where(c < 16, 72*(c >> 1) + 32*(c & 1) + 8*q + i, 72*(4*(c-16) + q) + 64 + i)
    assert sorted(d.ravel()) == list(range(576)); return d
def omap():
    c, q, i = cqi(18)
    hp = 8*(c-16) + 2*q + (i >> 2)
    e = np.where(c < 16, 36*c + 20*(i >> 2) + 4*q + (i & 3), 36*hp + 16 + (i & 3))
    assert sorted(e.ravel()) == list(range(576)); return e
def hmap():
    c, q, i = cqi(72)
    fb = np.where(c < 64, c & 15, 2*(c-64) + (i >> 2))
    tile = np.where(c < 64, 2*(c >> 4) + (i >> 2), 8)
    f = 144*fb + 16*tile + 4*q + (i & 3)
    assert sorted(f.ravel()) == list(range(2304)); return f
def prow():
    p = np.arange(2048); a = (p >> 4) & 1; r = p & 15
    return (p & ~31) + 8*(r >> 2) + 4*a + (r & 3)
def pack_rows(a, kmap, porder=False):
    if porder: a = a[prow()]
    a = a.reshape(128, 16, -1)
    o = a[:, :, kmap]
    return np.ascontiguousarray(o.transpose(0, 2, 3, 1, 4))
def unsplit(p, kind):
    nc, c0 = (18, 16) if kind == 'o' else (72, 64)
    p = p.reshape(128, nc, 512).copy()
    t = p[:, c0:]
    if kind == 'o': t = t.reshape(128, 2, 4, 2, 16, 4).transpose(0, 1, 2, 4, 3, 5)
    else:
        t = t.reshape(64, 2, 8, 64, 2, 4).copy()
        t[:, :, 1::2] = t[:, :, 1::2, :, ::-1]
        t = t.transpose(0, 4, 2, 3, 1, 5)
    p[:, c0:] = t.reshape(128, nc-c0, 512)
    return p
def unpack_rows(p, kmap, porder=False):
    nc = kmap.shape[0]; K = nc*32
    p = p.reshape(128, nc, 4, 16, 8).transpose(0, 3, 1, 2, 4)
    a = np.empty((128, 16, K), p.dtype)
    a[:, :, kmap] = p
    a = a.reshape(2048, K)
    if porder:
        b = np.empty_like(a); b[prow()] = a; a = b
    return a
def pack_stats(x, porder=False):
    if porder: x = x[prow()]
    b = x.reshape(128, 16, 4, 2, 72).astype(np.float32)
    st = np.stack([b.sum(-1), (b*b).sum(-1)], -1)
    return np.ascontiguousarray(st.transpose(0, 2, 1, 3, 4))
def unpack_stats(p, porder=False):
    p = p.reshape(128, 8, 16, 2).sum(1).reshape(2048, 2)
    if porder:
        b = np.empty_like(p); b[prow()] = p; p = b
    return p
def pack_z2(z):
    z = z.reshape(64, 4, 8, 16, 9, 16)
    return np.ascontiguousarray(z.transpose(3, 0, 4, 1, 5, 2))
def unpack_z2(p):
    p = p.reshape(16, 64, 9, 4, 16, 8)
    return np.ascontiguousarray(p.transpose(1, 3, 5, 0, 2, 4)).reshape(2048, 2304)
def qkv_cols():
    m = -np.ones((16, 7, 16), int)
    for hp in range(16):
        for part in range(3):
            base = part*576 + 36*hp
            m[hp, 2*part, :] = base + np.arange(16)
            m[hp, 2*part + 1, :] = base + 20 + np.arange(16)
            m[hp, 6, 4*part: 4*part + 4] = base + 16 + np.arange(4)
    return m
def pack_wq(w):
    m = qkv_cols(); d = dmap()
    wz = np.concatenate([w, np.zeros((576, 1), w.dtype)], 1)
    o = wz[d[:, :, :, None, None, None], m[None, None, None]]
    return np.ascontiguousarray(o.transpose(3, 0, 4, 1, 5, 2))
def pack_csq(wf):
    o = np.zeros((4, 2048), np.float32)
    for h in range(4): o[h, :1728] = wf[144*h:144*h+144].sum(0)
    return o
def pack_wo(w, kmap):
    nc = kmap.shape[0]
    o = np.empty((8, nc//2, 9, 4, 16, 8), w.dtype)
    r = np.arange(16)
    for cb in range(8):
        for e in range(2):
            for a in range(4):
                dcol = 72*cb + 32*(a >> 1) + 8*(r >> 2) + 4*(a & 1) + (r & 3)
                o[cb, :, 4*e + a] = w[kmap[e::2][:, :, None, :], dcol[None, None, :, None]]
            dcol = 72*cb + 64 + np.arange(8)
            o[cb, :, 8, :, 8*e:8*e+8, :] = w[kmap[e::2][:, :, None, :], dcol[None, None, :, None]]
    return o
def win_cols():
    cb, ps, ft, r = np.meshgrid(np.arange(16), np.arange(2), np.arange(9), np.arange(16), indexing="ij")
    return 2304*(1-ps) + 144*cb + 16*ft + r
def pack_wi(w):
    m = win_cols(); d = dmap()
    o = w[d[None, None, :, None, :, None, :], m[:, :, None, :, None, :, None]]
    return np.ascontiguousarray(o)
def pack_csi(wf):
    m = win_cols()
    o = np.zeros((16, 1024), np.float32)
    o[:, :576] = np.stack([wf[288*h:288*h+288].sum(0).astype(np.float32)[m] for h in range(2)], 1).reshape(16, 576)
    return o
if __name__ == "__main__":
    dmap(); omap(); hmap()
    w = np.arange(576*1728).reshape(576, 1728); print(pack_wq(w).shape)
    w = np.arange(2304*576).reshape(2304, 576); p = pack_wo(w, hmap()); print(p.shape, len(np.unique(p)) == w.size)
    w = np.arange(576*4608).reshape(576, 4608); p = pack_wi(w); print(p.shape, len(np.unique(p)) == w.size)
    a = np.arange(2048*2304).reshape(2048, 2304); assert (unpack_rows(pack_rows(a, hmap(), True), hmap(), True) == a).all(); assert (unpack_z2(pack_z2(a)) == a).all()
```

```python
from ph_sync import *
L_HALO, L_EX, L_CS = 131072, 149504, 161792
def attn_coords(k, o):
    k("s_and_b32 s25, s2, 7\ns_lshr_b32 s26, s2, 3")
    m = o.get("amap", 1)
    if m == 0:
        k("s_lshl_b32 s23, s25, 1\ns_lshr_b32 s27, s26, 4\ns_add_u32 s23, s23, s27\ns_and_b32 s24, s26, 15")
    elif m == 2:
        k("s_and_b32 s23, s25, 1\ns_lshl_b32 s23, s23, 3\ns_lshr_b32 s27, s26, 2\ns_add_u32 s23, s23, s27")
        k("s_lshr_b32 s24, s25, 1\ns_lshl_b32 s24, s24, 2\ns_and_b32 s27, s26, 3\ns_add_u32 s24, s24, s27")
    elif m == 1:
        k("s_lshr_b32 s23, s25, 1\ns_lshl_b32 s23, s23, 2\ns_lshr_b32 s27, s26, 3\ns_add_u32 s23, s23, s27")
        k("s_and_b32 s24, s25, 1\ns_lshl_b32 s24, s24, 3\ns_and_b32 s27, s26, 7\ns_add_u32 s24, s24, s27")
def row_stats(raw, dst, tmp):
    k = Stream(); n = len(raw)
    for r_, d in zip(raw, dst): k("v_add_f32 v%d, v%d, v%d\nv_add_f32 v%d, v%d, v%d" % (d, r_, r_+2, d+1, r_+1, r_+3))
    vs = [d+i for d in dst for i in range(2)]; ts = [r_+i for r_ in raw for i in range(2)]
    xsum_q_multi(k, vs, ts)
    for d in dst: k("v_mul_f32 v%d, 0x%x, v%d\nv_mul_f32 v%d, 0x%x, v%d" % (d, f2u(1/576), d, d+1, f2u(1/576), d+1))
    for d in dst: k("v_fma_f32 v%d, -v%d, v%d, v%d" % (d+1, d, d, d+1))
    for d in dst: k("v_max_f32 v%d, 0, v%d" % (d+1, d+1))
    for d in dst: k("v_add_f32 v%d, 0x%x, v%d" % (d+1, f2u(1e-5), d+1))
    for d in dst: k("v_rsq_f32 v%d, v%d" % (d+1, d+1))
    k("s_nop 0")
    return [l.strip() for l in k.L]
BARS = [0, 2, 4, 6, 9, 11, 13, 16]
class P1L:
    def __init__(s, L, o): s.L = L; s.o = o; s.done = []
    def setup(s, nxt):
        L = s.L
        attn_coords(L, s.o)
        L("s_mul_i32 s29, s24, %d\ns_lshl_b32 s30, s%d, 12\ns_add_u32 s29, s29, s30\ns_add_u32 s29, s29, 0x%x" % (18*7168, sW, WS_WQ))
        L("s_lshl_b32 s31, s23, 3\ns_max_u32 s31, s31, 1\ns_sub_u32 s31, s31, 1\ns_mul_i32 s31, s31, 18432\ns_add_u32 s31, s31, 0x%x" % (WS_XA + nxt*LAYER_STRIDE))
        L("s_lshl_b32 s35, s%d, 10\ns_and_b32 s36, s35, 1024" % sW)
    def issue(s, tags):
        L = s.L
        for t in sorted([t for t in tags if t not in s.done], key=lambda t: (8, 2) if t == "cs" else ((16*t[1]/7, 1) if t[0] == "g" else (4*t[1], 0))):
            s.done.append(t)
            if t == "cs":
                L("v_lshrrev_b32 v2, 8, v1\nv_bfe_u32 v3, v1, 7, 1\nv_bfe_u32 v4, v1, 4, 3\nv_cmp_gt_u32 vcc, 3, v2")
                L("v_mul_u32_u24 v3, 80, v3\nv_lshl_add_u32 v3, v4, 3, v3\nv_lshrrev_b32 v5, 1, v4\nv_and_b32 v4, 1, v4\nv_lshl_add_u32 v4, v4, 3, 64")
                L("v_cndmask_b32 v2, v5, v2, vcc\nv_cndmask_b32 v3, v4, v3, vcc\nv_mul_u32_u24 v2, 2304, v2\nv_add_u32 v0, v2, v3\nv_lshrrev_b32 v8, 1, v1")
                for i in range(4):
                    L("s_mul_i32 s34, s24, 144\ns_add_u32 s34, s34, 0x%x" % (WS_CSQ + 8192*i))
                    L("buffer_load_dwordx2 %s, v0, %s, s34 offen" % (vr((2, 4, 6, 12)[i], 2), WS)); L.issue(t)
            elif t[0] == "g":
                L("s_add_u32 m0, s30, %d\ns_add_u32 s34, s29, %d" % (t[1]*16384, t[1]*16384))
                for j in range(4): L("buffer_load_dwordx4 v1, %s, s34 offen offset:%d lds" % (WS, j*1024)); L.issue(t)
            else:
                i = t[1]; sr = 35 if i < 4 else 36
                L("s_add_u32 m0, s%d, %d\ns_add_u32 s34, s31, s%d\ns_add_u32 s34, s34, %d" % (sr, L_HALO + i*4096, sr, i*4096))
                L("buffer_load_dwordx4 v1, %s, s34 offen %s lds" % (WS, s.o.get("ld", ""))); L.issue(t)
    def need(s, bi):
        cl = (BARS[bi+1] if bi + 1 < len(BARS) else 18) - 1
        return [("g", g) for g in range((7*(cl+1) + 15)//16)] + [("h", i) for i in range((cl - HD)//4 + 1 if cl < 17 else 5)] + (["cs"] if BARS[bi] >= 9 else [])
    def main(s, first=None, tr=None):
        L = s.L
        plan = s.o.get("p0st", {7: [0, 1, 2, 3, 4], 8: [5, 6, 7, 8, 9]})
        if not (first and s.o.get("p0y", 0)): L("s_barrier")
        for bi in range(len(BARS)):
            la = (s.o.get("la0", 1) if bi == 0 else s.o.get("la", 1)) if first else s.o.get("la1", [1, 2, 3, 3, 3, 3, 3, 3])[bi]
            nd = s.need(min(bi + la, len(BARS)-1))
            tb = 2 if s.o.get("p0y", 0) == 2 else 1
            if tr and bi <= tb: nd = [t for t in nd if t not in (("g", 5), "cs")]
            s.issue(nd)
            if tr and bi == tb: tr()
            if first: first(plan.get(bi, []))
            if BARS[bi] == 9:
                if "cs" in L.vm: L("s_waitcnt vmcnt(%d)" % L.vmn("cs"))
                L("v_add_f32 v2, v2, v4\nv_add_f32 v3, v3, v5\nv_add_f32 v6, v6, v12\nv_add_f32 v7, v7, v13\nv_add_f32 v2, v2, v6\nv_add_f32 v3, v3, v7")
                L("v_cmp_gt_u32 vcc, %d, v1\nv_add_u32 v8, %d, v8\ns_nop 0\nv_cndmask_b32 v2, 0, v2, vcc\nv_cndmask_b32 v3, 0, v3, vcc" % (54*16, L_CS))
                L("ds_write_b64 v8, v[2:3]")
            L("s_waitcnt vmcnt(%d) lgkmcnt(0)\ns_barrier" % L.vmn(*(s.need(bi) + (["unit"] if bi == 1 else []))))
        if first:
            L("s_mov_b32 s46, 0x%x\nv_mov_b32 v4, 0" % (WS_FLAG + F_P4*16*256))
            vpoll(L, "wo", WS, "s46", 4, 5, 18)
            first(plan.get(8, []))
        L("s_barrier")
        if first: first(plan.get(9, []))
HD = 2
def attn(C, o, diag, first_sig):
    ld = o.get("ld", ""); stf = o.get("st", ""); bars = BARS
    ACC, HX, HY, BF, AW = 16, 72, 76, 80, 160
    CSA, CSV, MV, RV, MR = 208, 232, 4, 208, 240
    vW0, vW1, vH, vX0, vX1, vY0, vY1 = 1, 247, 248, 249, 250, 251, 252
    attn_coords(C, o)
    C("s_lshl_b32 s30, s23, 3\ns_lshl_b32 s31, s%d, 1\ns_add_u32 s31, s30, s31" % sW)
    C("s_mul_i32 s29, s31, 18432\ns_add_u32 s29, s29, s%d\ns_add_u32 s35, s29, 0x%x\ns_add_u32 s29, s29, 0x%x" % (sLB, WS_O, WS_XA))
    C("s_max_u32 s30, s30, 1\ns_sub_u32 s30, s30, 1\ns_lshl_b32 s30, s30, 10\ns_add_u32 s30, s30, s%d\ns_add_u32 s30, s30, 0x%x" % (sLB, WS_STA))
    C("s_lshl_b32 s32, s31, 10\ns_add_u32 s32, s32, s%d\ns_add_u32 s32, s32, 0x%x" % (sLB, WS_STA))
    C(vR(2)); C(vQ(3))
    C("s_lshl_b32 s33, s%d, 2\ns_lshr_b32 s33, 0x3362, s33\ns_and_b32 s33, s33, 15\ns_min_u32 s34, s%d, 1\ns_add_u32 s34, s34, 4" % (sW, sW))
    C("s_lshl_b32 s36, s33, 10\ns_lshl_b32 s37, s34, 10")
    C("v_add_u32 v%d, 64512, v1\nv_add_u32 v%d, %d, v1" % (vW1, vH, L_HALO))
    C("v_add_u32 v%d, s36, v1\nv_add_u32 v%d, s36, v%d\nv_add_u32 v%d, s37, v1\nv_add_u32 v%d, s37, v%d" % (vX0, vX1, vW1, vY0, vY1, vW1))
    C("v_add_u32 v253, 18432, v1\nv_lshrrev_b32 v0, 1, v1")
    for i in range(5): C("s_add_u32 s%d, s29, %d" % (38+i, 4096*i))
    C("s_max_u32 s44, s23, 1\ns_sub_u32 s44, s44, 1")
    flag_addr(C, POL, F_P5, 23, back=1); flag_addr(C, POL2, F_P5, 44, back=1); flag_addr(C, 44, F_P1, 24, back="prep")
    def sig():
        C("s_cmp_eq_u32 s%d, 0\ns_cbranch_scc1 L_d1_first" % sLAY)
        ssignal(C, SIG)
        t = Stream(); t.lab("L_d1_first"); first_sig(t); t("s_branch L_ns_d1")
        C.tail0 = t.L
    edge(C, "d1", [POL, POL2, (44, 0, 108)], o, diag, mid=lambda: C("s_barrier"), sig=sig)
    C("s_barrier")
    stamp(C, diag, "p1Y")
    win = o.get("a_win", 6); assert win <= 6
    def aload(c):
        return [("buffer_load_dwordx4 %s, v%d, %s, s%d offen offset:%d %s" % (vr(AW + (c % 6)*8 + 4*a), 253 if a else 1, WS, 38 + c//4, (c % 4)*1024, ld), ("a", c)) for a in range(2)]
    def hreads(c, b):
        hi = c >= 9; off = (c - 9*hi)*7168
        return ["ds_read_b128 %s, v%d offset:%d" % (vr(b), vH, c*1024), "ds_read_b128 %s, v%d offset:%d" % (vr(b+4), vX1 if hi else vX0, off),
                "ds_read_b128 %s, v%d offset:%d" % (vr(b+8), vY1 if hi else vY0, off)]
    def reads(c):
        b = BF + (c % 2)*40; hi = c >= 9; off = (c - 9*hi)*7168
        return ["ds_read_b128 %s, v%d offset:%d" % (vr(b+4*t), vW1 if hi else vW0, off + 1024*t) for t in range(7)] + (hreads(c - HD, b+28) if c >= HD else [])
    nxt_a = o.get("a_pre", 4)
    for c in range(nxt_a):
        for s, t in aload(c): C(s); C.issue(t)
    C("s_barrier")
    stamp(C, diag, "p1B0")
    for s in reads(0): C(s)
    stl = ["buffer_load_dwordx2 %s, v0, %s, s%d offen offset:%d %s" % (vr(4+4*tl+2*e, 2), WS, 32 if tl else 30, 1024*(tl//2) + 512*e, ld) for tl in range(3) for e in range(2)]
    f0 = o.get("f0", 3)
    if f0 == 2:
        for s in stl: C(s); C.issue("st")
    flag_addr(C, SIG, F_P1, 23)
    acc = lambda a, t: ACC + (a*7 + t)*4
    F = Filler()
    F.add(row_stats([4, 8, 12], [MR, MR+2, MR+4], None))
    F.add("v_lshlrev_b32 v255, 4, v3\nv_add_u32 v236, %d, v255\ns_lshl_b32 s36, s33, 6\nv_add_u32 v237, s36, v236" % L_CS)
    F.add("v_lshlrev_b32 v254, 2, v2\nv_add_u32 v238, %d, v254\ns_lshl_b32 s37, s34, 6\nv_add_u32 v239, s37, v238" % L_CS)
    F.add("s_mul_i32 s36, s%d, 3072\ns_add_u32 s36, s36, %d\nv_add_u32 v254, s36, v254\nv_add_u32 v255, s36, v255" % (sW, L_EX + 4096))
    csq = {0: 0, 1: 1, 2: 2, 3: 3, 6: 4}
    pre = {7: ["ds_write2_b32 v254, v%d, v%d offset0:%d offset1:%d" % (MR+2*tl, MR+2*tl+1, 32*tl, 32*tl+16) for tl in range(3)],
           8: ["ds_read_b128 %s, v236 offset:%d" % (vr(CSA + 4*i), t*64) for t, i in csq.items()] + ["ds_read_b128 %s, v237" % vr(CSA + 20)],
           9: ["ds_read2_b32 %s, v238 offset0:64 offset1:80" % vr(CSV, 2), "ds_read_b32 v%d, v239" % (CSV+2)] + ["ds_read_b128 %s, v255 offset:%d" % (vr(MV + 4*tl), 128*tl) for tl in range(3)],
           16: ["ds_read_b128 %s, v255 offset:%d" % (vr(RV + 4*tl), 128*tl + 64) for tl in range(3)]}
    tiles = [(acc(a, t), t, a+1) for t in range(7) for a in range(2)] + [(HX, 'X', 0), (HY, 'Y', 0)]
    def mfix(p, j):
        a_, t, tl = tiles[p]
        if t in (4, 5, 'Y'): return "v_fma_f32 v%d, -v%d, v%d, v%d" % (a_+j, MV+4*tl+j, CSV + (2 if t == 'Y' else t-4), a_+j)
        return "v_fma_f32 v%d, -v%d, v%d, v%d" % (a_+j, MR+2*tl, CSA + 4*(5 if t == 'X' else csq[t]) + j, a_+j)
    C0 = 11
    KOP, VOP, ID, QOP, HT, T = 160, 178, 234, 104, 80, 220
    G = Filler()
    G.add("v_and_b32 v4, 1, v2\nv_lshl_add_u32 v5, v3, 2, v4\nv_add_u32 v6, 2, v5")
    G.add("v_cmp_eq_u32 s[40:41], 1, v4\nv_cmp_le_u32 s[42:43], v5, v2\nv_cmp_le_u32 s[44:45], v6, v2")
    G.add("v_mov_b32 v4, 0x0c0c0100\nv_mov_b32 v5, 0x01000c0c\nv_mov_b32 v6, 0x0c0c0302\nv_mov_b32 v7, 0x03020c0c\nv_mov_b32 v8, 0x0c0c0c0c")
    G.add("v_cndmask_b32 v4, v4, v5, s[40:41]\nv_cndmask_b32 v6, v6, v7, s[40:41]")
    G.add("v_cndmask_b32 v12, v4, v8, s[42:43]\nv_cndmask_b32 v13, v6, v8, s[44:45]\nv_cndmask_b32 v14, v8, v4, s[42:43]\nv_cndmask_b32 v15, v8, v6, s[44:45]")
    G.add("s_cmp_eq_u32 s31, 0\ns_cselect_b64 s[48:49], s[42:43], -1\ns_cselect_b64 s[38:39], s[44:45], -1")
    G.add("s_mul_i32 s36, s%d, 3072\ns_add_u32 s36, s36, %d\nv_add_u32 v9, s36, v0" % (sW, L_EX))
    G.add("s_lshl_b32 s37, s%d, 9\ns_add_u32 s37, s37, %d\nv_add_u32 v10, s37, v0" % (sW, L_EX))
    G.add("v_lshlrev_b32 v4, 2, v3\nv_sub_u32 v4, v2, v4\nv_lshlrev_b32 v5, 4, v4\nv_lshrrev_b32 v4, 1, v4\nv_mov_b32 v6, 0x3f80\nv_lshlrev_b32 v5, v5, v6")
    G.add("v_cmp_eq_u32 vcc, 0, v4\nv_cmp_eq_u32 s[46:47], 1, v4\ns_lshl_b32 s36, s24, 10\nv_add_u32 v4, s36, v1")
    G.add("v_cndmask_b32 v%d, 0, v5, vcc\nv_cndmask_b32 v%d, 0, v5, s[46:47]" % (ID, ID+1))
    G.add("v_add_u32 v5, 18432, v4\ns_lshl_b32 s36, s24, 7\ns_add_u32 s36, s36, 16384")
    G.add("v_cmp_eq_u32 vcc, 2, v3\nv_lshl_add_u32 v6, v2, 3, s36\nv_bfrev_b32 v7, 1\nv_cndmask_b32 v6, v7, v6, vcc\nv_add_u32 v7, 18432, v6")
    G.add("v_mov_b32 v8, 0x%x\ns_mov_b32 s33, 0x%x" % (f2u(-1e30), f2u(18**-0.5 * 1.4426950408889634)))
    for i in range(4): G.add("v_mov_b32 v%d, 0x3f803f80" % (236+i))
    Z = Filler()
    for a in range(2):
        for i in range(2, 6): Z.add("v_mov_b32 v%d, 0" % (QOP + 8*a + i))
    for c in range(18):
        b = BF + (c % 2)*40; x = lambda a: AW + (c % 6)*8 + 4*a
        z = 'z' if c == 0 else None
        mm = [mfma(acc(a, t), x(a), b+4*t, z) if t in (4, 5) else mfma(acc(a, t), b+4*t, x(a), z) for t in range(7) for a in range(2)]
        if c >= HD: z = 'z' if c == HD else None; mm += [mfma(HX, b+32, b+28, z), mfma(HY, b+28, b+36, z)]
        n = C.vmn(("a", c)) if c != f0 else C.vmn(("a", c), "st")
        ex = [(-1, "s_waitcnt vmcnt(%d) lgkmcnt(%d)" % (n, len(reads(c)) - 4 + len(pre.get(c-1, []))))]
        if c + 1 in bars: ex.append((-1, "s_barrier"))
        rd = reads(c+1) if c < 17 else sum([hreads(18 - HD + i, HT + 12*i) for i in range(HD)], [])
        for i, s in enumerate(rd): ex.append((i, s))
        ex.append((7, "s_waitcnt lgkmcnt(%d)" % min(8, len(rd))))
        if f0 == 3 and c == 0:
            for i, s in enumerate(stl): ex.append((4 + i, s)); C.issue("st")
        pos = 10
        while nxt_a < 18 and nxt_a - win < c and pos < len(mm) - 1:
            for s, t in aload(nxt_a): ex.append((pos, s)); C.issue(t); pos += 1
            nxt_a += 1
        if f0 <= c <= 7: ex += F.take([1, 2, 3, 4, 5, 6, 8, 9, 12, 13, 14, 14, 15] if f0 == 2 else [1, 2, 3, 4, 5, 6, 8, 9, 10, 11, 12, 12, 13, 13, 14, 15])
        if c == 7: assert not F.q and max(p for p, _ in ex[-8:]) <= 12
        for i, s in enumerate(pre.get(c, [])): ex.append((16 - len(pre[c]) + i, s))
        if C0 <= c < C0 + 4: ex += [(p, mfix((p + 8) % 16, c - C0)) for p in range(16)]
        if c >= C0 + 4: ex += G.take([1, 2, 3, 4, 5, 6, 8, 9, 10, 10, 11, 11, 12, 12, 13, 13, 14, 14, 15, 15])
        if c == 17: ex += Z.take([6, 7, 8, 9, 12, 13, 14, 15])
        for s in interleave(mm, ex): C(s)
        stamp(C, diag, "k%d" % c)
    assert not F.q and not G.q and not Z.q and nxt_a == 18
    C("s_waitcnt lgkmcnt(0)")
    for i in range(HD): C(mfma(HX, HT+12*i+4, HT+12*i)); C(mfma(HY, HT+12*i, HT+12*i+8))
    stamp(C, diag, "p1gemm")
    C.lab("L_a_e0")
    def conv(items):
        for a_, kd, tl, d in items:
            for p in range(2):
                if kd == 'q': C("v_pk_mul_f32 %s, %s, %s op_sel:[0,1] op_sel_hi:[1,1]" % (vr(a_+2*p, 2), vr(a_+2*p, 2), vr(MR+2*tl, 2)))
                else: C("v_pk_mul_f32 %s, %s, %s" % (vr(a_+2*p, 2), vr(a_+2*p, 2), vr(RV+4*tl+2*p, 2)))
        for a_, kd, tl, d in items:
            for p in range(2): C("v_cvt_pk_bf16_f32 v%d, v%d, v%d" % (d+p, a_+2*p, a_+2*p+1))
    krec = lambda tl: KOP + 6*tl
    def kv_items(a):
        tl = a + 1
        return [(acc(a, 2), 'q', tl, krec(tl)), (acc(a, 3), 'q', tl, krec(tl)+4), (acc(a, 4), 'v', tl, VOP + 2*tl), (acc(a, 5), 'v', tl, VOP + 6 + 2*tl), (acc(a, 6), 'q', tl, krec(tl)+2)]
    conv(kv_items(1) + [(HX, 'q', 0, T), (HY, 'v', 0, T+2)])
    C("s_cmp_eq_u32 s%d, 3\ns_cbranch_scc1 L_a_nw" % sW)
    C("ds_write2st64_b64 v9, %s, %s offset0:6 offset1:7" % (vr(krec(2), 2), vr(krec(2)+2, 2)))
    C("ds_write2st64_b64 v9, %s, %s offset0:8 offset1:9" % (vr(krec(2)+4, 2), vr(VOP+4, 2)))
    C("ds_write_b64 v9, %s offset:%d" % (vr(VOP+10, 2), 3072 + 2048))
    C("ds_write2st64_b64 v10, %s, %s offset0:0 offset1:3" % (vr(T, 2), vr(T+2, 2)))
    C.lab("L_a_nw")
    conv(kv_items(0))
    m16 = lambda d, a_, b_: "v_mfma_f32_16x16x16_bf16 %s, %s, %s, 0" % (vr(d), vr(a_, 2), vr(b_, 2))
    TV = 120
    C("s_waitcnt lgkmcnt(0)\ns_barrier")
    C.lab("L_a_e1")
    stamp(C, diag, "p1E")
    C("ds_read2st64_b64 %s, v9 offset0:0 offset1:1" % vr(krec(0)))
    for i, d in ((2, krec(0)+4), (3, VOP), (4, VOP+6)): C("ds_read_b64 %s, v9 offset:%d" % (vr(d, 2), 512*i))
    for tl in (2, 1): C(m16(TV + 4*tl, krec(tl)+2, ID))
    conv([(acc(a, h), 'q', a+1, QOP + 8*a + 6*h) for a in (1, 0) for h in range(2)])
    for a in (1, 0):
        for h in range(2): C("v_permlane16_swap_b32 v%d, v%d" % (QOP + 8*a + 2 + 3*h, krec(a+1) + 2 + h))
    C("s_waitcnt lgkmcnt(0)")
    C(m16(TV, krec(0)+2, ID))
    cmb = [(1, 0), (1, 1), (0, 0), (0, 1)]
    S = lambda i, cur: ACC + (i*2 + cur)*4
    for i, (a, h) in enumerate(cmb):
        C(mfma(S(i, 1), krec(a+1) + 2*h, QOP + 8*a + 4*h, 'z')); C(mfma(S(i, 0), krec(a) + 2*h, QOP + 8*a + 4*h, 'z'))
    for tl in (2, 1, 0):
        for p in range(2): C("v_cvt_pk_bf16_f32 v%d, v%d, v%d" % (VOP + 12 + 2*tl + p, TV+4*tl+2*p, TV+4*tl+2*p+1))
    VAL, MX, SM, P = 48, 56, 80, 64
    for i in range(4):
        for jj in range(2):
            C("v_cndmask_b32 v%d, v%d, v%d, s[40:41]" % (S(i, 1)+2*jj, S(i, 1)+2*jj, S(i, 1)+2*jj+1))
            C("v_cndmask_b32 v%d, v%d, v%d, s[40:41]" % (S(i, 0)+2*jj, S(i, 0)+2*jj, S(i, 0)+2*jj+1))
            C("v_cndmask_b32 v%d, v%d, v%d, s[%d:%d]" % (VAL+2*i+jj, S(i, 0)+2*jj, S(i, 1)+2*jj, 42+2*jj, 43+2*jj))
            if cmb[i][0] == 0: C("v_cndmask_b32 v%d, v8, v%d, s[%d:%d]" % (VAL+2*i+jj, VAL+2*i+jj, (48, 38)[jj], (49, 39)[jj]))
        C("v_max_f32 v%d, v%d, v%d" % (MX+i, VAL+2*i, VAL+2*i+1))
        if i == 2: C("v_permlane32_swap_b32 v%d, v%d\nv_max_f32 v%d, v%d, v%d" % (MX, MX+1, MX, MX, MX+1))
    C("s_nop 1\nv_permlane32_swap_b32 v%d, v%d\nv_max_f32 v%d, v%d, v%d\ns_nop 1" % (MX+2, MX+3, MX+2, MX+2, MX+3))
    C("v_permlane16_swap_b32 v%d, v%d\nv_max_f32 v%d, v%d, v%d" % (MX, MX+2, MX+1, MX, MX+2))
    C("v_mul_f32 v%d, s33, v%d\nv_mul_f32 v%d, s33, v%d\ns_nop 1\nv_permlane16_swap_b32 v%d, v%d" % (MX, MX+1, MX+2, MX+1, MX, MX+2))
    C("v_mov_b32 v%d, v%d\nv_mov_b32 v%d, v%d\ns_nop 0\nv_permlane32_swap_b32 v%d, v%d\nv_permlane32_swap_b32 v%d, v%d" % (MX+1, MX, MX+3, MX+2, MX, MX+1, MX+2, MX+3))
    for i in range(4):
        for jj in range(2): C("v_fma_f32 v%d, v%d, s33, -v%d" % (VAL+2*i+jj, VAL+2*i+jj, MX+i))
    for i in range(8): C("v_exp_f32 v%d, v%d" % (VAL+i, VAL+i))
    for i in range(4): C("v_cvt_pk_bf16_f32 v%d, v%d, v%d" % (MX+i, VAL+2*i, VAL+2*i+1))
    for i in range(4):
        for e in range(4): C("v_perm_b32 v%d, v%d, v%d, v%d" % (P+4*i+e, MX+i, MX+i, 12+e))
    for i in range(4): C(mfma(SM+4*i, 236, P+4*i, 'z'))
    for i, (a, h) in enumerate(cmb):
        C(mfma(S(i, 0), VOP + 6*h + 2*a, P+4*i, 'z')); C(mfma(S(i, 1), VOP + 12 + 2*a, P+4*i, 'z'))
    for i in range(4): C("v_rcp_f32 v%d, v%d" % (SM+4*i, SM+4*i))
    for ii, a in enumerate((1, 0)):
        d = T + 8*ii
        for h in range(2):
            i = 2*ii + h
            for r_ in (S(i, 0), S(i, 0)+2, S(i, 1)+2*h): C("v_pk_mul_f32 %s, %s, %s op_sel_hi:[1,0]" % (vr(r_, 2), vr(r_, 2), vr(SM+4*i, 2)))
        for h in range(2):
            i = 2*ii + h
            for dd, r_ in ((d+2*h, S(i, 0)), (d+2*h+1, S(i, 0)+2), (d+4+h, S(i, 1)+2*h)): C("v_cvt_pk_bf16_f32 v%d, v%d, v%d" % (dd, r_, r_+1))
        C("buffer_store_dwordx4 %s, v%d, %s, s35 offen %s" % (vr(d), 4+a, WS, stf))
        C("buffer_store_dwordx2 %s, v%d, %s, s35 offen %s" % (vr(d+4, 2), 6+a, WS, stf))
    stamp(C, diag, "p1end")
```

```python
from ph_sync import *
from ph_attn import row_stats
import math
L_CS3, L_SC3 = 159744, TOP
def gmlp_coords(k, o):
    k("s_and_b32 s25, s2, 7\ns_lshr_b32 s26, s2, 3")
    a, b = (23, 24) if o.get("gmap", 0) == 0 else (24, 23)
    k("s_and_b32 s%d, s25, 1\ns_lshl_b32 s%d, s%d, 3\ns_and_b32 s27, s26, 7\ns_add_u32 s%d, s%d, s27" % (a, a, a, a, a))
    k("s_lshr_b32 s%d, s25, 1\ns_lshl_b32 s%d, s%d, 2\ns_lshr_b32 s27, s26, 3\ns_add_u32 s%d, s%d, s27" % (b, b, b, b, b))
    k("s_add_u32 s28, s23, s24\ns_and_b32 s28, s28, 3")
class P3L:
    def __init__(s, L, o): s.L = L; s.o = o
    def col(s, sg, sn, base, add, fl):
        L = s.L; sl = sg % 4
        L("s_mul_i32 s50, s%d, 18432\ns_add_u32 s50, s50, s%d" % (sn, base))
        if add: L("s_add_u32 s50, s50, %d" % add)
        if sg % 2 == 1:
            L("s_cmp_ge_u32 s%d, 2\ns_cselect_b32 s52, s50, s53\ns_add_u32 m0, s31, %d\ns_add_u32 s52, s52, s49" % (sW, (sl-1)*SLOT))
            L("buffer_load_dwordx4 v1, %s, s52 offen %s lds" % (WS, fl)); L.issue(("f", sg))
        L("s_add_u32 m0, s30, %d\ns_mov_b32 s53, s50" % (sl*SLOT))
        for j in range(4): L("buffer_load_dwordx4 v1, %s, s50 offen offset:%d %s lds" % (WS, 1024*j, fl)); L.issue(("c", sg))
    def col3(s, sg):
        s.L("s_mov_b32 s48, %d" % s.ks(sg)); s.col(sg, 48, 34, (sg // 9)*9*18432, "")
    def op3(s, t):
        L = s.L
        if t == "R": return s.rec_load()
        if t == "S": return s.rec_stats()
        sg = int(t[1:]); off = lambda g: (9*(g // 9) + s.ks(g))*18432
        if t[0] == "r": return s.row3(sg)
        if t[0] == "f":
            L("s_cmp_ge_u32 s%d, 2\ns_mov_b32 s52, %d\ns_cselect_b32 s52, %d, s52\ns_add_u32 s52, s52, s34\ns_add_u32 m0, s31, %d\ns_add_u32 s52, s52, s49" % (sW, off(sg-1), off(sg), (sg % 4 - 1)*SLOT))
            L("buffer_load_dwordx4 v1, %s, s52 offen lds" % WS); L.issue(("f", sg))
        else:
            L("s_add_u32 m0, s30, %d\ns_add_u32 s50, s34, %d" % ((sg % 4)*SLOT, off(sg)))
            for j in range(4): L("buffer_load_dwordx4 v1, %s, s50 offen offset:%d lds" % (WS, 1024*j)); L.issue(("c", sg))
    def ks(s, sg):
        return sg if sg < 9 else ((sg - 4) % 9 if s.o.get("xkeep", 1) else sg - 9)
    def xsave(s, m):
        if s.o.get("xkeep", 1) == 2 and m < 5:
            for j in range(4): s.L("ds_read_b128 %s, v%d offset:%d" % (vr(100 + 16*m + 4*j), 6 + (m % 4)//2, (m % 2)*SLOT + 1024*j))
    def row3(s, sg):
        L = s.L
        xk = s.o.get("xkeep", 1)
        if xk and 9 <= sg < 13: return
        if xk == 2 and sg >= 13:
            for j in range(4): L("ds_write_b128 v%d, %s offset:%d" % (6 + (sg % 4)//2, vr(100 + 16*(sg-13) + 4*j), (sg % 2)*SLOT + 1024*j))
            return
        L("s_add_u32 m0, s30, %d\ns_add_u32 s51, s35, %d" % (ROWH + (sg % 4)*SLOT, 2048*s.ks(sg)))
        for j in range(4): L("buffer_load_dwordx4 v%d, %s, s51 offen offset:%d %s lds" % (1 + j//2, WS, 1024*j, s.o.get("ld", ""))); L.issue(("r", sg))
    def idx4(s, sg):
        sn = 44 + (sg - 18) % 4
        if not s.o.get("own", 3): return sn
        if sg < 20: s.L("s_lshl_b32 s48, s23, 1\ns_add_u32 s48, s48, %d" % (sg - 18))
        else: s.L("s_lshr_b32 s48, s%d, 1\ns_cmp_eq_u32 s48, s23\ns_cselect_b32 s48, 1, 31\ns_and_b32 s48, s48, s%d" % (sn, sn))
        return 48
    def col4(s, sg): s.col(sg, s.idx4(sg), 36, 0, s.o.get("ld", ""))
    def row4(s, sg):
        L = s.L
        if sg in s.o.get("rowskip", ()):
            for j in range(4): L("buffer_load_dword v35, v34, %s, 0 offen" % BSP); L.issue(("r", sg))
            if s.o.get("rowsw"):
                for j in range(4): L("ds_write_b128 v6, %s offset:%d" % (vr(40+4*j), 1024*j))
            return
        L("s_add_u32 m0, s30, %d\ns_lshl_b32 s51, s%d, 7" % (ROWH + (sg % 4)*SLOT, s.idx4(sg)))
        for j in range(4): L("buffer_load_dwordx4 v%d, %s, s51 offen offset:%d %s lds" % (8+j, WSP, 1024*j, s.o.get("ldsp", ""))); L.issue(("r", sg))
    def adv4(s, sg):
        sn = 44 + (sg - 18) % 4
        if s.o.get("own", 3) and sn < 46:
            return s.L("s_add_u32 s%d, s%d, 4\ns_cmp_ge_u32 s%d, 32\ns_cselect_b32 s%d, %d, s%d" % (sn, sn, sn, sn, sn - 40, sn))
        s.L("s_add_u32 s%d, s%d, 4\ns_and_b32 s%d, s%d, %d" % (sn, sn, sn, sn, s.o.get("p4mask", 31)))
    def rec_load(s):
        for i in range(4): s.L("buffer_load_dwordx4 %s, v3, %s, s29 offen offset:%d sc1" % (vr(16+4*i), WS, 1024*i)); s.L.issue("rec")
    def rec_stats(s):
        L = s.L
        if s.o.get("lprio", 1): L("s_setprio 2")
        L("s_mov_b32 s60, %d\ns_waitcnt vmcnt(%d)" % (SPIN, L.vmn("rec") if "rec" in L.vm else 63))
        L.lab("L_g_chk")
        L("v_or3_b32 v32, v17, v19, v21\nv_or3_b32 v33, v23, v25, v27\nv_or3_b32 v32, v29, v31, v32\nv_or_b32 v32, v32, v33\nv_cmp_gt_i32 vcc, 0, v32")
        L("s_sub_u32 s60, s60, 1\ns_cbranch_scc1 L_g_ok\ns_cbranch_vccz L_g_ok")
        keep = list(L.vm); s.rec_load(); L.vm = keep
        L("s_waitcnt vmcnt(0)\ns_branch L_g_chk")
        L.lab("L_g_ok")
        for i in range(4): L("v_add_f32 v%d, v%d, v%d\nv_add_f32 v%d, v%d, v%d" % (16+i, 16+i, 20+i, 24+i, 24+i, 28+i))
        for i in range(4): L("v_add_f32 v%d, v%d, v%d" % (16+i, 16+i, 24+i))
        for ctl in ("row_ror:4", "row_ror:8"):
            for i in range(4): L("v_add_f32_dpp v%d, v%d, v%d %s row_mask:0xf bank_mask:0xf" % (16+i, 16+i, 16+i, ctl))
        for i in range(4): L("v_mul_f32 v%d, 0x%x, v%d" % (16+i, f2u(1/2304), 16+i))
        L("v_fma_f32 v17, -v16, v16, v17\nv_fma_f32 v19, -v18, v18, v19\nv_max_f32 v17, 0, v17\nv_max_f32 v19, 0, v19")
        L("v_add_f32 v17, 0x%x, v17\nv_add_f32 v19, 0x%x, v19\nv_rsq_f32 v20, v17\nv_rsq_f32 v21, v19" % (f2u(1e-5), f2u(1e-5)))
        L("v_and_b32 v32, 0xff, v3\ns_lshl_b32 s33, s%d, 8\ns_add_u32 s33, s33, %d\nv_add_u32 v32, s33, v32" % (sW, L_SC3 + 1024))
        L("v_mul_f32 v22, v16, v20\nv_mul_f32 v23, v18, v21\nds_write_b128 v32, v[20:23]")
        if s.o.get("lprio", 1): L("s_setprio 0")
    def pre(s):
        L = s.L; o = s.o
        gmlp_coords(L, o)
        L("s_lshl_b32 s30, s%d, 12" % sW)
        L("s_lshr_b32 s33, s%d, 1\ns_mul_i32 s31, s33, %d\ns_and_b32 s33, s%d, 1\ns_lshl_b32 s33, s33, 10\ns_add_u32 s33, s33, 16384\ns_add_u32 s31, s31, s33\ns_sub_u32 s49, s33, s30" % (sW, SLOT, sW))
        L("s_mul_i32 s34, s24, %d\ns_add_u32 s34, s34, s30\ns_add_u32 s34, s34, 0x%x" % (18*18432, WS_WI))
        L("s_lshl_b32 s35, s23, 3\ns_lshl_b32 s33, s%d, 1\ns_add_u32 s35, s35, s33\ns_mul_i32 s35, s35, 18432\ns_add_u32 s35, s35, s%d\ns_add_u32 s35, s35, 0x%x" % (sW, sLB, WS_XB))
        L("s_mul_i32 s36, s24, %d\ns_add_u32 s36, s36, s30\ns_add_u32 s36, s36, s%d\ns_add_u32 s36, s36, 0x%x" % (64*9216, sLB, WS_Z2))
        L("v_add_u32 v2, %d, v1\ns_add_u32 s33, s30, %d\nv_add_u32 v6, s33, v1\nv_add_u32 v7, %d, v6" % (18432 - 2048, ROWH, 2*SLOT))
        L("s_lshl_b32 s29, s23, 2\ns_add_u32 s29, s29, s%d\ns_lshl_b32 s29, s29, 12\ns_add_u32 s29, s29, s%d\ns_add_u32 s29, s29, 0x%x" % (sW, sLB, WS_ZS))
        L("v_and_b32 v3, 48, v1\nv_lshrrev_b32 v8, 8, v1\nv_lshl_add_u32 v3, v8, 6, v3\nv_bfe_u32 v8, v1, 6, 2\nv_lshl_add_u32 v3, v8, 8, v3")
        L("s_lshl_b32 s33, s23, 7\ns_lshl_b32 s37, s%d, 5\ns_add_u32 s33, s33, s37" % sW)
        L("v_lshrrev_b32 v8, 7, v1\nv_add_u32 v8, s33, v8\nv_lshlrev_b32 v8, 12, v8")
        L("v_lshrrev_b32 v9, 8, v1\nv_bfe_u32 v10, v1, 4, 3\nv_xor_b32 v9, v9, v10\nv_lshl_add_u32 v8, v9, 4, v8")
        L("v_xor_b32 v9, 64, v8\nv_add_u32 v9, %d, v9" % (8*4096 - 1024))
        L("v_add_u32 v10, %d, v8\nv_add_u32 v11, %d, v9" % (16*4096 - 2048, 16*4096 - 2048))
        for m in range(4): L("s_cmp_eq_u32 s28, %d\ns_cselect_b32 s%d, %d, %d" % (m, 44+m, m + 4*o.get("hoist4", 1), m))
        L("s_lshl_b32 s33, s%d, 4\ns_add_u32 s33, s33, s24" % sW)
        flag_addr(L, 54, F_Z2, 33)
        L("s_mov_b32 s33, 0x%x\nv_and_b32 v4, 0xf0, v1\nv_lshlrev_b32 v4, 4, v4" % (WS_FLAG + F_P2*16*256))
        vpoll(L, "wr", WS, "s33", 4, 5, 16)
        L("s_min_u32 s33, s%d, 2\ns_lshl_b32 s33, s33, 9\nv_lshrrev_b32 v4, 1, v1\nv_add_u32 v4, s33, v4\ns_lshl_b32 s51, s24, 12\ns_add_u32 s51, s51, 0x%x" % (sW, WS_CSI))
        for h in range(2): L("buffer_load_dwordx2 %s, v4, %s, s51 offen offset:%d" % (vr(16+2*h, 2), WS, 1152*h)); L.issue("cs")
        for sg in range(o.get("p3pre", 2)): s.col3(sg)
        L("s_mov_b32 m0, %d\nv_lshrrev_b32 v5, 2, v1\ns_lshl_b32 s33, s23, 8\nbuffer_load_dword v5, %s, s33 offen lds" % (L_CS3 + 1536, BSP)); L.issue("b")
        L("s_waitcnt vmcnt(%d)\nv_add_u32 v4, %d, v4\nv_add_f32 v16, v16, v18\nv_add_f32 v17, v17, v19\nds_write_b64 v4, v[16:17]\ns_waitcnt lgkmcnt(0)" % (L.vmn("cs"), L_CS3))
    def main(s, diag, p5):
        L = s.L; o = s.o
        nd = lambda m: [("c", m), ("r", m), ("f", m | 1)]
        stamp(L, diag, "Lp3pre")
        n0 = o.get("p3pre", 2); n1 = n0 + o.get("p3R", 0)
        if n1 > n0:
            L("s_barrier")
            for sg in range(n0, n1): s.col3(sg)
        L("s_barrier")
        for sg in range(n1, 4): s.col3(sg)
        L("s_barrier")
        for sg in range(o.get("p3rows", 3)): s.row3(sg)
        L("s_waitcnt vmcnt(%d)\ns_barrier" % L.vmn(*nd(0)))
        for sg in range(o.get("p3rows", 3), 4): s.row3(sg)
        s.xsave(0)
        p5.setup()
        zb = o.get("zbar", 19); rows = [18, 19, 20]
        for m in range(1, 18):
            L.waitv(nd(m), "lgkmcnt(0)"); L("s_barrier")
            if m == zb: ssignal(L, 54)
            if "p2s" in o and 10 <= m <= 16:
                for t in o["p2s"].get(m, "").split():
                    assert t in "RS" or m < int(t[1:]) - (t[0] == "f") and int(t[1:]) <= m + 3
                    s.op3(t)
                continue
            if m == o.get("lrec", 11): s.rec_load()
            lst = o.get("lrec", 11) and m == o.get("lrec", 11) + o.get("lrd", 1)
            if lst and o.get("lfirst", 0): s.rec_stats()
            if o.get("ldefer", 0) and m == o.get("lrec", 11) + o.get("lrd", 1) + 1: s.col3(m+2); s.row3(m+2)
            if o.get("ldefer", 0) and lst: pass
            elif o.get("late10", 0) and m in (7, 8): pass
            elif o.get("late10", 0) and m == 9:
                for sg in (10, 11, 12): s.col3(sg); s.row3(sg)
            elif m + 3 < 18: s.col3(m+3); s.row3(m+3); s.xsave(m)
            elif m >= zb or not o.get("row4_late", 1):
                while rows and rows[0] <= m + 3: s.row4(rows.pop(0))
            for _ in range(o.get("rowat", {}).get(m, 0)):
                assert rows[0] <= m + 3; s.row4(rows.pop(0))
            if lst and not o.get("lfirst", 0): s.rec_stats()
            p5.keep(m)
            ws_ = o.get("warm_sp", {})
            if m in ws_:
                j0 = sum(v for k_, v in ws_.items() if k_ < m)
                L("s_lshl_b32 s33, s2, 15\ns_lshl_b32 s37, s%d, 13\ns_add_u32 s33, s33, s37\ns_lshl_b32 s37, s%d, 30\ns_add_u32 s33, s33, s37\ns_add_u32 s37, s33, 4096" % (sW, sLAY))
                for j in range(j0, j0 + ws_[m]): L("buffer_load_dwordx4 %s, v1, %s, s%d offen offset:%d %s" % (vr(16+4*j), WSP, (33, 37)[j//4], (j % 4)*1024, o.get("wfl", ""))); L.issue("warm")
        if o.get("own", 3) == 4:
            assert zb == 20 and 19 not in rows
            L("s_waitcnt vmcnt(%d)" % L.vmn(("r", 18), ("r", 19)))
        if zb >= 18: L("s_barrier"); ssignal(L, 54)
        if o.get("rowskip"): L("v_bfrev_b32 v34, 1")
        stamp(L, diag, "LZ")
        nr0, nc0 = o.get("p4r0", 3), o.get("p4c0", 3)
        assert "L0" not in L.vm
        if o.get("own", 3) == 4:
            for sg in rows + [21]: s.row4(sg)
            spoll(L, "z2", [54], sleep=o.get("sleep", 2))
            stamp(L, diag, "Lz2ok")
            s.col4(20); s.col4(21)
            for sg in range(18, 22): s.adv4(sg)
            L("s_waitcnt vmcnt(%d)" % L.vmn(*nd(20)))
            stamp(L, diag, "Lz2ld")
            L("s_barrier")
            for sg in (22, 23): s.col4(sg); s.row4(sg); s.adv4(sg)
        elif o.get("own", 3) >= 2:
            ask = lambda: L("s_mov_b32 s57, 0\ns_atomic_add s57, s[54:55], 0 glc")
            got = lambda lab: L("s_waitcnt lgkmcnt(0)\ns_cmp_ge_u32 s57, 16\ns_cbranch_scc1 " + lab)
            bar = lambda m: L("s_waitcnt vmcnt(%d)\ns_barrier" % (L.vmn(*nd(m)) if any(t in L.vm for t in nd(m)) else 63))
            ask()
            for sg in (18, 19):
                if o.get("own", 3) == 2: s.col4(sg)
                if sg in rows: s.row4(sg)
            if nr0 == 3 and 20 in rows: s.row4(20); rows.remove(20)
            stamp(L, diag, "Lrow")
            def more():
                stamp(L, diag, "Lz2ok")
                s.col4(20)
                if 20 in rows: s.row4(20)
                s.col4(21); s.row4(21)
            got("L_g_r0"); vm0 = list(L.vm)
            ask(); bar(18); got("L_g_r1"); vm1 = list(L.vm)
            bar(19); spoll(L, "z2", [54], sleep=o.get("sleep", 2)); more(); L("s_branch L_g_jn"); vmj = list(L.vm)
            L.lab("L_g_r0"); L.vm = vm0; more(); bar(18); bar(19); L("s_branch L_g_jn"); assert L.vm == vmj
            L.lab("L_g_r1"); L.vm = vm1; more(); bar(19); assert L.vm == vmj
            L.lab("L_g_jn"); L.nbar -= 3
            for sg in range(18, 22): s.adv4(sg)
            s.col4(22); s.row4(22); s.adv4(22)
            L("s_waitcnt vmcnt(%d)" % L.vmn(*nd(20)))
            stamp(L, diag, "Lz2ld")
            L("s_barrier")
            s.col4(23); s.row4(23); s.adv4(23)
        elif o.get("own", 3):
            L("s_mov_b32 s57, 0\ns_atomic_add s57, s[54:55], 0 glc")
            while rows and rows[0] < 18 + nr0: s.row4(rows.pop(0))
            stamp(L, diag, "Lrow")
            def more():
                stamp(L, diag, "Lz2ok")
                s.col4(20)
                if 20 in rows: s.row4(20)
                s.col4(21); s.row4(21)
            b18 = lambda: L("s_waitcnt vmcnt(%d)\ns_barrier" % (L.vmn(("r", 18), ("r", 19)) if ("r", 19) in L.vm else 63))
            L("s_waitcnt lgkmcnt(0)\ns_cmp_ge_u32 s57, 16\ns_cbranch_scc1 L_g_rdy")
            vm0 = list(L.vm)
            b18(); spoll(L, "z2", [54], sleep=o.get("sleep", 2)); more()
            L("s_branch L_g_jn"); vm1 = list(L.vm); L.vm = vm0; L.nbar -= 1
            L.lab("L_g_rdy")
            more(); b18(); assert L.vm == vm1
            L.lab("L_g_jn")
            for sg in range(18, 22): s.adv4(sg)
            L("s_waitcnt vmcnt(%d)" % L.vmn(*nd(20)))
            stamp(L, diag, "Lz2ld")
            L("s_barrier")
            for sg in (22, 23): s.col4(sg); s.row4(sg); s.adv4(sg)
        else:
            while rows and rows[0] < 18 + nr0: s.row4(rows.pop(0))
            stamp(L, diag, "Lrow")
            spoll(L, "z2", [54], sleep=o.get("sleep", 2))
            stamp(L, diag, "Lz2ok")
            for sg in range(18, 18 + nc0): s.col4(sg)
        for m in range(21 if o.get("own", 3) else 18, 23):
            L("s_waitcnt vmcnt(%d)" % L.vmn(*nd(m)))
            if m == 18: stamp(L, diag, "Lz2ld")
            L("s_barrier")
            if m == 18:
                for sg in range(18, 21):
                    if sg >= 18 + nc0: s.col4(sg)
                    if sg in rows: s.row4(sg)
                    s.adv4(sg)
            s.col4(m+3); s.row4(m+3); s.adv4(m+3)
        L("s_mov_b32 s41, 6")
        L.lab("L_g_ll")
        for m in range(23, 27):
            n = L.vmn(*nd(m)); assert n == (16 if m % 2 == 0 else 17)
            L("s_waitcnt vmcnt(%d)\ns_barrier" % n)
            i0 = len(L.L)
            s.col4(m+3); s.row4(m+3); s.adv4(m+3)
            x = o.get("p4exp")
            if x == "none": L.L[i0:] = [l for l in L.L[i0:] if "buffer_load" not in l]
            if x == "norow": L.L[i0:] = [l for l in L.L[i0:] if WSP not in l]
            if x == "reg": L.L[i0:] = [l.replace("dwordx4 v", "dwordx4 v[100:103], v").replace(" lds", "") for l in L.L[i0:]]
        if o.get("nobar"):
            i0 = L.L.index("L_g_ll:"); L.L[i0:] = [l for l in L.L[i0:] if "s_barrier" not in l]
        L("s_sub_u32 s41, s41, 1\ns_cmp_lg_u32 s41, 0\ns_cbranch_scc1 L_g_ll")
        L.nbar += 20
        p5.at(46)
        NT = max(1, o.get("tail", 2))
        for m in range(27, 31 - NT):
            L.waitv(nd(m) if m < 30 - NT else nd(29)); L("s_barrier")
            p5.at(m + 20)
def gmlp(C, o, diag=None):
    ld = o.get("ld", ""); stf = o.get("st", "")
    A2, A1, FR, MR = 16, 88, 160, 248
    vZ1, vR0, vR1 = 2, 3, 0
    if o.get("p3R", 0): C("s_barrier")
    gmlp_coords(C, o)
    C("s_lshl_b32 s30, s%d, 12\ns_lshl_b32 s31, s23, 3\ns_lshl_b32 s33, s%d, 1\ns_add_u32 s31, s31, s33" % (sW, sW))
    C("s_lshl_b32 s32, s31, 10\ns_add_u32 s32, s32, s%d\ns_add_u32 s32, s32, 0x%x" % (sLB, WS_STB))
    C("v_add_u32 v%d, %d, v1\ns_add_u32 s33, s30, %d\nv_add_u32 v%d, s33, v1\nv_add_u32 v%d, s33, v%d" % (vZ1, 2*SLOT, ROWH, vR0, vR1, vZ1))
    C("s_lshr_b32 s34, s31, 1")
    C("s_lshl_b32 s35, s34, 12\ns_add_u32 s35, s35, s%d\ns_add_u32 s35, s35, 0x%x" % (sLB, WS_ZS))
    C("s_lshl_b32 s36, s24, 8\ns_add_u32 s36, s36, s35")
    C("s_lshl_b32 s38, s24, 6\ns_add_u32 s38, s38, s34\ns_mul_i32 s38, s38, 9216\ns_add_u32 s38, s38, s%d\ns_add_u32 s38, s38, 0x%x" % (sLB, WS_Z2))
    C("s_add_u32 s39, s38, 4096\ns_add_u32 s46, s38, 8192")
    c0 = -2*math.sqrt(2/math.pi)*math.log2(math.e)
    C("s_mov_b32 s40, 0x%x\ns_mov_b32 s42, 0x%x\ns_mov_b32 s44, 0x%x\ns_mov_b32 s45, 0x%x" % (f2u(c0), f2u(0.044715), f2u(1/2304), f2u(1e-5)))
    C("v_lshrrev_b32 v4, 1, v1")
    flag_addr(C, POL, F_P2, 23)
    edge(C, "d3", [POL], o, diag)
    C("s_barrier")
    stamp(C, diag, "p3Y")
    for i in range(4): C("buffer_load_dwordx2 %s, v4, %s, s32 offen offset:%d %s" % (vr(8+2*i, 2), WS, 512*i, ld))
    flag_addr(C, SIG, F_P4, 23)
    def reads(sg, kk):
        sl = sg % 4; b = FR + kk*44; r_ = []
        for tt in range(2):
            if sg < 18: r_.append("ds_read_b128 %s, v%d offset:%d" % (vr(b+4*tt), vR0 if sl < 2 else vR1, (sl % 2)*SLOT + (2*tt + kk)*1024))
            else: r_.append("ds_read_b128 %s, v%d offset:%d" % (vr(b+4*tt), 8 + kk + (sl & 2), (sl % 2)*SLOT + tt*2048))
        for ft in range(9):
            r_.append("ds_read_b128 %s, v%d offset:%d" % (vr(b+8+4*ft), 1 if sl < 2 else vZ1, (sl % 2)*SLOT + (kk*9+ft)*1024))
        return r_
    def mfmas(sg, kk, cinit=None):
        b = FR + kk*44; r_ = []
        z = 'z' if (sg in (0, 9) and kk == 0) else None
        for ft in range(9):
            for tt in range(2):
                i = (ft*2+tt)*4
                if sg < 9: r_.append(mfma(A2+i, b+4*tt, b+8+4*ft, z))
                elif sg < 18: r_.append(mfma(A1+i, b+8+4*ft, b+4*tt, z))
                else: r_.append(mfma(A2+i, b+8+4*ft, b+4*tt, cinit[tt] if cinit else None))
        return r_
    late = [0]
    def stage(sg, nxt=True, x0=(), x1=(), p1=(), pre=(), cinit=None, nobar=False):
        ex = [(-1, "s_waitcnt lgkmcnt(%d)" % (5 + late[0]))]; late[0] = len(p1)
        for i, r_ in enumerate(reads(sg, 1)): ex.append((i, r_))
        ex.append((7, "s_waitcnt lgkmcnt(8)"))
        for s in interleave(mfmas(sg, 0, cinit), ex + list(x0)): C(s)
        bp = o.get("barpos", -1) if (nxt and not p1 and not x1 and not pre) else -1
        ex = [(-1, "s_waitcnt lgkmcnt(5)")] if bp >= 0 else []
        ex += [(bp, "s_waitcnt lgkmcnt(0)")] + [(-1, s) for s in pre]
        if nxt:
            if not nobar: ex.append((bp, "s_barrier"))
            for i, r_ in enumerate(reads(sg+1, 0) + list(p1)): ex.append((i + bp + 1, r_))
        else: ex += [(i, s) for i, s in enumerate(p1)]; late[0] = 0
        for s in interleave(mfmas(sg, 1), ex + list(x1)): C(s)
        stamp(C, diag, "s%d" % sg)
    LITE = [9, 10, 11, 12, 13, 14, 15, 16, 17, 17]
    DENSE = {22: [1, 2, 3, 4, 5, 6, 8, 9, 10, 11, 11, 12, 12, 13, 13, 14, 14, 15, 15, 16, 16, 17],
             26: [0, 1, 2, 3, 4, 5, 6, 7, 8, 9, 10, 11, 11, 12, 12, 13, 13, 14, 14, 15, 15, 16, 16, 17, 17, 17],
             17: [1, 2, 3, 4, 5, 6, 8, 9, 10, 11, 12, 13, 14, 15, 16, 16, 17],
             14: [11, 11, 12, 12, 13, 13, 14, 14, 15, 15, 16, 16, 17, 17],
             7: [11, 12, 13, 14, 15, 16, 17], 0: []}[o.get("dense", 22)]
    C("s_barrier")
    stamp(C, diag, "p3B0")
    for s in reads(0, 0): C(s)
    M8, R8, C0, C1, SD, CS, SS = A1, A1+8, A1+16, A1+24, A1+32, A1+40, FR+44
    TP = FR + 60
    F = Filler()
    F.add([vQ(5), vR(6), "v_lshlrev_b32 v7, 2, v6", "s_lshl_b32 s33, s%d, 8" % sW, "s_add_u32 s33, s33, %d" % L_SC3, "v_add_u32 v4, s33, v7",
           "v_lshl_add_u32 v252, v5, 4, s33", "v_add_u32 v7, %d, v7" % L_CS3, "s_waitcnt vmcnt(0)"])
    F.add(row_stats([8, 12], [MR, MR+2], None))
    G = Filler()
    for i in range(8): G.add("v_rcp_f32 v%d, v%d\nv_mul_f32 v%d, s40, v%d\nv_mul_f32 v%d, v%d, v%d" % (SD+i, R8+i, C0+i, R8+i, C1+i, R8+i, R8+i))
    for i in range(8): G.add("v_mul_f32 v%d, s42, v%d" % (C1+i, C1+i))
    for i in range(8): G.add("v_mul_f32 v%d, v%d, v%d" % (C1+i, C1+i, C0+i))
    G.add("v_lshrrev_b32 v8, 2, v6\nv_lshlrev_b32 v8, 4, v8\nv_lshl_add_u32 v8, v5, 6, v8\nv_and_b32 v9, 3, v6\nv_cmp_eq_u32 vcc, 0, v9\nv_bfrev_b32 v10, 1")
    G.add("v_lshlrev_b32 v9, 4, v9\nv_cndmask_b32 v8, v10, v8, vcc\nv_lshl_add_u32 v9, v5, 6, v9\nv_lshrrev_b32 v255, 2, v6\nv_lshl_add_u32 v255, v255, 8, v9")
    mfix = lambda j: [(p, "v_fma_f32 v%d, -v%d, v%d, v%d" % (A2 + 4*t + j, M8 + 4*(t % 2) + j, CS + t//2, A2 + 4*t + j)) for p in range(18) for t in [(p + 9) % 18]]
    for sg in range(9):
        x0 = x1 = p1 = ()
        if sg == 0: x1 = F.take(LITE)
        elif sg <= 2: x0 = F.take(LITE); x1 = F.take(LITE)
        if sg == 1: p1 = ["ds_read2_b32 %s, v7 offset0:%d offset1:%d" % (vr(CS+2*i, 2), 32*i, 32*i+16) for i in range(5)]
        if sg == 3:
            assert not F.q
            p1 = ["ds_write2_b32 v4, v%d, v%d offset0:%d offset1:%d" % (MR+2*a, MR+2*a+1, 16*a, 32+16*a) for a in range(2)]
            p1 += ["ds_read_b128 %s, v252 offset:%d" % (vr(M8+4*i), 64*i) for i in range(4)]
        if 4 <= sg <= 6: x0 = G.take(LITE); x1 = G.take(LITE)
        if sg == 6: x1 = x1 + mfix(0)
        if sg == 7: x0 = mfix(1); x1 = mfix(2)
        if sg == 8: x0 = mfix(3)
        stage(sg, x0=x0, x1=x1, p1=p1)
    assert not F.q and not G.q
    stamp(C, diag, "pass1")
    p2 = lambda a: vr(a, 2)
    for ft in range(9):
        x = [A2 + ft*8 + 2*i for i in range(4)]; t = [TP + (ft % 2)*8 + 2*i for i in range(4)]
        for i in range(4): C("v_pk_mul_f32 %s, %s, %s" % (p2(t[i]), p2(x[i]), p2(x[i])))
        for i in range(4): C("v_pk_fma_f32 %s, %s, %s, %s" % (p2(t[i]), p2(t[i]), p2(C1+2*i), p2(C0+2*i)))
        for i in range(4): C("v_pk_mul_f32 %s, %s, %s" % (p2(t[i]), p2(t[i]), p2(x[i])))
        for i in range(8): C("v_exp_f32 v%d, v%d" % (t[0]+i, t[0]+i))
        for i in range(4): C("v_pk_fma_f32 %s, %s, %s, %s" % (p2(t[i]), p2(t[i]), p2(SD+2*i), p2(SD+2*i)))
        for i in range(8): C("v_rcp_f32 v%d, v%d" % (t[0]+i, t[0]+i))
        for i in range(4): C("v_pk_mul_f32 %s, %s, %s" % (p2(x[i]), p2(x[i]), p2(t[i])))
        for i in range(4):
            if ft == 0: C("v_pk_mul_f32 %s, %s, %s" % (p2(SS+4*i+2), p2(x[i]), p2(x[i])))
            else:
                C("v_pk_add_f32 %s, %s, %s" % (p2(SS+4*i), p2(SS+4*i) if ft > 1 else p2(A2+2*i), p2(x[i])))
                C("v_pk_fma_f32 %s, %s, %s, %s" % (p2(SS+4*i+2), p2(x[i]), p2(x[i]), p2(SS+4*i+2)))
    dpp = lambda d, s, ctl, bm: "v_add_f32_dpp v%d, v%d, v%d %s row_mask:0xf bank_mask:0x%x" % (d, s, s, ctl, bm)
    for i in range(8): C(dpp(SS+i, SS+i, "row_mirror", 0x3))
    for i in range(8): C(dpp(SS+i, SS+8+i, "row_mirror", 0xc))
    for i in range(4): C(dpp(SS+i, SS+i, "row_half_mirror", 0x5))
    for i in range(4): C(dpp(SS+i, SS+4+i, "row_half_mirror", 0xa))
    for i in range(4): C(dpp(SS+i, SS+i, "quad_perm:[1,0,3,2]", 0xf))
    for i in range(4): C(dpp((12, 14, 13, 15)[i], SS+i, "quad_perm:[2,3,0,1]", 0xf))
    C("buffer_store_dwordx4 v[12:15], v8, %s, s36 offen sc1" % WS)
    stamp(C, diag, "z2gelu")
    Q = [4, 8, 12, 252]
    slow = Stream()
    slow.lab("L_g_slow")
    slow("s_mov_b32 s60, %d" % SPIN)
    slow.lab("L_g_sl")
    slow("s_sleep 2\nv_lshrrev_b32 v4, 8, v1\nv_bfe_u32 v5, v1, 6, 2\nv_bfe_u32 v6, v1, 4, 2\nv_lshlrev_b32 v255, 6, v4\nv_lshl_add_u32 v255, v5, 8, v255\nv_lshl_add_u32 v255, v6, 4, v255")
    recl = ["buffer_load_dwordx4 %s, v255, %s, s35 offen offset:%d sc1" % (vr(Q[i]), WS, 1024*i) for i in range(4)]
    chk = ["s_waitcnt vmcnt(0)", "v_or3_b32 v%d, v5, v7, v9" % (MR+1), "v_or3_b32 v%d, v11, v13, v15" % (MR+3), "v_or3_b32 v%d, v253, v255, v%d" % (MR+1, MR+1),
           "v_or_b32 v%d, v%d, v%d" % (MR+1, MR+1, MR+3), "v_cmp_gt_i32 vcc, 0, v%d" % (MR+1)]
    H = Filler()
    H.add(chk); H.add("s_nop 0\ns_cbranch_vccnz L_g_slow\nL_g_back:")
    for s in recl + chk: slow(s)
    slow("s_sub_u32 s60, s60, 1\ns_cbranch_scc1 L_g_back\ns_cbranch_vccnz L_g_sl\ns_branch L_g_back")
    C.tail = getattr(C, "tail", []) + slow.L
    for i in range(4): H.add("v_add_f32 v%d, v%d, v%d\nv_add_f32 v%d, v%d, v%d" % (4+i, 4+i, 8+i, 252+i, 252+i, 12+i))
    for i in range(4): H.add("v_add_f32 v%d, v%d, v%d" % (252+i, 252+i, 4+i))
    for ctl in ("row_ror:4", "row_ror:8"):
        for i in range(4): H.add(dpp(252+i, 252+i, ctl, 0xf))
    for i in range(4): H.add("v_mul_f32 v%d, s44, v%d" % (252+i, 252+i))
    H.add("v_fma_f32 v253, -v252, v252, v253\nv_fma_f32 v255, -v254, v254, v255\nv_max_f32 v253, 0, v253\nv_max_f32 v255, 0, v255")
    H.add("v_add_f32 v253, s45, v253\nv_add_f32 v255, s45, v255\nv_rsq_f32 v%d, v253\nv_rsq_f32 v253, v255\ns_nop 0" % (MR+1))
    H.add("v_mul_f32 v255, v254, v253\nv_mul_f32 v254, v252, v%d\nv_mov_b32 v252, v%d\ns_nop 0" % (MR+1, MR+1))
    for kq in range(4):
        for i in (1, 3, 2, 0): H.add("v_mov_b32_dpp v%d, v%d row_newbcast:%d row_mask:0xf bank_mask:0xf" % (Q[kq]+i, 252+i, kq))
    lrec = o.get("lrec", 11)
    if lrec: H.q = []; C.tail = C.tail[:len(C.tail) - len(slow.L)]
    burst = o.get("burst", 0)
    B = Filler() if burst else H
    def swp(ft, w):
        for i in range(2): B.add("v_permlane%s_swap_b32 v%d, v%d" % (w, A2+ft*8+i, A2+ft*8+2+i))
    zst = lambda ft: "buffer_store_dwordx4 %s, v1, %s, s%d offen offset:%d sc1" % (vr(A2+ft*8), WS, (38, 39, 46)[ft//4], (ft % 4)*1024)
    for ft in range(9):
        x = A2 + ft*8
        if burst:
            for i in range(4): B.add("v_pk_fma_f32 %s, %s, %s, %s neg_lo:[0,0,1] neg_hi:[0,0,1]" % (p2(x+2*i), p2(x+2*i), p2(Q[i]), p2(Q[i]+2)))
        else:
            for i in range(8): B.add("v_fma_f32 v%d, v%d, v%d, -v%d" % (x+i, x+i, Q[i//2] + i % 2, Q[i//2] + 2 + i % 2))
        if ft: swp(ft-1, "32")
        for i in range(4): B.add("v_cvt_pk_bf16_f32 v%d, v%d, v%d" % (x+i, x+2*i, x+2*i+1))
        if ft: swp(ft-1, "16"); B.add(";ok %d" % (ft-1))
    B.add("s_nop 0"); swp(8, "32"); B.add("s_nop 0"); swp(8, "16"); B.add(";ok 8")
    h_ld, h_go, st_ks, st_n = o.get("zs_ld", 4), o.get("zs_go", 6), o.get("st_ks", 12), o.get("st_n", 3)
    if lrec:
        rb_ = lrec + o.get("lrd", 1) + 1; h_ld = -1; h_go = 2*(rb_ - 9)
        B.add("v_mul_f32 v4, s40, v%d\nv_mul_f32 v6, s40, v%d\nv_mul_f32 v5, v%d, v%d\nv_mul_f32 v7, v%d, v%d" % (MR+1, MR+3, MR+1, MR+1, MR+3, MR+3))
        B.add("v_rcp_f32 v%d, v%d\nv_rcp_f32 v%d, v%d\nv_mul_f32 v5, s42, v5\nv_mul_f32 v7, s42, v7\nv_mul_f32 v5, v5, v4\nv_mul_f32 v7, v7, v6" % (MR+1, MR+1, MR+3, MR+3))
        B.add([vR(13), "v_lshrrev_b32 v8, 1, v13", vQ(9), "v_xor_b32 v8, v8, v9", "v_lshlrev_b32 v8, 4, v8", "v_lshl_add_u32 v8, v13, 7, v8"])
        B.add("s_add_u32 s33, s30, %d\nv_add_u32 v8, s33, v8\nv_xor_b32 v9, 64, v8\nv_add_u32 v10, %d, v8\nv_add_u32 v11, %d, v9" % (ROWH, 2*SLOT, 2*SLOT))
        B.add("s_lshl_b32 s33, s%d, 6\ns_add_u32 s33, s33, %d\nv_lshl_add_u32 v13, v13, 1, s33" % (sW, L_CS3 + 1536))
    zb = o.get("zbar", 19)
    CS1 = FR + 8
    ready = []; nst_ = 0
    for sg in range(9, 18):
        x = [[], []]; p1 = (); pre = ()
        for kk in range(2):
            ks = 2*(sg-9) + kk
            if kk == 1 and sg + 1 == zb:
                assert nst_ == 9, nst_
                pre = ["s_waitcnt vmcnt(0)"] + (["s_barrier"] if zb == 18 else [])
            if ks == h_ld: x[kk] += [(11+2*i, s) for i, s in enumerate(recl)]
            if ks >= st_ks:
                for i in range(st_n if not (o.get("st_late") and kk == 1 and ks < 12) else 0):
                    if ready: x[kk].append(((2 + i*(16//st_n)) if not (o.get("st_late") and ks < 12) else 12 + 2*i, zst(ready.pop(0)))); nst_ += 1
            if ks >= h_go:
                t = H.take([p for p in DENSE if p > 7 or ks > h_go or not lrec])
                if burst and not H.q and B.q: t += [(17, s) for s in B.q]; B.q = []
                if st_ks == 0:
                    nst_ += sum(s.startswith(";ok") for _, s in t)
                    t = [(p, zst(int(s.split()[1])) if s.startswith(";ok") else s) for p, s in t]
                ready += [int(s.split()[1]) for _, s in t if s.startswith(";ok")]
                x[kk] += t
        if lrec and sg == 9: x[0] += [(12, "v_lshrrev_b32 v255, 8, v1"), (13, "v_lshl_add_u32 v255, v255, 6, s33")]
        if lrec and sg + 1 == rb_: p1 = ["ds_read_b128 %s, v255 offset:%d" % (vr(Q[i]), 1024 + 16*i) for i in range(4)]
        if sg == 17:
            x[0] += [(12, "v_lshrrev_b32 v%d, 4, v1" % vR1), (13, "v_and_b32 v%d, 48, v%d" % (vR1, vR1)), (14, "v_add_u32 v%d, %d, v%d" % (vR1, L_CS3 + 576, vR1))]
            p1 = ["ds_read_b128 %s, v%d offset:%d" % (vr(CS1 + 4*ft), vR1, ft*64) for ft in range(9)]
            bias = ["ds_read_u16 v12, v13", "ds_read_u16 v252, v13 offset:32"]
            if not H.q and not any(s.startswith(("v_", "s_")) for _, s in x[1]): p1 += bias; bias = []
            x[1] += [(12, "s_lshr_b32 s35, s%d, 1" % sW), (12, "s_mul_i32 s35, s35, %d" % SLOT), (13, "s_and_b32 s34, s%d, 1" % sW), (13, "s_mul_i32 s34, s34, 9216"),
                    (14, "s_add_u32 s35, s35, s34"), (15, "v_add_u32 v3, s35, v%d" % vZ1)]
            if o.get("wsh", 0):
                x[0] += x[1]; x[1] = [(11 + i*7//o["wsh"], "ds_write_b128 v3, %s offset:%d" % (vr(A2 + 8*i), 1024*i)) for i in range(o["wsh"])]
        stage(sg, nxt=(sg < 17), x0=x[0], x1=x[1], p1=p1, pre=pre)
    for ft in ready: C(zst(ft))
    for s in H.q + bias: C(zst(int(s.split()[1])) if s.startswith(";ok") else s)
    stamp(C, diag, "pass2")
    assert lrec and zb <= 20
    if zb == 19: C("s_waitcnt vmcnt(0)\ns_barrier")
    n1 = o.get("n1", 4); NP = o.get("peel", 8)
    C("s_waitcnt lgkmcnt(%d)" % o.get("wsh", 0))
    for i in (3, 2, 1, 0): C("v_lshlrev_b32 v%d, 16, v12\nv_lshlrev_b32 v%d, 16, v252" % (12+i, 252+i))
    mr = [MR + 2*(i//2) for i in range(4)]; kc = [4 + 2*(i//2) for i in range(4)]
    own = o.get("own", 3)
    for ft in range(9):
        if own in (1, 3, 4) and ft >= o.get("wsh", 0): C("ds_write_b128 v3, %s offset:%d" % (vr(A2 + 8*ft), 1024*ft))
        for i in range(4): C("v_pk_fma_f32 %s, %s, %s, %s op_sel_hi:[0,1,1] neg_lo:[1,0,0] neg_hi:[1,0,0]" % (p2(A1+ft*8+2*i), p2(mr[i]), p2(CS1+4*ft+2*(i % 2)), p2(A1+ft*8+2*i)))
    if zb == 20: C("s_waitcnt vmcnt(0) lgkmcnt(0)\ns_barrier")
    b18 = "s_waitcnt lgkmcnt(0)\ns_barrier" if own != 4 else ""
    for ft in range(n1):
        x = [A1 + ft*8 + 2*i for i in range(4)]; t = [FR + 44 + 8*(ft % 2) + 2*i for i in range(4)]
        if ft == n1 - 1 and o.get("earlyB", 1):
            C(b18); stamp(C, diag, "p4B0")
            for s in reads(18, 0): C(s)
        for i in range(4): C("v_pk_mul_f32 %s, %s, %s" % (p2(t[i]), p2(x[i]), p2(x[i])))
        for i in range(4): C("v_pk_fma_f32 %s, %s, %s, %s op_sel:[0,1,0] op_sel_hi:[1,1,0]" % (p2(t[i]), p2(t[i]), p2(kc[i]), p2(kc[i])))
        for i in range(4): C("v_pk_mul_f32 %s, %s, %s" % (p2(t[i]), p2(t[i]), p2(x[i])))
        for i in range(8): C("v_exp_f32 v%d, v%d" % (t[0]+i, t[0]+i))
        for i in range(4): C("v_pk_fma_f32 %s, %s, %s, %s op_sel:[0,1,1] op_sel_hi:[1,1,1]" % (p2(t[i]), p2(t[i]), p2(mr[i]), p2(mr[i])))
        for i in range(8): C("v_rcp_f32 v%d, v%d" % (t[0]+i, t[0]+i))
        for i in range(4): C("v_pk_mul_f32 %s, %s, %s" % (p2(x[i]), p2(x[i]), p2(t[i])))
    if o.get("wsp") is not None:
        i1 = max(i for i, l in enumerate(C.L) if l.strip() == "s_barrier") - 1
        i0 = min(i for i in range(i1 - 400, i1) if "ds_write_b128 v3" in C.L[i])
        w_ = [l for l in C.L[i0:i1] if "ds_write" in l]; r_ = [l for l in C.L[i0:i1] if "ds_write" not in l]; n_ = []
        for l in w_: n_ += [l] + r_[:o["wsp"]]; r_ = r_[o["wsp"]:]
        C.L[i0:i1] = n_ + r_
    stamp(C, diag, "z1gelu")
    if not (n1 and o.get("earlyB", 1)):
        C(b18); stamp(C, diag, "p4B0")
        for s in reads(18, 0): C(s)
    J = Filler()
    tq = [12, 13, 14, 15, 252, 253, 254, 255]
    for ft in range(n1, 9):
        x = A1 + ft*8
        for i in range(8): J.add("v_mul_f32 v%d, v%d, v%d" % (tq[i], x+i, x+i))
        for i in range(8): J.add("v_fma_f32 v%d, v%d, v%d, v%d" % (tq[i], tq[i], 5 + 2*(i//4), 4 + 2*(i//4)))
        for i in range(8): J.add("v_mul_f32 v%d, v%d, v%d" % (tq[i], tq[i], x+i))
        for i in range(8): J.add("v_exp_f32 v%d, v%d" % (tq[i], tq[i]))
        for i in range(8): J.add("v_fma_f32 v%d, v%d, v%d, v%d" % (tq[i], tq[i], MR+1+2*(i//4), MR+1+2*(i//4)))
        for i in range(8): J.add("v_rcp_f32 v%d, v%d" % (tq[i], tq[i]))
        for i in range(8): J.add("v_mul_f32 v%d, v%d, v%d" % (x+i, x+i, tq[i]))
    J.add("s_mul_i32 s36, s31, 73728\ns_add_u32 s36, s36, s%d" % sLB)
    J.add("s_lshl_b32 s34, s24, 10\ns_lshr_b32 s35, s24, 1\ns_lshl_b32 s35, s35, 10\ns_and_b32 s33, s24, 1\ns_mul_i32 s33, s33, 73728\ns_add_u32 s35, s35, s33\ns_add_u32 s35, s35, 65536")
    J.add("v_add_u32 v14, s34, v1\nv_add_u32 v15, s35, v1\ns_add_u32 s39, s36, 0x%x\ns_add_u32 s40, s36, 0x%x" % (WS_H, WS_H+73728))
    def jtake(lo=0):
        out = []
        for p in range(lo, 18):
            room = 1 if p <= 10 else 2
            if p in (0, 7) or (p == 17): room -= 1
            while room > 0 and J.q:
                tr = J.q[0].startswith(("v_exp", "v_rcp"))
                if tr and room < 2 and p <= 10 and not o.get("trany", 1): break
                out.append((p, J.q.pop(0))); room -= 2 if tr else 1
        return out
    for sg in range(18, 18 + NP):
        stage(sg, x0=jtake() if sg > 18 else (), x1=jtake(3 if sg == 18 else 0), cinit=(12, 252) if sg == 18 else None, nobar=(own in (1, 4) and sg == 18))
    while J.q: C(J.q.pop(0))
    C("s_mov_b32 s41, %d" % (7 - NP//4))
    if o.get("align", 6): C(".p2align %d" % o.get("align", 6))
    C.lab("L_g_loop")
    for sg in range(18, 22): stage(sg, x1=[(16, "s_sub_u32 s41, s41, 1"), (17, "s_cmp_lg_u32 s41, 0")] if sg == 21 else ())
    if o.get("rdexp"):
        i0 = C.L.index("L_g_loop:"); drop = [vr(FR + 8 + 4*f) for f in range(9 - o["rdexp"]//2, 9)] + [vr(FR + 52 + 4*f) for f in range(9 - (o["rdexp"]+1)//2, 9)]
        C.L[i0:] = [l for l in C.L[i0:] if not ("ds_read" in l and l.split()[1].rstrip(",") in drop)]
    if o.get("nobar"):
        i0 = C.L.index("L_g_loop:"); C.L[i0:] = [l for l in C.L[i0:] if "s_barrier" not in l]
    C("s_cbranch_scc1 L_g_loop")
    C.nbar += 24 - NP
    NT = o.get("tail", 2)
    if NT:
        nk = 2*NT; s0 = 22 - NT; ZB = FR + 8*nk; nz = (88 - 8*nk)//4
        wr = [reads(s0 + k//2, k % 2)[tt].replace(vr(FR + (k % 2)*44 + 4*tt), vr(FR + 8*k + 4*tt)) for k in range(nk) for tt in range(2)]
        zr = [reads(s0 + k//2, k % 2)[2+ft].replace(vr(FR + (k % 2)*44 + 8 + 4*ft), vr(ZB + 4*((ft*nk + k) % nz))) for ft in range(9) for k in range(nk)]
        n0 = 11 - 2*nk; assert n0 >= 1
        for sg in range(18, s0 - 1): stage(sg)
        first = [wr[0], wr[1], zr[0]] + wr[2:] + zr[1:n0]
        stage(s0 - 1, nxt=False, pre=["s_barrier"], p1=first)
        out = lambda u, tt: A1 + 16*u + (4 if u < 4 else 2)*tt
        def fin(ft):
            r_ = []
            for tt in range(2):
                i = (ft*2+tt)*4
                r_ += ["v_mul_f32 v%d, v%d, v%d" % (A2+i+j, A2+i+j, A1+i+j) for j in range(4)]
                r_ += ["v_cvt_pk_bf16_f32 v%d, v%d, v%d" % (out(ft//2, tt) + 2*(ft % 2) + p, A2+i+2*p, A2+i+2*p+1) for p in range(2)]
                if ft == 8:
                    if tt:
                        d = out(4, 0)
                        r_ += ["s_bitcmp0_b32 s24, 1", "s_cbranch_scc1 L_g_ns", "v_swap_b32 v%d, v%d" % (d, d+2), "v_swap_b32 v%d, v%d" % (d+1, d+3), "L_g_ns:"]
                        r_.append("buffer_store_dwordx4 %s, v15, %s, s39 offen %s" % (vr(d), WS, stf))
                elif ft % 2:
                    r_.append("buffer_store_dwordx4 %s, v14, %s, s%d offen %s" % (vr(out(ft//2, tt)), WS, 39+tt, stf))
                    if tt and ft < 7: r_.append("v_add_u32 v14, 16384, v14")
            return r_
        mm = [mfma(A2 + (ft*2+tt)*4, ZB + 4*((ft*nk + k) % nz), FR + 8*k + 4*tt) for ft in range(9) for k in range(nk) for tt in range(2)]
        ex = []; nr = n0; T = Filler(); LA = min(nz - 2, 8); nf = 0
        for n in range(9*nk):
            ex.append((2*n - 1, "s_waitcnt lgkmcnt(%d)" % (0 if n < n0 and n == 0 else min(15, max(0, nr - n - 1)))))
            c_ = 0
            while nr < 9*nk and nr <= n + LA and c_ < 2: ex.append((2*n + c_, zr[nr])); nr += 1; c_ += 1
            if n == (nf + 1)*nk + 2: T.add(fin(nf)); nf += 1
            ex += T.take(sorted([2*n, 2*n+1, 2*n+1] + ([2*n] if c_ == 0 else []) + ([2*n+1] if len(T.q) > 12 else [])))
        for s in interleave(mm, ex): C(s)
        stamp(C, diag, "p4loop")
        k_ = len(T.q)
        while T.q: C(T.q.pop(0))
        C("s_nop %d" % max(0, 6 - k_))
        for f in range(nf, 9):
            for s in fin(f): C(s)
        stamp(C, diag, "p4end")
        return
    assert False
```

```python
from ph_sync import *
def magic(d, maxv):
    for sh in range(8, 20):
        m = -(-(1 << sh) // d)
        if all((v*m) >> sh == v // d for v in range(maxv+1)): return m, sh
def sdiv(k, q, r, src, d, maxv):
    m, sh = magic(d, maxv)
    k("s_mul_i32 s%d, s%d, %d\ns_lshr_b32 s%d, s%d, %d\ns_mul_i32 s%d, s%d, %d\ns_sub_u32 s%d, s%d, s%d" % (q, src, m, q, q, sh, r, q, d, r, src, r))
def vdiv(k, dst, src, d, maxv, rem):
    m, sh = magic(d, maxv)
    k("v_mul_u32_u24 v%d, %d, v%d\nv_lshrrev_b32 v%d, %d, v%d\nv_mul_u32_u24 v%d, %d, v%d\nv_sub_u32 v%d, v%d, v%d" % (dst, m, src, dst, sh, dst, rem, d, dst, rem, src, rem))
P_X, P_WQKV, P_WO, P_WIN, P_WOUT = 36, 38, 40, 44, 50
DBG = 58
SRC = "s[32:35]"
F = 16
dB = [72*(u >> 1) + 32*(u & 1) for u in range(8)]
AMT = 46
VSO, VSA, VDB = 254, 255, 246
def trreads(k, pad, B, bases, BL, baseL):
    for u in range(9):
        for ih in range(2):
            row = bases[u] + B*ih if u < 8 else baseL + BL*ih
            off = row*128 + (row >> 3)*pad
            k("ds_read_b64_tr_b16 %s, v%d offset:%d" % (vr(F+4*u+2*ih, 2), 4 if u < 8 else 5, off))
def colsum(k, vaddr, sb, stf):
    for i in range(36): k("v_dot2_f32_bf16 v%d, v%d, v11, %s" % (12 + i % 2, F+i, "v%d" % (12 + i % 2) if i > 1 else "0"))
    k("s_nop 2\nv_add_f32 v12, v12, v13")
    xsum_q(k, 12, 13)
    k("buffer_store_dword v12, v%d, %s, s%d offen %s" % (vaddr, WS, sb, stf))
def stores(k, vsel, soff, stf):
    for u in range(9):
        k("s_waitcnt lgkmcnt(%d)" % min(15, 16 - 2*u))
        k(soff(u))
        k("buffer_store_dwordx4 %s, v%d, %s, s31 offen %s" % (vr(F+4*u), vsel(u), WS, stf))
SO = [37, 38, 39, 40, 41, 42, 43, 47, 48]
def wload(k, ncw, ptr, rows, stride, A, AL, LB, ld0, bars, pad=0, nx=0):
    sdiv(k, 28, 27, 26, ncw, 200)
    srd(k, 32, ptr, rows*stride)
    k("s_mul_i32 s29, s28, %d\ns_lshl_b32 s31, s27, 7\ns_add_u32 s29, s29, s31\ns_mul_i32 s31, s%d, %d\ns_add_u32 s29, s29, s31" % (288*stride, sW, 72*stride))
    k("s_mul_i32 s30, s%d, %d\nv_lshrrev_b32 v4, 7, v1\nv_mul_u32_u24 v4, %d, v4\nv_and_b32 v5, 0x70, v1" % (sW, 9*(1024 + pad), stride))
    if nx: k("v_bfe_u32 v7, v1, 8, %d\nv_lshlrev_b32 v7, 5, v7\nv_xor_b32 v5, v5, v7" % nx)
    k("v_add_u32 v4, v4, v5")
    for j in range(-1, 9):
        if j >= 0: k("s_add_u32 m0, s30, %d\ns_add_u32 s31, s29, %d\nbuffer_load_dwordx4 v4, %s, s31 offen %s lds" % (LB + j*(1024 + pad), j*8*stride, SRC, ld0))
        for _ in range(bars.get(j, 0)): k("s_barrier")
    k("v_lshrrev_b32 v7, 2, v2\nv_and_b32 v8, 3, v2\nv_bfe_u32 v9, v1, 7, %d\nv_xor_b32 v9, s%d, v9\nv_lshlrev_b32 v9, 5, v9" % (nx, sW))
    k("v_lshl_add_u32 v9, v7, 7, v9\nv_lshl_add_u32 v9, v8, 3, v9\nv_add_u32 v9, %d, v9" % LB)
    k("v_mul_u32_u24 v4, %d, v3\nv_add_u32 v4, v4, v9\nv_mul_u32_u24 v5, %d, v3\nv_add_u32 v5, v5, v9" % (A*128 + (A//8)*pad, AL*128 + (AL//8)*pad))
    k("s_lshl_b32 s31, s27, 2\ns_add_u32 s31, s31, s%d\nv_lshl_add_u32 v7, s31, 2, v7\nv_lshlrev_b32 v8, 4, v8\nv_lshl_add_u32 v8, v3, 8, v8" % sW)
def proj_dst(k, ncp, base):
    vdiv(k, 9, 7, 18, 143, 10)
    k("v_lshrrev_b32 v12, 3, v10\nv_and_b32 v13, 1, v10\nv_lshl_add_u32 v12, v12, 1, v13\nv_bfe_u32 v14, v10, 1, 2\nv_cmp_gt_u32 vcc, 16, v10")
    k("v_mul_u32_u24 v9, %d, v9\nv_add_u32 v9, v9, v8" % (ncp*9216))
    k("v_cndmask_b32 v12, 8, v12, vcc\nv_cndmask_b32 v14, v13, v14, vcc\nv_mov_b32 v15, 0x1000\nv_mov_b32 v13, 0x80\nv_cndmask_b32 v15, v13, v15, vcc")
    k("v_lshl_add_u32 v9, v12, 10, v9\nv_lshl_add_u32 v9, v14, 6, v9\nv_add_u32 v10, v9, v15")
    k("s_and_b32 s31, s28, 1\ns_cmp_eq_u32 s31, 1\ns_cselect_b64 vcc, -1, 0\nv_cndmask_b32 v14, v9, v10, vcc")
    hs, us = (4, 1) if ncp == 9 else (1, 8)
    k("s_mul_i32 s31, s28, %d" % (hs*9216))
    for u in range(8): k("s_add_u32 s%d, s31, 0x%x" % (SO[u], base + us*(u >> 1)*9216))
    k("s_lshr_b32 s31, s28, 1\ns_mul_i32 s31, s31, 9216\ns_add_u32 s%d, s31, 0x%x" % (SO[8], base + (ncp*8//9)*9216))
def prep_C(k, o, diag):
    stf = o.get("st0", "sc1"); ld0 = o.get("ld0", "")
    k(vR(2)); k(vQ(3)); k("v_bfrev_b32 v6, 1\nv_mov_b32 v11, 0x3f803f80")
    k("s_lshl_b32 s30, s%d, 12\ns_and_b32 s29, s%d, 1" % (sW, sW))
    stamp(k, diag, "p0go")
    k("s_cmp_lt_u32 s2, 128\ns_cbranch_scc1 L_p0_x\ns_cmp_lt_u32 s2, 236\ns_cbranch_scc1 L_p0_wq\ns_cmp_lt_u32 s2, 254\ns_cbranch_scc1 L_p0_wo")
    k("s_mov_b32 s%d, 0\ns_mov_b32 s27, 0x800000" % AMT)
    k("s_barrier\ns_branch L_p0_cd")
    k.lab("L_p0_wo")
    k("s_mul_i32 s30, s%d, 9216\ns_sub_u32 s26, s2, 236" % sW)
    wload(k, 9, P_WO, 576, 1152, 4, 72, 0, ld0, {})
    proj_dst(k, 9, WS_WO)
    k("s_cmp_ge_u32 s26, 4\ns_cbranch_scc1 L_p0_n2\ns_lshl_b32 s31, s26, 2\ns_add_u32 s31, s31, s%d\ns_lshl_b32 s31, s31, 12\ns_add_u32 s31, s31, 0x%x" % (sW, WS_FLAG + 32768))
    zero16(k, 31)
    k.lab("L_p0_n2")
    k("s_waitcnt vmcnt(0)\ns_barrier")
    trreads(k, 0, 20, [36*u for u in range(8)], 36, 16)
    stores(k, lambda u: (9 + (u & 1)) if u < 8 else 14, lambda u: "s_mov_b32 s31, s%d" % SO[u], stf)
    k("s_mov_b32 s%d, 1\ns_mov_b32 s27, %d\ns_branch L_p0_cd" % (AMT, 16*F_P4))
    k.lab("L_p0_wq")
    srd(k, 32, P_WQKV, 576*3456)
    k("s_sub_u32 s23, s2, 128")
    sdiv(k, 25, 24, 23, 27, 107)
    k("s_mul_i32 s26, s25, %d\ns_lshl_b32 s31, s24, 7\ns_add_u32 s26, s26, s31" % (144*3456))
    k("v_lshrrev_b32 v4, 7, v1\nv_mul_u32_u24 v4, 3456, v4\nv_lshrrev_b32 v5, 4, v1\nv_and_b32 v5, 16, v5\nv_xor_b32 v5, v5, v1\nv_and_b32 v5, 0x70, v5\nv_add_u32 v4, v4, v5")
    k("s_mul_i32 s31, s%d, %d\ns_add_u32 s27, s26, s31\ns_mul_i32 s30, s%d, %d" % (sW, 32*3456, sW, 4*1056))
    for j in range(4): k("s_add_u32 m0, s30, %d\ns_add_u32 s31, s27, %d\nbuffer_load_dwordx4 v4, %s, s31 offen %s lds" % (j*1056, j*8*3456, SRC, ld0))
    k("s_cmp_ge_u32 s%d, 2\ns_cbranch_scc1 L_p0_q5" % sW)
    k("s_mul_i32 s31, s29, 1056\ns_add_u32 m0, s31, 16896\ns_mul_i32 s31, s29, %d\ns_add_u32 s31, s31, s26\ns_add_u32 s31, s31, %d" % (8*3456, 128*3456))
    k("buffer_load_dwordx4 v4, %s, s31 offen %s lds" % (SRC, ld0))
    k.lab("L_p0_q5")
    k("v_lshrrev_b32 v7, 2, v2\nv_and_b32 v8, 3, v2\ns_lshl_b32 s31, s%d, 5" % sW)
    k("v_and_b32 v9, 2, v7\nv_xor_b32 v9, v9, v3\nv_lshlrev_b32 v9, 3, v9\nv_lshl_add_u32 v9, v7, 7, v9\nv_add_u32 v9, s31, v9")
    k("v_mul_u32_u24 v4, 1056, v8\nv_add_u32 v4, v4, v9\nv_and_b32 v5, 1, v2\nv_mul_u32_u24 v5, %d, v5\nv_add_u32 v5, v5, v9" % (9*1056))
    k("s_lshl_b32 s31, s24, 2\ns_add_u32 s31, s31, s%d\nv_lshlrev_b32 v8, 4, v8\nv_lshl_add_u32 v8, v7, 8, v8\nv_lshl_add_u32 v7, s31, 2, v3" % sW)
    vdiv(k, 9, 7, 144, 431, 10)
    vdiv(k, 12, 10, 9, 143, 13)
    k("v_cmp_lt_u32 s[36:37], 4, v13\nv_cmp_eq_u32 s[38:39], 4, v13\nv_cmp_eq_u32 s[40:41], 2, v9\nv_lshlrev_b32 v14, 1, v9\nv_add_u32 v15, 1, v14\nv_subrev_u32 v10, 5, v13")
    k("v_cndmask_b32 v14, v14, v15, s[36:37]\nv_cndmask_b32 v13, v13, v10, s[36:37]\nv_cndmask_b32 v14, v14, 6, s[38:39]\nv_cndmask_b32 v13, v13, v9, s[38:39]")
    k("s_and_b64 s[40:41], s[40:41], s[38:39]\ns_mov_b32 s31, %d" % (18*7168))
    k("v_mul_lo_u32 v9, v12, s31\nv_add_u32 v9, v9, v8\nv_lshl_add_u32 v9, v14, 10, v9\nv_lshl_add_u32 v9, v13, 6, v9")
    k("s_and_b32 s31, s25, 1\nv_lshrrev_b32 v8, 3, v2\nv_cmp_eq_u32 vcc, s31, v8")
    k("v_add_u32 v15, 64, v9\nv_cndmask_b32 v15, v6, v15, s[40:41]\nv_cndmask_b32 v8, v6, v9, vcc")
    k("v_lshlrev_b32 v10, 2, v2\nv_lshl_add_u32 v10, v7, 4, v10")
    k("v_cmp_gt_u32 vcc, 4, v2\ns_lshl_b32 s45, s25, 13\ns_add_u32 s45, s45, 0x%x\nv_cndmask_b32 v10, v6, v10, vcc" % WS_CSQ)
    k("s_mul_i32 s42, s25, %d\ns_add_u32 s42, s42, 0x%x\ns_lshr_b32 s44, s25, 1\ns_mul_i32 s44, s44, 7168\ns_add_u32 s44, s44, 0x%x" % (4*7168, WS_WQ, WS_WQ + 16*7168))
    sdiv(k, 26, 27, 24, 9, 26)
    k("s_lshl_b32 s27, s27, 4\ns_add_u32 s28, s27, 16\nv_lshrrev_b32 v%d, 4, v1\nv_mul_u32_u24 v7, 9, v%d\nv_add_u32 v%d, 9, v7" % (VSO, VSO, VSA))
    k("v_min_u32 v%d, s28, v%d\nv_max_u32 v7, s27, v7\nv_sub_u32 v%d, v%d, v7\nv_cmp_lt_i32 vcc, 0, v%d\nv_lshlrev_b32 v%d, 8, v%d" % (VSA, VSA, VSA, VSA, VSA, VSO, VSO))
    k("v_mov_b32 v14, 0x3f003f00\nv_cndmask_b32 v%d, v6, v%d, vcc" % (VSO, VSO))
    sq = lambda u: "s_add_u32 s31, s42, %d" % (u*7168) if u < 4 else "s_mov_b32 s31, s44"
    k("s_cmp_eq_u64 s[40:41], 0\ns_cbranch_scc1 L_p0_np")
    for i in range(4): k("v_mov_b32 v%d, 0" % (52+i))
    for u in range(5): k(sq(u)); k("buffer_store_dwordx4 v[52:55], v15, %s, s31 offen %s" % (WS, stf))
    k("s_waitcnt vmcnt(5)\ns_branch L_p0_n3")
    k.lab("L_p0_np")
    k("s_waitcnt vmcnt(0)")
    k.lab("L_p0_n3")
    k("s_barrier")
    stamp(k, diag, "p0ld")
    for u in range(5):
        for ih in range(2): k("ds_read_b64_tr_b16 %s, v%d offset:%d" % (vr(F+4*u+2*ih, 2), 4 if u < 4 else 5, ((dB[u] if u < 4 else 64)//8)*1056 + 512*ih))
    for u in range(5):
        k("s_waitcnt lgkmcnt(%d)" % (8 - 2*u)); k(sq(u))
        k("buffer_store_dwordx4 %s, v%d, %s, s31 offen %s" % (vr(F+4*u), 9 if u < 4 else 8, WS, stf))
    for i in range(20): k("v_dot2_f32_bf16 v%d, v%d, v%d, %s" % (12 + i % 2, F+i, 11 if i < 16 else 14, "v%d" % (12 + i % 2) if i > 1 else "0"))
    k("s_nop 2\nv_add_f32 v12, v12, v13\ns_nop 1\nv_add_f32_dpp v12, v12, v12 row_ror:4 row_mask:0xf bank_mask:0xf\ns_nop 1\nv_add_f32_dpp v12, v12, v12 row_ror:8 row_mask:0xf bank_mask:0xf")
    k("buffer_store_dword v12, v10, %s, s45 offen %s" % (WS, stf))
    k("s_branch L_p0_ce")
    k.lab("L_p0_x")
    srd(k, 32, P_X, 2048*1152)
    k("s_mul_i32 s26, s2, 18432\ns_mul_i32 s31, s%d, 288\ns_add_u32 s28, s26, s31" % sW)
    k("v_lshrrev_b32 v4, 6, v1\nv_mul_u32_u24 v4, 1152, v4\nv_and_b32 v5, 48, v1\nv_add_u32 v4, v4, v5")
    for u in range(4): k("s_add_u32 m0, s30, %d\ns_add_u32 s31, s28, %d\nbuffer_load_dwordx4 v4, %s, s31 offen %s lds" % (u*1024, 144*(u >> 1) + 64*(u & 1), SRC, ld0))
    k("s_mul_i32 s31, s29, 576\ns_add_u32 s31, s31, s26\nv_mul_u32_u24 v7, 1152, v2\nv_mul_u32_u24 v5, 144, v3\nv_add_u32 v5, v5, v7")
    k("buffer_load_dwordx4 %s, v5, %s, s31 offen offset:128 %s" % (vr(F+16), SRC, ld0))
    k("s_lshl_b32 s27, s29, 10\ns_add_u32 s27, s27, 16384")
    k("s_barrier")
    k("v_lshlrev_b32 v4, 6, v2\nv_lshl_add_u32 v4, v3, 4, v4\nv_add_u32 v4, s30, v4")
    k("s_add_u32 s26, s26, 0x%x\ns_add_u32 s42, s26, s30\ns_add_u32 s44, s26, s27" % WS_XA)
    k("s_lshl_b32 s45, s2, 10\ns_lshl_b32 s31, s%d, 8\ns_add_u32 s45, s45, s31\ns_add_u32 s45, s45, 0x%x" % (sW, WS_STA))
    k("v_cmp_gt_u32 vcc, 2, v3\nv_lshrrev_b32 v10, 1, v1\ns_mov_b32 s%d, 2\nv_cndmask_b32 v10, v6, v10, vcc" % AMT)
    k("s_lshr_b32 s27, s2, 3\ns_add_u32 s27, s27, %d" % (16*F_P5))
    stamp(k, diag, "p0w")
    k("s_waitcnt vmcnt(0)")
    stamp(k, diag, "p0ld")
    for u in range(4): k("ds_read_b128 %s, v4 offset:%d" % (vr(F+4*u), 1024*u))
    for u in range(4): k("s_waitcnt lgkmcnt(%d)\nbuffer_store_dwordx4 %s, v1, %s, s42 offen offset:%d %s" % (3-u, vr(F+4*u), WS, u*1024, stf))
    dots = lambda i: "v_dot2_f32_bf16 v12, v%d, v11, %s\nv_dot2_f32_bf16 v13, v%d, v%d, %s" % (F+i, "v12" if i else "0", F+i, F+i, "v13" if i else "0")
    for i in range(16): k(dots(i))
    k("s_waitcnt lgkmcnt(0)\ns_cmp_ge_u32 s%d, 2\ns_cbranch_scc1 L_p0_xs" % sW)
    k("buffer_store_dwordx4 %s, v1, %s, s44 offen %s" % (vr(F+16), WS, stf))
    for i in range(16, 20): k(dots(i))
    k.lab("L_p0_xs")
    k("s_nop 2\nv_mov_b32 v14, v12\nv_mov_b32 v15, v13\ns_nop 1\nv_permlane32_swap_b32 v12, v14\nv_permlane32_swap_b32 v13, v15\nv_add_f32 v12, v12, v14\nv_add_f32 v13, v13, v15")
    k("buffer_store_dwordx2 v[12:13], v10, %s, s45 offen %s" % (WS, stf))
    k.lab("L_p0_cd")
    k("v_cmp_eq_u32 vcc, 0, v1\ns_lshl_b32 s27, s27, 8\nv_mov_b32 v%d, s%d\nv_mov_b32 v%d, s27\nv_cndmask_b32 v%d, v6, v%d, vcc" % (VSA, AMT, VSO, VSO, VSO))
    k.lab("L_p0_ce")
    stamp(k, diag, "p0is")
    srd(k, DSRD, DBG, 256)
    k("v_mov_b32 v4, 0\nbuffer_load_dword v%d, v4, s[%d:%d], 0 offen sc1" % (VDB, DSRD, DSRD+3))
    k.nbar = 1
DSRD = 48
def prep_signal(k):
    k("v_cmp_gt_u32 vcc, 4, v%d\nv_mov_b32 v4, 0\ns_mov_b32 s46, 0x%x\ns_cbranch_vccz L_pd_dbg" % (VDB, WS_FLAG))
    vpoll(k, "dbg", "s[%d:%d]" % (DSRD, DSRD+3), "0", 4, 5, 4)
    k("buffer_atomic_add v%d, v%d, %s, s46 offen sc1" % (VSA, VSO, WS))
U_WI, U_WU, U_END = 0, 144, 216
def tr_wu(k): trreads(k, 0, 16, [144*(u & 1) + 32*(u >> 1) for u in range(8)], 144, 128)
def tr_wi(k): trreads(k, 64, 4, dB, 4, 64)
def prep_L_tr(k):
    k("s_cmp_lt_u32 s2, %d\ns_cbranch_scc1 L_p0_t1\ns_cmp_ge_u32 s2, %d\ns_cbranch_scc1 L_p0_t2" % (U_WU, U_END))
    tr_wu(k); k("s_branch L_p0_t2")
    k.lab("L_p0_t1"); tr_wi(k)
    k.lab("L_p0_t2"); k("s_waitcnt lgkmcnt(0)")
def prep_L(k, o, diag):
    ld0 = o.get("ld0", ""); LB = 36864
    late = 1; nb0 = k.nbar
    bars = {-1: 1, o.get("p0bar", 0): 2} if not late else o.get("p0bars", {-1: 3})
    if late: LB = 91904
    k(vR(2)); k(vQ(3)); k("v_bfrev_b32 v6, 1\nv_mov_b32 v11, 0x3f803f80")
    k("s_mul_i32 s30, s%d, 9216" % sW)
    sk = o.get("p0skip", 0)
    k("s_cmp_lt_u32 s2, %d\ns_cbranch_scc1 L_p0_wi\ns_cmp_lt_u32 s2, %d\ns_cbranch_scc1 L_p0_wu" % (U_WU if sk < 2 else 0, U_END if sk < 1 else 0))
    for r_ in (9, 10, 14, 15): k("v_mov_b32 v%d, v6" % r_)
    for r_ in SO + [49]: k("s_mov_b32 s%d, 0" % r_)
    if o.get("p0y", 0) == 2:
        for i in range(9): k("buffer_load_dword v16, v6, %s, 0 offen" % WS); k.issue("unit")
    k("s_barrier\n"*sum(bars.values() if late else [5]) + "s_branch L_p0_ld")
    def landed():
        if late: return
        k("s_barrier\ns_waitcnt vmcnt(0)\ns_barrier")
        stamp(k, diag, "Lp0ld")
    k.lab("L_p0_wu")
    k("s_sub_u32 s26, s2, %d" % U_WU)
    wload(k, 9, P_WOUT, 2304, 1152, 4, 4, LB, ld0, bars, 0, 2)
    proj_dst(k, 36, WS_WU)
    k("v_mov_b32 v15, v6\ns_mov_b32 s49, 0")
    landed()
    if not late: tr_wu(k)
    k("s_branch L_p0_ld")
    k.lab("L_p0_wi")
    k("s_mov_b32 s26, s2")
    wload(k, 72, P_WIN, 576, 9216, 8, 72, LB, ld0, bars, 64, 1)
    k("s_cmp_lt_u32 s31, 144\ns_cselect_b32 s23, 1, 0\ns_cselect_b32 s24, 0, 144\ns_sub_u32 s26, s31, s24")
    sdiv(k, 25, 24, 26, 9, 143)
    k("s_lshl_b32 s26, s25, 1\ns_add_u32 s26, s26, s23\ns_mul_i32 s26, s26, %d\ns_lshl_b32 s31, s24, 10\ns_add_u32 s26, s26, s31\ns_add_u32 s26, s26, 0x%x" % (18*9216, WS_WI))
    k("s_mul_i32 s31, s28, 9216\ns_add_u32 s%d, s26, s31\ns_add_u32 s%d, s%d, %d\ns_lshl_b32 s31, s31, 3\ns_add_u32 s26, s26, s31" % (SO[8], SO[8], SO[8], 16*9216))
    for u in range(8): k("s_add_u32 s%d, s26, %d" % (SO[u], u*9216))
    k("s_lshl_b32 s49, s25, 12\ns_mul_i32 s31, s28, 1152\ns_add_u32 s49, s49, s31\ns_mul_i32 s31, s23, 576\ns_add_u32 s49, s49, s31\ns_lshl_b32 s31, s24, 6\ns_add_u32 s49, s49, s31\ns_add_u32 s49, s49, 0x%x" % WS_CSI)
    k("v_cmp_eq_u32 vcc, 0, v3\nv_lshlrev_b32 v15, 2, v2\nv_mov_b32 v9, v1\nv_mov_b32 v10, v1\nv_mov_b32 v14, v1\nv_cndmask_b32 v15, v6, v15, vcc")
    landed()
    if not late: tr_wi(k)
    k.lab("L_p0_ld")
    k("s_waitcnt lgkmcnt(0)")
    stamp(k, diag, "Lp0st")
    k.nbar = nb0 + (sum(bars.values()) if late else 5)
def prep_L_store(k, o, us):
    stf = o.get("st0", "sc1")
    for u in us:
        if u < 9: k("buffer_store_dwordx4 %s, v%d, %s, s%d offen %s" % (vr(F+4*u), (9 + (u & 1)) if u < 8 else 14, WS, SO[u], stf))
        else: colsum(k, 15, 49, stf)
        k.issue("p0")
def zero16(k, sbase):
    k("v_and_b32 v56, 0x380, v1\nv_add_u32 v56, v56, v1")
    for i in range(4): k("v_mov_b32 v%d, 0" % (52+i))
    for i in range(2): k("buffer_store_dwordx4 v[52:55], v56, %s, s%d offen offset:%d sc1" % (WS, sbase, 2048*i))
def zero_counters(k):
    k("s_cmp_lg_u32 s2, 254\ns_cbranch_scc1 L_p0_nz\ns_lshl_b32 s31, s%d, 12\ns_add_u32 s31, s31, 0x%x" % (sW, WS_FLAG))
    zero16(k, 31)
    k("s_waitcnt vmcnt(0)\ns_mov_b32 s53, 1\ns_atomic_add s53, s[%d:%d], 0" % (DBG, DBG+1))
    k.lab("L_p0_nz")
```

```python
from ph_sync import *
def proj_coords(k, o, b=23):
    k("s_and_b32 s%d, s2, 7\ns_lshr_b32 s26, s2, 3" % (b+2))
    if o.get("pmap", 1) == 0:
        k("s_lshl_b32 s%d, s%d, 2\ns_lshr_b32 s27, s26, 3\ns_add_u32 s%d, s%d, s27\ns_and_b32 s%d, s26, 7" % (b, b+2, b, b, b+1))
    else:
        k("s_lshr_b32 s%d, s%d, 1\ns_lshl_b32 s%d, s%d, 3\ns_lshr_b32 s27, s26, 2\ns_add_u32 s%d, s%d, s27" % (b, b+2, b, b, b, b))
        k("s_and_b32 s%d, s%d, 1\ns_lshl_b32 s%d, s%d, 2\ns_and_b32 s27, s26, 3\ns_add_u32 s%d, s%d, s27" % (b+1, b+2, b+1, b+1, b+1, b+1))
    k("s_add_u32 s%d, s%d, s%d\ns_and_b32 s%d, s%d, 3" % (b+2, b, b+1, b+2, b+2))
def dma_run(L, n, sm0, m0add, ssrc, srcadd, tag, fl=""):
    for j in range(n):
        if j % 4 == 0: L("s_add_u32 m0, s%d, %d\ns_add_u32 s33, s%d, %d" % (sm0, m0add + j*1024, ssrc, srcadd + j*1024))
        L("buffer_load_dwordx4 v1, %s, s33 offen offset:%d %s lds" % (WS, (j % 4)*1024, fl)); L.issue(tag)
def p2_loader(L, o, diag, after_y):
    proj_coords(L, o)
    L("s_mul_i32 s29, s24, %d\ns_add_u32 s29, s29, 0x%x" % (9*9216, WS_WO))
    L("s_mul_i32 s30, s%d, %d\ns_mul_i32 s31, s%d, %d\ns_add_u32 s31, s31, s29" % (sW, SLOT, sW, ROWH))
    n0 = o.get("p2n", 12)
    dma_run(L, n0, 30, ROWH, 31, 0, "w")
    stamp(L, diag, "Lp2pre")
    L("s_waitcnt vmcnt(%d)\ns_barrier" % n0)
    dma_run(L, 18 - n0, 30, ROWH + n0*1024, 31, n0*1024, "w")
    L("s_mul_i32 s30, s%d, 3072\ns_add_u32 s31, s30, s29" % sW)
    dma_run(L, 3, 30, TOP, 31, 8*9216, "w")
    L("s_or_b32 s44, s%d, s%d\ns_cbranch_scc1 L_p2_ns\ns_and_b32 s44, s2, 15" % (sW, sLAY))
    flag_addr(L, 44, F_P2, 44, back="prep"); ssignal(L, 44)
    L.lab("L_p2_ns")
    L("s_waitcnt vmcnt(0)\ns_barrier"); L.vm = []
    after_y()
def p5sched(o): return o.get("p5s", {47: [0], 48: [1], "R": [3], "X": [2]} if o.get("tail", 2) == 2 else {47: [0], 48: [1], 49: [2], "X": [3]})
WR = 76
class P5L:
    def __init__(s, L, o):
        s.L = L; s.o = o; s.done = []; s.nk = 0
        s.sched = p5sched(o)
    def setup(s):
        L = s.L
        proj_coords(L, s.o, 38)
        L("s_mul_i32 s42, s%d, 9216\ns_mul_i32 s43, s39, %d\ns_add_u32 s43, s43, s42\ns_add_u32 s43, s43, 0x%x" % (sW, 36*9216, WS_WU))

    def batch(s, tau, reg=False):
        L = s.L; s.done.append(tau)
        L("\n".join(hoist_sel(L, 32, tau, 8, 40, tau < 8 and s.o.get("hoist5", 0))))
        L("s_mul_i32 s32, s32, %d\ns_add_u32 s32, s32, s43" % SLOT)
        if not reg: dma_run(L, 9, 42, ((50 + tau) % 4)*SLOT, 32, 0, ("w", tau))
        else:
            for j in range(9):
                if j and j % 4 == 0: L("s_add_u32 s32, s32, 4096")
                L("buffer_load_dwordx4 %s, v1, %s, s32 offen offset:%d" % (vr(WR + ((tau-4)*9 + j)*4), WS, (j % 4)*1024)); L.issue(("w", tau))
    def keep(s, m):
        L = s.L; n = s.o.get("p5k", {6: 5, 7: 5, 8: 5, 9: 30, 48: 9}).get(m, 0)
        if not n: return
        lab = "L_p5_k%s" % m
        L("s_cmp_lg_u32 s%d, 0\ns_cbranch_scc1 %s" % (sLAY, lab))
        for i in range(s.nk, s.nk + n):
            t, j = 8 - i//9, i % 9
            if i == s.nk or j % 4 == 0: L("s_add_u32 s32, s43, %d" % (t*SLOT + (j//4)*4096))
            L("buffer_load_dwordx4 %s, v1, %s, s32 offen offset:%d" % (vr(WR + ((t-4)*9 + j)*4), WS, (j % 4)*1024)); L.issue("L0")
            if j == 8: s.done.append(t)
        s.nk += n
        L.lab(lab)
    def warm(s, what):
        L = s.L
        if what == "h":
            L("s_lshl_b32 s32, s38, 2\ns_add_u32 s32, s32, s%d\ns_mul_i32 s32, s32, 73728\ns_add_u32 s32, s32, s%d\ns_add_u32 s32, s32, 0x%x" % (sW, sLB, WS_H))
            L("s_lshl_b32 s33, s39, 10\ns_add_u32 s33, s33, s32\ns_add_u32 s33, s33, 65536\nbuffer_load_dwordx4 v[200:203], v1, %s, s33 offen sc1" % WS); L.issue("x")
            L("s_lshl_b32 s33, s39, 13\ns_add_u32 s32, s32, s33"); n = 8
        else:
            L("s_and_b32 s32, s38, 3\ns_lshl_b32 s32, s32, 2\ns_add_u32 s32, s32, s%d\ns_mul_i32 s32, s32, %d\ns_add_u32 s32, s32, s43\ns_sub_u32 s32, s32, s42\ns_add_u32 s32, s32, %d" % (sW, 11520, 4*SLOT)); n = 12
        for j in range(n):
            if j and j % 4 == 0: L("s_add_u32 s32, s32, 4096")
            L("buffer_load_dwordx4 v[200:203], v1, %s, s32 offen offset:%d sc1" % (WS, (j % 4)*1024)); L.issue("x")
    def at(s, point):
        if point in (46, 47, 48): s.keep(point)
        for t in s.sched.get(point, []):
            if isinstance(t, str): s.warm(t)
            elif t in s.done:
                s.waddr()
                if "L0" in s.L.vm: s.L("s_waitcnt vmcnt(%d)" % s.L.vmn("L0"))
                for j in range(9): s.L("ds_write_b128 v%d, %s offset:%d" % (12 + (50 + t) % 4, vr(WR + ((t-4)*9 + j)*4), j*1024))
            else: s.batch(t, t >= 4)
    def waddr(s):
        if not getattr(s, "wa", 0):
            s.wa = 1; s.L("v_add_u32 v12, s42, v1")
            for i in range(1, 4): s.L("v_add_u32 v%d, %d, v12" % (12+i, SLOT*i))
    def main(s, diag, tail):
        L = s.L
        if "R" in s.sched: L("s_barrier"); s.at("R")
        L("s_barrier")
        s.at("X")
        stamp(L, diag, "Lp5pre")
        L("s_waitcnt vmcnt(%d) lgkmcnt(0)\ns_barrier" % L.vmn(("w", 0)))
        if s.o.get("split5", 0):
            L("s_barrier\ns_cmp_lg_u32 s%d, 0\ns_cbranch_scc1 L_p5_n2" % sW)
            flag_addr(L, 44, F_P4, 23)
            L("s_mov_b32 s56, 1\ns_atomic_add s56, s[44:45], 64")
            L.lab("L_p5_n2")
            L("s_lshr_b32 s48, s38, 1"); flag_addr(L, 46, F_P4, 48)
        s.at("Y")
        s.waddr()
        assert all(t in s.done for t in range(4))
        wq = []; nw = s.o.get("nw", [7, 7, 7, 6, 6, 6, 6]); issued = []
        for m in range(1, 9):
            if s.o.get("split5", 0) and m == 2*s.o.get("split5", 0) - 2:
                L("s_cmp_lg_u32 s%d, 0\ns_cbranch_scc1 L_pd_h2" % sW)
                spoll(L, "h2", [(46, 64)], sleep=2)
            assert not any(t <= m for t, _ in wq)
            if m < 4 or m not in issued: lg = 15
            else: lg = min(15, len([t for t in issued if t > m]))
            L("s_waitcnt vmcnt(%d) lgkmcnt(%d)\ns_barrier" % (L.vmn(("w", m)) if ("w", m) in L.vm else 63, lg))
            t = m + 3
            if t < 9 and t in s.done:
                if ("w", t) in L.vm: L("s_waitcnt vmcnt(%d)" % L.vmn(("w", t)))
                wq += [(t, j) for j in range(9)]
            elif t < 9: s.batch(t)
            s.at(m)
            if t >= 9: tail(m)
            for _ in range(nw[m-1] if m < 8 else 0):
                if wq:
                    t, j = wq.pop(0); issued.append(t)
                    L("ds_write_b128 v%d, %s offset:%d" % (12 + (50 + t) % 4, vr(WR + ((t-4)*9 + j)*4), j*1024))
L_PF = 163808
def proj(C, kind, o, diag=None):
    p5 = kind == 5
    uid = "p%d" % kind
    npair = 36 if p5 else 9
    nst = 9 if p5 else 3
    ppst = lambda n: 4 if (p5 or n < 2) else 1
    ACT, RES = (WS_H, WS_XB) if p5 else (WS_O, WS_XA)
    rts = 73728 if p5 else 18432
    EX = 131072 if p5 else 3*SLOT
    ld = o.get("ld", ""); stf = o.get("st", "")
    ho = p5 and o.get("hoist5", 0)
    ACC = 24; WF = 64; AW = 124; RR = 220; T = 232
    if p5 and "R" in p5sched(o): C("s_barrier")
    proj_coords(C, o)
    C("s_lshl_b32 s30, s23, 2\ns_add_u32 s30, s30, s%d\ns_and_b32 s31, s%d, 1" % (sW, sW))
    C("s_mul_i32 s34, s30, 18432\ns_add_u32 s34, s34, s%d\ns_add_u32 s34, s34, 0x%x" % (sLB, RES))
    C("s_lshl_b32 s35, s24, 11")
    C("s_lshr_b32 s36, s24, 2\ns_lshl_b32 s36, s36, 10\ns_and_b32 s37, s24, 3\ns_lshl_b32 s37, s37, 8\ns_add_u32 s36, s36, s37\ns_add_u32 s36, s36, 16384")
    C(vR(2)); C(vQ(3))
    C("v_add_u32 v4, s35, v1\nv_lshrrev_b32 v0, 1, v3\nv_and_b32 v9, 1, v3")
    C("v_cmp_eq_u32 s[40:41], s31, v0\nv_bfrev_b32 v6, 1")
    C("v_lshlrev_b32 v5, 4, v2\nv_lshl_add_u32 v5, v9, 3, v5\nv_add_u32 v5, s36, v5\nv_cndmask_b32 v5, v6, v5, s[40:41]")
    for p in range(2): C("buffer_load_dwordx4 %s, v4, %s, s34 offen offset:%d %s" % (vr(RR+4*p), WS, 1024*p, ld))
    C("buffer_load_dwordx2 %s, v5, %s, s34 offen %s" % (vr(RR+8, 2), WS, ld))
    C("s_and_b32 s29, s30, 0xfffe\ns_mul_i32 s29, s29, %d\ns_add_u32 s29, s29, s%d\ns_lshl_b32 s37, s31, 10\ns_add_u32 s29, s29, s37\ns_add_u32 s29, s29, 0x%x" % (rts, sLB, ACT))
    C("s_mul_i32 s37, s31, %d\ns_sub_u32 s38, %d, s37" % (rts, rts))
    C("v_lshlrev_b32 v10, 3, v2")
    C("v_add_u32 v16, s37, v1\nv_add_u32 v17, s38, v1")
    if p5: C("v_mov_b32 v18, v1\nv_add_u32 v19, %d, v1" % rts)
    else: C("v_lshl_add_u32 v7, v3, 8, v10\nv_add_u32 v18, s37, v7\nv_add_u32 v19, s38, v7")
    C("s_lshl_b32 s37, s31, 12")
    for i in range(4): C("v_add_u32 v%d, %d, v1\nv_add_u32 v%d, s37, v%d" % (20+i, SLOT*i, 12+i, 20+i))
    C("s_add_u32 s34, s34, 0x%x" % ((LAYER_STRIDE + WS_XA - WS_XB) if p5 else (WS_XB - WS_XA)))
    C("s_lshl_b32 s39, s30, 10\ns_add_u32 s39, s39, s%d\ns_lshl_b32 s42, s24, 7\ns_add_u32 s39, s39, s42\ns_add_u32 s39, s39, 0x%x" % (sLB, LAYER_STRIDE + WS_STA if p5 else WS_STB))
    C("v_cmp_eq_u32 vcc, 0, v3\nv_mov_b32 v11, 0x3f803f80\ns_lshr_b32 s44, s23, 1\nv_cndmask_b32 v10, v6, v10, vcc")
    if p5:
        C("s_cmp_eq_u32 s%d, 0\ns_cbranch_scc1 L_p5_nf" % sLAY)
        C("v_mul_u32_u24 v8, 1152, v2\ns_mul_i32 s34, s30, %d\ns_mul_i32 s42, s24, 144\ns_add_u32 s34, s34, s42" % (16*1152))
        if o.get("fperm", 1):
            C("v_lshrrev_b32 v4, 6, v1\nv_bfe_u32 v5, v1, 4, 2\nv_lshlrev_b32 v10, 2, v4\nv_lshl_add_u32 v10, v5, 6, v10\nv_mul_u32_u24 v8, 1152, v4")
            C("v_lshrrev_b32 v11, 1, v5\nv_cmp_eq_u32 vcc, s31, v11\nv_lshl_add_u32 v4, v5, 4, v8\nv_and_b32 v5, 1, v5\nv_lshl_add_u32 v5, v5, 3, v8\nv_cndmask_b32 v5, v6, v5, vcc")
        else: C("v_lshl_add_u32 v4, v3, 4, v8\nv_lshl_add_u32 v5, v9, 3, v8\nv_cndmask_b32 v5, v6, v5, s[40:41]")
        C.lab("L_p5_nf")
    flag_addr(C, POL, F_P4 if p5 else F_P1, 44)
    def mid():
        C("s_mul_i32 s37, s%d, 4608\ns_add_u32 s37, s37, %d\ns_xor_b32 s38, s%d, 1\ns_mul_i32 s42, s38, 4608\ns_add_u32 s42, s42, %d" % (sW, EX, sW, EX))
        C("v_and_b32 v0, 0x1ff, v1\nv_add_u32 v2, s37, v1\nv_add_u32 v3, s37, v0\nv_add_u32 v7, s42, v1\nv_add_u32 v8, s42, v0")
        C("s_lshl_b32 s37, s%d, 2\ns_add_u32 s37, s37, %d\ns_xor_b32 s38, s37, 4\nv_mov_b32 v0, s37\nv_mov_b32 v6, s38" % (sW, L_PF))
        C("s_lshl_b32 s43, s%d, 1\ns_add_u32 s43, s43, %d\nv_mov_b32 v9, s43" % (sLAY, 2 if p5 else 1))
    sp = p5 and o.get("split5", 0)
    edge(C, "d%d" % kind, [POL], o, diag, mid, keep=3 + (9 - 2*sp if sp else 0)); C.vm = ["res"]*3
    def act_loads(tau):
        o_ = hoist_sel(C, 32, tau, 8, 25, tau < 8 and ho) + ["s_lshl_b32 s32, s32, 13", "s_add_u32 s32, s32, s29", "s_add_u32 s33, s32, 4096"]
        lds_ = []
        for pp in range(ppst(tau)):
            for st in range(2):
                d = AW + ((tau % 3)*8 + 2*pp + st)*4
                if tau + 1 < nst or p5: lds_.append(("buffer_load_dwordx4 %s, v%d, %s, s%d offen offset:%d %s" % (vr(d), (16 if tau + 1 < nst else 18)+st, WS, 32 + pp//2, (pp % 2)*2048, ld), ("a", tau, pp)))
                else:
                    for e in range(2): lds_.append(("buffer_load_dwordx2 %s, v%d, %s, s%d offen offset:%d %s" % (vr(d+2*e, 2), 18+st, WS, 32 + pp//2, (pp % 2)*2048 + e*(512 if p5 else 128), ld), ("a", tau, pp)))
        return o_, lds_
    def emit_act(tau):
        a, b = act_loads(tau)
        C("\n".join(a))
        for s, t in b: C(s); C.issue(t)
    def reads(gp):
        b = WF + (gp % 3)*20
        if p5: sl, off = (50 + gp//4) % 4, (gp % 4)*9216
        else: sl, off = (gp >> 1, ROWH + (gp & 1)*9216) if gp < 8 else (3, SLOT)
        return ["ds_read_b128 %s, v%d offset:%d" % (vr(b+4*j), 12 + sl, off + j*1024) for j in range(4)] + ["ds_read_b128 %s, v%d offset:%d" % (vr(b+16), 20 + sl, off + 8192)]
    C("s_barrier")
    stamp(C, diag, uid+"Y")
    emit_act(0)
    for s in reads(0) + reads(1): C(s)
    pend = []
    if p5 and o.get("p5lazy", 1):
        C("s_add_u32 s45, s29, 8192\ns_add_u32 s46, s29, 12288")
        pend = [(x.replace("s32", "s45").replace("s33", "s46"), y) for x, y in act_loads(1)[1]]
        for _ in range(o.get("p5n0", 2)): x, y = pend.pop(0); C(x); C.issue(y)
    else: emit_act(1)
    if not p5:
        emit_act(2)
        C("s_lshl_b32 s42, s23, 3\ns_add_u32 s42, s42, s24\ns_lshl_b32 s42, s42, 2\ns_add_u32 s42, s42, s%d\ns_lshl_b32 s42, s42, 8\ns_add_u32 s42, s42, s%d\ns_add_u32 s42, s42, 0x%x" % (sW, sLB, WS_ZS))
        C("v_mov_b32 v%d, -1.0\nv_lshrrev_b32 v%d, 2, v1\nbuffer_store_dword v%d, v%d, %s, s42 offen sc1" % (T, T+1, T, T+1, WS)); C.issue("zi")
    flag_addr(C, SIG, F_P5 if p5 else F_P2, 44)
    C("s_waitcnt vmcnt(%d)" % C.vmn("res"))
    if sp: C("s_barrier")
    for i in range(10):
        C("v_lshlrev_b32 v%d, 16, v%d\nv_and_b32 v%d, 0xffff0000, v%d" % (ACC+2*i, RR+i, ACC+2*i+1, RR+i))
    stamp(C, diag, uid+"iss")
    nl = 1
    xw = ["ds_write_b128 v2, %s offset:%d" % (vr(ACC+20+4*a), 1024*a) for a in range(4)]
    for gp in range(npair):
        tau, pp = gp // 4, gp % 4; b = WF + (gp % 3)*20; aw = AW + ((tau % 3)*8 + 2*pp)*4
        if nl == 2 and gp == npair - 2:
            C("s_waitcnt vmcnt(%d) lgkmcnt(5)" % C.vmn(("a", tau, pp)))
            b2 = WF + ((gp+1) % 3)*20
            for a in range(5): C(mfma(ACC + 20 + 4*a, b + 4*a, aw + 4))
            C("s_waitcnt vmcnt(%d) lgkmcnt(0)" % C.vmn(("a", tau, pp+1)))
            for a in range(5): C(mfma(ACC + 20 + 4*a, b2 + 4*a, aw + 12))
            mm = [mfma(ACC + 4*a, b + 4*a, aw) for a in range(5)] + [mfma(ACC + 4*a, b2 + 4*a, aw + 8) for a in range(5)]
            for s in interleave(mm, [(3 + i + i//2, x) for i, x in enumerate(xw)]): C(s)
            xw = []
            break
        order = [(a, st) for a in range(5) for st in (1, 0)] if gp + 1 < npair else [(a, st) for st in (1, 0) for a in range(5)]
        mm = [mfma(ACC + 20*st + 4*a, b + 4*a, aw + 4*st, 'z' if (gp == 0 and st == 1) else None) for a, st in order]
        newstage = p5 and gp + 2 < npair and (gp + 2) % 4 == 0
        n = C.vmn(("a", tau, pp))
        if newstage: ex = [(-1, "s_waitcnt vmcnt(%d) lgkmcnt(0)" % n), (-1, "s_barrier")]
        else: ex = [(-1, "s_waitcnt vmcnt(%d) lgkmcnt(%d)" % (n, 5 if gp + 1 < npair else 0))]
        if gp + 2 < npair:
            for i, s in enumerate(reads(gp+2)): ex.append((i, s))
        if p5 and 31 <= gp < 35:
            a2 = AW + (2*8 + 2*(gp-31))*4
            ex += [(5, "s_waitcnt vmcnt(%d)" % C.vmn(("a", 8, gp-31))), (6, "v_swap_b32 v%d, v%d" % (a2+2, a2+4)), (7, "v_swap_b32 v%d, v%d" % (a2+3, a2+5))]
        for pos in (1, 3):
            if pend: x, y = pend.pop(0); ex.append((pos, x)); C.issue(y)
        if p5 and tau + 2 < nst:
            a, bl = act_loads(tau + 2)
            if pp == 0:
                for s in a: ex.append((0, s))
            m_ = len(bl)//4
            for i, (s, t) in enumerate(bl[m_*pp:m_*pp+m_]): ex.append((5 + (4//m_)*i, s)); C.issue(t)
        for s in interleave(mm, ex): C(s)
        stamp(C, diag, uid+"g%d" % gp)
    stamp(C, diag, uid+"gemm")
    for s in xw: C(s)
    xb = o.get("xbar", 0)
    C("s_mov_b64 exec, s[40:41]\nds_write_b128 v3, %s offset:4096\ns_mov_b64 exec, -1" % vr(ACC+36))
    if xb: C("s_waitcnt lgkmcnt(0)\ns_barrier")
    else:
        C("ds_write_b32 v0, v9\ns_mov_b32 s60, %d" % (SPIN*16))
        C.lab("L_px_" + uid)
        C("ds_read_b32 v%d, v6" % T)
    for a in range(4): C("ds_read_b128 %s, v7 offset:%d" % (vr(WF+4*a), 1024*a))
    C("ds_read_b128 %s, v8 offset:4096" % vr(WF+16))
    if not xb: C("s_waitcnt lgkmcnt(5)\nv_cmp_ne_u32 vcc, s43, v%d\ns_sub_u32 s60, s60, 1\ns_cbranch_scc1 L_py_%s\ns_cbranch_vccnz L_px_%s" % (T, uid, uid))
    C.lab("L_py_" + uid)
    for a in range(5):
        C("s_waitcnt lgkmcnt(%d)" % (4-a))
        for p in range(2): C("v_pk_add_f32 %s, %s, %s" % (vr(ACC+4*a+2*p, 2), vr(ACC+4*a+2*p, 2), vr(WF+4*a+2*p, 2)))
        for p in range(2): C("v_cvt_pk_bf16_f32 v%d, v%d, v%d" % (RR+2*a+p, ACC+4*a+2*p, ACC+4*a+2*p+1))
    lab = "L_fin_" + uid
    if p5: C("s_cmp_eq_u32 s%d, 1\ns_cbranch_scc1 %s" % (sLAY, lab))
    for p in range(2): C("buffer_store_dwordx4 %s, v4, %s, s34 offen offset:%d %s" % (vr(RR+4*p), WS, 1024*p, stf))
    C("buffer_store_dwordx2 %s, v5, %s, s34 offen %s" % (vr(RR+8, 2), WS, stf))
    C("v_cndmask_b32 v%d, 0, v%d, s[40:41]\nv_cndmask_b32 v%d, 0, v%d, s[40:41]" % (T+2, RR+8, T+3, RR+9))
    for i in range(10):
        r_ = RR+i if i < 8 else T+2+(i-8)
        C("v_dot2_f32_bf16 v%d, v%d, v11, %s\nv_dot2_f32_bf16 v%d, v%d, v%d, %s" % (T, r_, "v%d" % T if i else "0", T+1, r_, r_, "v%d" % (T+1) if i else "0"))
    C("s_nop 2")
    xsum_q_multi(C, [T, T+1], [T+2, T+3])
    C("buffer_store_dwordx2 %s, v10, %s, s39 offen %s" % (vr(T, 2), WS, stf))
    stamp(C, diag, uid+"end")
    if p5:
        C = Stream()
        C.lab(lab)
        if o.get("fperm", 1):
            for i in range(10): C("ds_bpermute_b32 v%d, v10, v%d" % (RR+i, RR+i))
        for p in range(2): C("s_waitcnt lgkmcnt(%d)\nbuffer_store_dwordx4 %s, v4, %s, s34 offen offset:%d %s" % (6 - 4*p, vr(RR+4*p), OUT, 64*p, o.get("stout", "")))
        C("s_waitcnt lgkmcnt(0)")
        C("buffer_store_dwordx2 %s, v5, %s, s34 offen offset:128 %s" % (vr(RR+8, 2), OUT, o.get("stout", "")))
        stamp(C, diag, uid+"end")
        return C
def proj1(C, kind, o, diag=None):
    assert kind == 2
    p5 = kind == 5
    uid = "p%d" % kind
    npair = 36 if p5 else 9
    nst = 9 if p5 else 3
    ppst = lambda n: 4 if (p5 or n < 2) else 1
    ACT, RES = (WS_H, WS_XB) if p5 else (WS_O, WS_XA)
    rts = 73728 if p5 else 18432
    ld = o.get("ld", ""); stf = o.get("st", "")
    ho = p5 and o.get("hoist5", 0)
    ACC = 16; WF = 40; AW = 112; RR = 208; T = 220
    if p5 and "R" in p5sched(o): C("s_barrier")
    proj_coords(C, o)
    C("s_lshl_b32 s30, s23, 2\ns_add_u32 s30, s30, s%d" % sW)
    C("s_mul_i32 s29, s30, %d\ns_add_u32 s29, s29, s%d\ns_add_u32 s29, s29, 0x%x" % (rts, sLB, ACT))
    C("s_mul_i32 s34, s30, 18432\ns_add_u32 s34, s34, s%d\ns_add_u32 s34, s34, 0x%x" % (sLB, RES))
    C("s_lshl_b32 s35, s24, 11")
    C("s_lshr_b32 s36, s24, 2\ns_lshl_b32 s36, s36, 10\ns_and_b32 s37, s24, 3\ns_lshl_b32 s37, s37, 8\ns_add_u32 s36, s36, s37\ns_add_u32 s36, s36, 16384")
    C(vR(2)); C(vQ(3))
    C("v_add_u32 v4, s35, v1")
    C("v_lshlrev_b32 v5, 4, v2\nv_lshl_add_u32 v5, v3, 3, v5\nv_add_u32 v5, s36, v5")
    C("v_cmp_gt_u32 s[40:41], 2, v3\nv_bfrev_b32 v6, 1")
    for i in range(4): C("v_add_u32 v%d, %d, v1" % (12+i, SLOT*i))
    C("v_cndmask_b32 v5, v6, v5, s[40:41]")
    for p in range(2): C("buffer_load_dwordx4 %s, v4, %s, s34 offen offset:%d %s" % (vr(RR+4*p), WS, 1024*p, ld))
    C("buffer_load_dwordx2 %s, v5, %s, s34 offen %s" % (vr(RR+8, 2), WS, ld))
    C("s_add_u32 s34, s34, 0x%x" % ((LAYER_STRIDE + WS_XA - WS_XB) if p5 else (WS_XB - WS_XA)))
    C("s_lshl_b32 s39, s30, 10\ns_add_u32 s39, s39, s%d\ns_lshl_b32 s42, s24, 7\ns_add_u32 s39, s39, s42\ns_add_u32 s39, s39, 0x%x" % (sLB, LAYER_STRIDE + WS_STA if p5 else WS_STB))
    C("v_cmp_eq_u32 vcc, 0, v3\nv_lshlrev_b32 v10, 3, v2\nv_mov_b32 v11, 0x3f803f80")
    if p5: C("v_lshrrev_b32 v7, 1, v1")
    else: C("v_lshl_add_u32 v7, v3, 8, v10")
    C("v_cndmask_b32 v10, v6, v10, vcc")
    if p5:
        C("s_cmp_eq_u32 s%d, 0\ns_cbranch_scc1 L_p5_nf" % sLAY)
        C("v_mul_u32_u24 v9, 1152, v2\ns_mul_i32 s34, s30, %d\ns_mul_i32 s42, s24, 144\ns_add_u32 s34, s34, s42" % (16*1152))
        C("v_lshl_add_u32 v4, v3, 4, v9\nv_lshl_add_u32 v5, v3, 3, v9\nv_cndmask_b32 v5, v6, v5, s[40:41]")
        C.lab("L_p5_nf")
    C("s_lshr_b32 s44, s23, 1")
    flag_addr(C, POL, F_P4 if p5 else F_P1, 44)
    def mid():
        for i in range(10):
            C("v_lshlrev_b32 v%d, 16, v%d\nv_and_b32 v%d, 0xffff0000, v%d" % (ACC+2*i, RR+i, ACC+2*i+1, RR+i))
    rl = o.get("reslate", 1); sp = p5 and o.get("split5", 0)
    edge(C, "d%d" % kind, [POL], o, diag, None if rl else mid, keep=(3 if rl else 0) + (10 - 2*sp if sp else 0))
    if rl: C.vm = ["res"]*3
    def act_loads(tau):
        o_ = hoist_sel(C, 32, tau, 8, 25, tau < 8 and ho) + ["s_lshl_b32 s32, s32, 13", "s_add_u32 s32, s32, s29", "s_add_u32 s33, s32, 4096"]
        lds_ = []
        for j in range(2*ppst(tau)):
            d = AW + ((tau % 3)*8 + j)*4
            if tau + 1 < nst: lds_.append(("buffer_load_dwordx4 %s, v1, %s, s%d offen offset:%d %s" % (vr(d), WS, 32 + j//4, (j % 4)*1024, ld), ("a", tau, j//2)))
            else:
                for e in range(2): lds_.append(("buffer_load_dwordx2 %s, v7, %s, s%d offen offset:%d %s" % (vr(d+2*e, 2), WS, 32 + j//4, (j % 4)*1024 + e*(512 if p5 else 128), ld), ("a", tau, j//2)))
        return o_, lds_
    def emit_act(tau):
        a, b = act_loads(tau)
        C("\n".join(a))
        for s, t in b: C(s); C.issue(t)
    def reads(gp):
        b = WF + (gp % 2)*36
        if p5: sl, off = (50 + gp//4) % 4, (gp % 4)*9216
        else: sl, off = (gp >> 1, ROWH + (gp & 1)*9216) if gp < 8 else (3, SLOT)
        return ["ds_read_b128 %s, v%d offset:%d" % (vr(b+4*j), 12 + sl, off + j*1024) for j in (0,1,2,3,8,4,5,6,7)]
    C("s_barrier")
    stamp(C, diag, uid+"Y")
    emit_act(0)
    for s in reads(0): C(s)
    lazy = (not p5) and o.get("p2lazy", 1)
    if not lazy: emit_act(1)
    pend = []
    if not p5:
        if lazy:
            C("s_add_u32 s45, s29, 8192\ns_add_u32 s46, s29, 12288\ns_add_u32 s47, s29, 16384")
            pend = [(x.replace("s32", "s45").replace("s33", "s46"), y) for x, y in act_loads(1)[1]] + [(x.replace("s32", "s47"), y) for x, y in act_loads(2)[1]]
            for _ in range(o.get("p2n0", 2)): x, y = pend.pop(0); C(x); C.issue(y)
        else: emit_act(2)
        C("s_lshl_b32 s42, s23, 3\ns_add_u32 s42, s42, s24\ns_lshl_b32 s42, s42, 2\ns_add_u32 s42, s42, s%d\ns_lshl_b32 s42, s42, 8\ns_add_u32 s42, s42, s%d\ns_add_u32 s42, s42, 0x%x" % (sW, sLB, WS_ZS))
        C("v_mov_b32 v%d, -1.0\nv_lshrrev_b32 v%d, 2, v1\nbuffer_store_dword v%d, v%d, %s, s42 offen sc1" % (T, T+1, T, T+1, WS)); C.issue("zi")
    flag_addr(C, SIG, F_P5 if p5 else F_P2, 44)
    if rl:
        C("s_waitcnt vmcnt(%d)" % C.vmn("res"))
        if sp: C("s_barrier")
        mid()
    stamp(C, diag, uid+"iss")
    for gp in range(npair):
        tau, pp = gp // 4, gp % 4; b = WF + (gp % 2)*36; aw = AW + ((tau % 3)*8 + 2*pp)*4
        mm = []
        for e in range(2):
            for a in range(4): mm.append(mfma(ACC+4*a, b+16*e+4*a, aw+4*e))
            mm.append(mfma(ACC+16+4*e, b+32, aw+4*e, 'z' if (gp == 0 and e == 1) else None))
        ex = []
        newstage = p5 and gp + 1 < npair and (gp + 1) % 4 == 0
        n = C.vmn(("a", tau, pp))
        if newstage: ex += [(-1, "s_waitcnt vmcnt(%d) lgkmcnt(0)" % n), (-1, "s_barrier")]
        else: ex += [(-1, "s_waitcnt vmcnt(%d) lgkmcnt(4)" % n)]
        if gp + 1 < npair:
            for i, s in enumerate(reads(gp+1)): ex.append((i, s))
            if not newstage: ex.append((4, "s_waitcnt lgkmcnt(5)"))
        else: ex.append((4, "s_waitcnt lgkmcnt(0)"))
        for pos in (1, 4, 7):
            if pend: x, y = pend.pop(0); ex.append((pos, x)); C.issue(y)
        if p5 and tau + 2 < nst:
            a, bl = act_loads(tau + 2)
            if pp == 0:
                for s in a: ex.append((0, s))
            m_ = len(bl)//4
            for i, (s, t) in enumerate(bl[m_*pp:m_*pp+m_]): ex.append((2 + (8//m_)*i, s)); C.issue(t)
        for s in interleave(mm, ex): C(s)
        stamp(C, diag, uid+"g%d" % gp)
    stamp(C, diag, uid+"gemm")
    C("s_nop 3")
    for i in range(8): C("v_cvt_pk_bf16_f32 v%d, v%d, v%d" % (RR+i, ACC+2*i, ACC+2*i+1))
    lab = "L_fin_" + uid
    def half():
        for j in range(4): C("v_permlane32_swap_b32 v%d, v%d" % (ACC+20+j, T+j))
        C("v_pk_add_f32 %s, %s, %s\nv_pk_add_f32 %s, %s, %s" % (vr(ACC+16,2), vr(ACC+16,2), vr(T,2), vr(ACC+18,2), vr(ACC+18,2), vr(T+2,2)))
        for i in (8, 9): C("v_cvt_pk_bf16_f32 v%d, v%d, v%d" % (RR+i, ACC+2*i, ACC+2*i+1))
    if p5: C("s_cmp_eq_u32 s%d, 1\ns_cbranch_scc1 %s" % (sLAY, lab))
    for p in range(2): C("buffer_store_dwordx4 %s, v4, %s, s34 offen offset:%d %s" % (vr(RR+4*p), WS, 1024*p, stf))
    half()
    C("buffer_store_dwordx2 %s, v5, %s, s34 offen %s" % (vr(RR+8, 2), WS, stf))
    stamp(C, diag, uid+"e1")
    C("v_cndmask_b32 v%d, 0, v%d, s[40:41]\nv_cndmask_b32 v%d, 0, v%d, s[40:41]" % (T+2, RR+8, T+3, RR+9))
    nd_ = o.get("ndot", 2)
    for i in range(10):
        r_ = RR+i if i < 8 else T+2+(i-8); d = T + 4*(i % nd_)
        C("v_dot2_f32_bf16 v%d, v%d, v11, %s\nv_dot2_f32_bf16 v%d, v%d, v%d, %s" % (d, r_, "v%d" % d if i >= nd_ else "0", d+1, r_, r_, "v%d" % (d+1) if i >= nd_ else "0"))
    C("s_nop 2")
    if nd_ == 2: C("v_pk_add_f32 %s, %s, %s" % (vr(T, 2), vr(T, 2), vr(T+4, 2)))
    stamp(C, diag, uid+"e2")
    xsum_q_multi(C, [T, T+1], [T+2, T+3])
    C("buffer_store_dwordx2 %s, v10, %s, s39 offen %s" % (vr(T, 2), WS, stf))
    stamp(C, diag, uid+"end")
    if p5:
        fin = Stream(); Cs = C; C = fin
        C.lab(lab)
        for p in range(2): C("buffer_store_dwordx4 %s, v4, %s, s34 offen offset:%d %s" % (vr(RR+4*p), OUT, 64*p, o.get("stout", "")))
        half()
        C("buffer_store_dwordx2 %s, v5, %s, s34 offen offset:128 %s" % (vr(RR+8, 2), OUT, o.get("stout", "")))
        stamp(C, diag, uid+"end")
        return fin
```

```python
import sys
from ph_prep import *
from ph_proj import *
from ph_attn import *
from ph_gmlp import *
HEADER = """; Generated by dev/gen.py (hand-written generator): LN+local attention / LN+gMLP x2 on gfx950.
; kernarg: x, wqkv, wo, (B_x unused), w_in, w_sp, b_sp, w_out, out, debug, ws"""
def mega(o={}, diag=None, name="mega_kernel"):
    o = dict(dict(ld="sc1", st="sc1", p1R=[7, 2]), **o)
    assert o.get("amap", 1) == o.get("pmap", 1) or o.get("unsafe")
    k = Kern(name, 256, 512, lds=163840, vgpr=256)
    k("s_cmp_ge_u32 s2, 256\ns_cbranch_scc1 L_end_m")
    stamp(k, diag, "start")
    k("s_load_dwordx16 s[36:51], s[0:1], 0\ns_load_dwordx4 s[56:59], s[0:1], %d\ns_load_dwordx2 s[24:25], s[0:1], %d" % (KA_OUT, KA_WS))
    if o.get("codepf", 1):
        k("s_getpc_b64 s[26:27]")
        k.lab("L_m_pc")
        k("s_sub_u32 s26, s26, L_m_pc-%s\ns_subb_u32 s27, s27, 0\nv_lshlrev_b32 v4, 4, v0\nv_mov_b32 v5, s27" % name)
        k("v_add_co_u32 v6, vcc, s26, v4\ns_lshr_b32 s28, s2, 3\ns_lshl_b32 s28, s28, 11\nv_addc_co_u32 v7, vcc, 0, v5, vcc")
        k("global_load_dwordx4 v[60:63], v[6:7], off")
        k("v_lshl_add_u32 v4, v0, 2, s28\nv_min_u32 v4, L_end_m-%s-4, v4" % name)
        k("v_add_co_u32 v6, vcc, s26, v4\ns_nop 1\nv_addc_co_u32 v7, vcc, 0, v5, vcc")
        k("global_load_dword v64, v[6:7], off")
    k("v_lshrrev_b32 v2, 6, v0\nv_and_b32 v1, 63, v0\nv_lshlrev_b32 v1, 4, v1\nv_readfirstlane_b32 s23, v2")
    k("s_mov_b32 s%d, 0\ns_mov_b32 s%d, 0\ns_and_b32 s%d, s23, 3" % (sLAY, sLB, sW))
    k("s_waitcnt lgkmcnt(0)")
    srd(k, 4, 24, WS_BYTES)
    k("s_cmp_ge_u32 s23, 4\ns_cbranch_scc1 L_ld_m")
    C, L = Stream(), Stream()
    def flush(st, slot, uid):
        if diag and (st is not L or any(x.startswith("L") for x in diag)):
            st("s_add_u32 s61, s%d, %d" % (sLAY, slot)); stamp_flush(st, diag, 61, uid, vt=16, wait=(st is L))
    nextlayer = "s_mov_b32 s%d, 1\ns_mov_b32 s%d, 0x%x" % (sLAY, sLB, LAYER_STRIDE)
    if o.get("cp", 0): C("s_setprio %d" % o["cp"])
    prep_C(C, o, diag)
    srd(C, 16, 56, 2048*1152)
    C("s_branch L_m_cl"); nC0 = len(C.L)
    C.lab("L_m_cl")
    attn(C, o, diag, prep_signal); n1 = C.nbar
    (proj if o.get('p2x', 0) else proj1)(C, 2, o, diag); gmlp(C, o, diag)
    fin = (proj if o.get('p5x', 1) else proj1)(C, 5, o, diag)
    stamp(C, diag, "drain"); flush(C, 0, "c0"); stamp(C, diag, "start")
    if o.get("p1R"): C("s_barrier"); C.nbar -= 1
    C(nextlayer + "\ns_branch L_m_cl")
    if diag: fin("s_waitcnt vmcnt(0)"); stamp(fin, diag, "drain"); flush(fin, 0, "c1")
    fin("s_endpgm")
    if o.get("lp", 0): L("s_setprio %d" % o.get("lp", 0))
    zero_counters(L)
    srd(L, 8, 46, 2048*4096); srd(L, 12, 48, 4096)
    L("v_mov_b32 v2, %d\nv_mov_b32 v4, 0\nv_mov_b32 v5, 0\nds_write2_b64 v2, v[4:5], v[4:5] offset0:0 offset1:1\ns_waitcnt lgkmcnt(0)" % L_PF)
    a0 = P1L(L, o)
    if o.get("p0y", 0) == 2:
        a0.setup(0); L("s_barrier\n"*6); a0.issue(a0.need(0)); L("s_waitcnt vmcnt(63)")
    prep_L(L, o, diag)
    L("s_branch L_m_l1"); nL0 = len(L.L); L.lab("L_m_l1")
    a0.setup(0); a0.main(lambda us: prep_L_store(L, o, us), (lambda: prep_L_tr(L)) if o.get('p0late', 1) else None); assert L.nbar == n1
    L.lab("L_m_ll"); L.vm = []
    p3, p5, a1 = P3L(L, o), P5L(L, o), P1L(L, o)
    p2_loader(L, o, diag, p3.pre)
    p3.main(diag, p5)
    sched = o.get("p1pre", {8: [0, 1]})
    def tail(m):
        if m == 6: a1.setup(1)
        if sched.get(m):
            assert not any(t[0] == "w" for t in L.vm)
            L("s_cmp_eq_u32 s%d, 1\ns_cbranch_scc1 L_m_t%d" % (sLAY, m))
            a1.issue([("g", g) for g in sched[m]])
            L.lab("L_m_t%d" % m)
    p5.main(diag, tail)
    L("s_cmp_eq_u32 s%d, 1\ns_cbranch_scc1 L_m_lfin" % sLAY)
    if o.get("xbar", 0): L("s_barrier")
    assert L.nbar == C.nbar, (L.nbar, C.nbar)
    flush(L, 2, "l0")
    if o.get("p1R"): L("s_barrier"); a1.issue([("g", g) for g in o["p1R"]])
    L(nextlayer + "\ns_barrier\ns_barrier")
    a1.issue([t for t in [("g", g) for g in range(8)] + ["cs"] if t not in o.get("p1post", [("g", 6)])])
    stamp(L, diag, "Lp1pre")
    a1.main()
    L("s_branch L_m_ll")
    L.lab("L_m_lfin")
    flush(L, 2, "l1")
    if o.get("jit"):
        role, wv, n, before, wgm = o["jit"]; cnt = [0]
        def jit(lines):
            out = []
            for l in lines:
                j = []
                if l.strip() == "s_barrier":
                    cnt[0] += 1; lab = "L_jit_%d" % cnt[0]
                    if wv is not None: j += ["    s_cmp_lg_u32 s%d, %d" % (sW, wv), "    s_cbranch_scc1 " + lab]
                    if wgm: j += ["    s_and_b32 s101, s2, %d" % wgm, "    s_cbranch_scc1 " + lab]
                    j += ["    s_sleep %d" % n, lab + ":"]
                out += (j + [l]) if before else ([l] + j)
            return out
        st, n0 = (C, nC0) if role == "C" else (L, nL0)
        a_, b_ = jit(st.L[:n0]), jit(st.L[n0:]); st.L = a_ + b_
        if role == "C": nC0 = len(a_)
        else: nL0 = len(a_)
    k.L += C.L[:nC0] + C.tail0
    k.lab("L_ld_m"); k.L += L.L[:nL0]
    k.L += C.L[nC0:] + fin.L + C.tail + L.L[nL0:]
    k.lab("L_end_m"); k("s_endpgm")
    if o.get("allsc1", 1):
        import re
        k.L = [re.sub(r"( lds)?\s*$", lambda m: " sc1" + (m.group(1) or ""), l, count=1) if ("buffer_load" in l and WS in l and "sc1" not in l) else l for l in k.L]
    return [k]
if __name__ == "__main__":
    out = sys.argv[1] if len(sys.argv) > 1 else "mega.s"
    o = eval(sys.argv[2]) if len(sys.argv) > 2 else {}
    NAME = "interleave_layers__sliding_local_dilated__mixer_gmlp__prompt_kernel"
    txt = build(mega(o, name=NAME, diag=o.get('diag', '').split() or None), HEADER)
    if not o.get("list"): txt = txt.replace("; @launch kernel=%s " % NAME, "; @launch ")
    open(out, "w").write(txt)
```

```python
from ph_sync import *
from ph_attn import row_stats
import math
L_CS3, L_SC3 = 159744, TOP
def gmlp_coords(k, o):
    k("s_and_b32 s25, s2, 7\ns_lshr_b32 s26, s2, 3")
    a, b = (23, 24) if o.get("gmap", 0) == 0 else (24, 23)
    k("s_and_b32 s%d, s25, 1\ns_lshl_b32 s%d, s%d, 3\ns_and_b32 s27, s26, 7\ns_add_u32 s%d, s%d, s27" % (a, a, a, a, a))
    k("s_lshr_b32 s%d, s25, 1\ns_lshl_b32 s%d, s%d, 2\ns_lshr_b32 s27, s26, 3\ns_add_u32 s%d, s%d, s27" % (b, b, b, b, b))
    k("s_add_u32 s28, s23, s24\ns_and_b32 s28, s28, 3")
class P3L:
    def __init__(s, L, o): s.L = L; s.o = o
    def col(s, sg, sn, base, add, fl):
        L = s.L; sl = sg % 4
        L("s_mul_i32 s50, s%d, 18432\ns_add_u32 s50, s50, s%d" % (sn, base))
        if add: L("s_add_u32 s50, s50, %d" % add)
        if sg % 2 == 1:
            L("s_cmp_ge_u32 s%d, 2\ns_cselect_b32 s52, s50, s53\ns_add_u32 m0, s31, %d\ns_add_u32 s52, s52, s49" % (sW, (sl-1)*SLOT))
            L("buffer_load_dwordx4 v1, %s, s52 offen %s lds" % (WS, fl)); L.issue(("f", sg))
        L("s_add_u32 m0, s30, %d\ns_mov_b32 s53, s50" % (sl*SLOT))
        for j in range(4): L("buffer_load_dwordx4 v1, %s, s50 offen offset:%d %s lds" % (WS, 1024*j, fl)); L.issue(("c", sg))
    def col3(s, sg):
        s.L("s_mov_b32 s48, %d" % s.ks(sg)); s.col(sg, 48, 34, (sg // 9)*9*18432, "")
    def op3(s, t):
        L = s.L
        if t == "R": return s.rec_load()
        if t == "S": return s.rec_stats()
        sg = int(t[1:]); off = lambda g: (9*(g // 9) + s.ks(g))*18432
        if t[0] == "r": return s.row3(sg)
        if t[0] == "f":
            L("s_cmp_ge_u32 s%d, 2\ns_mov_b32 s52, %d\ns_cselect_b32 s52, %d, s52\ns_add_u32 s52, s52, s34\ns_add_u32 m0, s31, %d\ns_add_u32 s52, s52, s49" % (sW, off(sg-1), off(sg), (sg % 4 - 1)*SLOT))
            L("buffer_load_dwordx4 v1, %s, s52 offen lds" % WS); L.issue(("f", sg))
        else:
            L("s_add_u32 m0, s30, %d\ns_add_u32 s50, s34, %d" % ((sg % 4)*SLOT, off(sg)))
            for j in range(4): L("buffer_load_dwordx4 v1, %s, s50 offen offset:%d lds" % (WS, 1024*j)); L.issue(("c", sg))
    def ks(s, sg):
        return sg if sg < 9 else ((sg - 4) % 9 if s.o.get("xkeep", 1) else sg - 9)
    def xsave(s, m):
        if s.o.get("xkeep", 1) == 2 and m < 5:
            for j in range(4): s.L("ds_read_b128 %s, v%d offset:%d" % (vr(100 + 16*m + 4*j), 6 + (m % 4)//2, (m % 2)*SLOT + 1024*j))
    def row3(s, sg):
        L = s.L
        xk = s.o.get("xkeep", 1)
        if xk and 9 <= sg < 13: return
        if xk == 2 and sg >= 13:
            for j in range(4): L("ds_write_b128 v%d, %s offset:%d" % (6 + (sg % 4)//2, vr(100 + 16*(sg-13) + 4*j), (sg % 2)*SLOT + 1024*j))
            return
        L("s_add_u32 m0, s30, %d\ns_add_u32 s51, s35, %d" % (ROWH + (sg % 4)*SLOT, 2048*s.ks(sg)))
        for j in range(4): L("buffer_load_dwordx4 v%d, %s, s51 offen offset:%d %s lds" % (1 + j//2, WS, 1024*j, s.o.get("ld", ""))); L.issue(("r", sg))
    def idx4(s, sg):
        sn = 44 + (sg - 18) % 4
        if not s.o.get("own", 3): return sn
        if sg < 20: s.L("s_lshl_b32 s48, s23, 1\ns_add_u32 s48, s48, %d" % (sg - 18))
        else: s.L("s_lshr_b32 s48, s%d, 1\ns_cmp_eq_u32 s48, s23\ns_cselect_b32 s48, 1, 31\ns_and_b32 s48, s48, s%d" % (sn, sn))
        return 48
    def col4(s, sg): s.col(sg, s.idx4(sg), 36, 0, s.o.get("ld", ""))
    def row4(s, sg):
        L = s.L
        if sg in s.o.get("rowskip", ()):
            for j in range(4): L("buffer_load_dword v35, v34, %s, 0 offen" % BSP); L.issue(("r", sg))
            if s.o.get("rowsw"):
                for j in range(4): L("ds_write_b128 v6, %s offset:%d" % (vr(40+4*j), 1024*j))
            return
        L("s_add_u32 m0, s30, %d\ns_lshl_b32 s51, s%d, 7" % (ROWH + (sg % 4)*SLOT, s.idx4(sg)))
        for j in range(4): L("buffer_load_dwordx4 v%d, %s, s51 offen offset:%d %s lds" % (8+j, WSP, 1024*j, s.o.get("ldsp", ""))); L.issue(("r", sg))
    def adv4(s, sg):
        sn = 44 + (sg - 18) % 4
        if s.o.get("own", 3) and sn < 46:
            return s.L("s_add_u32 s%d, s%d, 4\ns_cmp_ge_u32 s%d, 32\ns_cselect_b32 s%d, %d, s%d" % (sn, sn, sn, sn, sn - 40, sn))
        s.L("s_add_u32 s%d, s%d, 4\ns_and_b32 s%d, s%d, %d" % (sn, sn, sn, sn, s.o.get("p4mask", 31)))
    def rec_load(s):
        for i in range(4): s.L("buffer_load_dwordx4 %s, v3, %s, s29 offen offset:%d sc1" % (vr(16+4*i), WS, 1024*i)); s.L.issue("rec")
    def rec_stats(s):
        L = s.L
        if s.o.get("lprio", 1): L("s_setprio 2")
        L("s_mov_b32 s60, %d\ns_waitcnt vmcnt(%d)" % (SPIN, L.vmn("rec") if "rec" in L.vm else 63))
        L.lab("L_g_chk")
        L("v_or3_b32 v32, v17, v19, v21\nv_or3_b32 v33, v23, v25, v27\nv_or3_b32 v32, v29, v31, v32\nv_or_b32 v32, v32, v33\nv_cmp_gt_i32 vcc, 0, v32")
        L("s_sub_u32 s60, s60, 1\ns_cbranch_scc1 L_g_ok\ns_cbranch_vccz L_g_ok")
        keep = list(L.vm); s.rec_load(); L.vm = keep
        L("s_waitcnt vmcnt(0)\ns_branch L_g_chk")
        L.lab("L_g_ok")
        for i in range(4): L("v_add_f32 v%d, v%d, v%d\nv_add_f32 v%d, v%d, v%d" % (16+i, 16+i, 20+i, 24+i, 24+i, 28+i))
        for i in range(4): L("v_add_f32 v%d, v%d, v%d" % (16+i, 16+i, 24+i))
        for ctl in ("row_ror:4", "row_ror:8"):
            for i in range(4): L("v_add_f32_dpp v%d, v%d, v%d %s row_mask:0xf bank_mask:0xf" % (16+i, 16+i, 16+i, ctl))
        for i in range(4): L("v_mul_f32 v%d, 0x%x, v%d" % (16+i, f2u(1/2304), 16+i))
        L("v_fma_f32 v17, -v16, v16, v17\nv_fma_f32 v19, -v18, v18, v19\nv_max_f32 v17, 0, v17\nv_max_f32 v19, 0, v19")
        L("v_add_f32 v17, 0x%x, v17\nv_add_f32 v19, 0x%x, v19\nv_rsq_f32 v20, v17\nv_rsq_f32 v21, v19" % (f2u(1e-5), f2u(1e-5)))
        L("v_and_b32 v32, 0xff, v3\ns_lshl_b32 s33, s%d, 8\ns_add_u32 s33, s33, %d\nv_add_u32 v32, s33, v32" % (sW, L_SC3 + 1024))
        L("v_mul_f32 v22, v16, v20\nv_mul_f32 v23, v18, v21\nds_write_b128 v32, v[20:23]")
        if s.o.get("lprio", 1): L("s_setprio 0")
    def pre(s):
        L = s.L; o = s.o
        gmlp_coords(L, o)
        L("s_lshl_b32 s30, s%d, 12" % sW)
        L("s_lshr_b32 s33, s%d, 1\ns_mul_i32 s31, s33, %d\ns_and_b32 s33, s%d, 1\ns_lshl_b32 s33, s33, 10\ns_add_u32 s33, s33, 16384\ns_add_u32 s31, s31, s33\ns_sub_u32 s49, s33, s30" % (sW, SLOT, sW))
        L("s_mul_i32 s34, s24, %d\ns_add_u32 s34, s34, s30\ns_add_u32 s34, s34, 0x%x" % (18*18432, WS_WI))
        L("s_lshl_b32 s35, s23, 3\ns_lshl_b32 s33, s%d, 1\ns_add_u32 s35, s35, s33\ns_mul_i32 s35, s35, 18432\ns_add_u32 s35, s35, s%d\ns_add_u32 s35, s35, 0x%x" % (sW, sLB, WS_XB))
        L("s_mul_i32 s36, s24, %d\ns_add_u32 s36, s36, s30\ns_add_u32 s36, s36, s%d\ns_add_u32 s36, s36, 0x%x" % (64*9216, sLB, WS_Z2))
        L("v_add_u32 v2, %d, v1\ns_add_u32 s33, s30, %d\nv_add_u32 v6, s33, v1\nv_add_u32 v7, %d, v6" % (18432 - 2048, ROWH, 2*SLOT))
        L("s_lshl_b32 s29, s23, 2\ns_add_u32 s29, s29, s%d\ns_lshl_b32 s29, s29, 12\ns_add_u32 s29, s29, s%d\ns_add_u32 s29, s29, 0x%x" % (sW, sLB, WS_ZS))
        L("v_and_b32 v3, 48, v1\nv_lshrrev_b32 v8, 8, v1\nv_lshl_add_u32 v3, v8, 6, v3\nv_bfe_u32 v8, v1, 6, 2\nv_lshl_add_u32 v3, v8, 8, v3")
        L("s_lshl_b32 s33, s23, 7\ns_lshl_b32 s37, s%d, 5\ns_add_u32 s33, s33, s37" % sW)
        L("v_lshrrev_b32 v8, 7, v1\nv_add_u32 v8, s33, v8\nv_lshlrev_b32 v8, 12, v8")
        L("v_lshrrev_b32 v9, 8, v1\nv_bfe_u32 v10, v1, 4, 3\nv_xor_b32 v9, v9, v10\nv_lshl_add_u32 v8, v9, 4, v8")
        L("v_xor_b32 v9, 64, v8\nv_add_u32 v9, %d, v9" % (8*4096 - 1024))
        L("v_add_u32 v10, %d, v8\nv_add_u32 v11, %d, v9" % (16*4096 - 2048, 16*4096 - 2048))
        for m in range(4): L("s_cmp_eq_u32 s28, %d\ns_cselect_b32 s%d, %d, %d" % (m, 44+m, m + 4*o.get("hoist4", 1), m))
        L("s_lshl_b32 s33, s%d, 4\ns_add_u32 s33, s33, s24" % sW)
        flag_addr(L, 54, F_Z2, 33)
        L("s_mov_b32 s33, 0x%x\nv_and_b32 v4, 0xf0, v1\nv_lshlrev_b32 v4, 4, v4" % (WS_FLAG + F_P2*16*256))
        vpoll(L, "wr", WS, "s33", 4, 5, 16)
        L("s_min_u32 s33, s%d, 2\ns_lshl_b32 s33, s33, 9\nv_lshrrev_b32 v4, 1, v1\nv_add_u32 v4, s33, v4\ns_lshl_b32 s51, s24, 12\ns_add_u32 s51, s51, 0x%x" % (sW, WS_CSI))
        for h in range(2): L("buffer_load_dwordx2 %s, v4, %s, s51 offen offset:%d" % (vr(16+2*h, 2), WS, 1152*h)); L.issue("cs")
        for sg in range(o.get("p3pre", 2)): s.col3(sg)
        L("s_mov_b32 m0, %d\nv_lshrrev_b32 v5, 2, v1\ns_lshl_b32 s33, s23, 8\nbuffer_load_dword v5, %s, s33 offen lds" % (L_CS3 + 1536, BSP)); L.issue("b")
        L("s_waitcnt vmcnt(%d)\nv_add_u32 v4, %d, v4\nv_add_f32 v16, v16, v18\nv_add_f32 v17, v17, v19\nds_write_b64 v4, v[16:17]\ns_waitcnt lgkmcnt(0)" % (L.vmn("cs"), L_CS3))
    def main(s, diag, p5):
        L = s.L; o = s.o
        nd = lambda m: [("c", m), ("r", m), ("f", m | 1)]
        stamp(L, diag, "Lp3pre")
        n0 = o.get("p3pre", 2); n1 = n0 + o.get("p3R", 0)
        if n1 > n0:
            L("s_barrier")
            for sg in range(n0, n1): s.col3(sg)
        L("s_barrier")
        for sg in range(n1, 4): s.col3(sg)
        L("s_barrier")
        for sg in range(o.get("p3rows", 3)): s.row3(sg)
        L("s_waitcnt vmcnt(%d)\ns_barrier" % L.vmn(*nd(0)))
        for sg in range(o.get("p3rows", 3), 4): s.row3(sg)
        s.xsave(0)
        p5.setup()
        zb = o.get("zbar", 19); rows = [18, 19, 20]
        for m in range(1, 18):
            L.waitv(nd(m), "lgkmcnt(0)"); L("s_barrier")
            if m == zb: ssignal(L, 54)
            if "p2s" in o and 10 <= m <= 16:
                for t in o["p2s"].get(m, "").split():
                    assert t in "RS" or m < int(t[1:]) - (t[0] == "f") and int(t[1:]) <= m + 3
                    s.op3(t)
                continue
            if m == o.get("lrec", 11): s.rec_load()
            lst = o.get("lrec", 11) and m == o.get("lrec", 11) + o.get("lrd", 1)
            if lst and o.get("lfirst", 0): s.rec_stats()
            if o.get("ldefer", 0) and m == o.get("lrec", 11) + o.get("lrd", 1) + 1: s.col3(m+2); s.row3(m+2)
            if o.get("ldefer", 0) and lst: pass
            elif o.get("late10", 0) and m in (7, 8): pass
            elif o.get("late10", 0) and m == 9:
                for sg in (10, 11, 12): s.col3(sg); s.row3(sg)
            elif m + 3 < 18: s.col3(m+3); s.row3(m+3); s.xsave(m)
            elif m >= zb or not o.get("row4_late", 1):
                while rows and rows[0] <= m + 3: s.row4(rows.pop(0))
            for _ in range(o.get("rowat", {}).get(m, 0)):
                assert rows[0] <= m + 3; s.row4(rows.pop(0))
            if lst and not o.get("lfirst", 0): s.rec_stats()
            p5.keep(m)
            ws_ = o.get("warm_sp", {})
            if m in ws_:
                j0 = sum(v for k_, v in ws_.items() if k_ < m)
                L("s_lshl_b32 s33, s2, 15\ns_lshl_b32 s37, s%d, 13\ns_add_u32 s33, s33, s37\ns_lshl_b32 s37, s%d, 30\ns_add_u32 s33, s33, s37\ns_add_u32 s37, s33, 4096" % (sW, sLAY))
                for j in range(j0, j0 + ws_[m]): L("buffer_load_dwordx4 %s, v1, %s, s%d offen offset:%d %s" % (vr(16+4*j), WSP, (33, 37)[j//4], (j % 4)*1024, o.get("wfl", ""))); L.issue("warm")
        if o.get("own", 3) == 4:
            assert zb == 20 and 19 not in rows
            L("s_waitcnt vmcnt(%d)" % L.vmn(("r", 18), ("r", 19)))
        if zb >= 18: L("s_barrier"); ssignal(L, 54)
        if o.get("rowskip"): L("v_bfrev_b32 v34, 1")
        stamp(L, diag, "LZ")
        nr0, nc0 = o.get("p4r0", 3), o.get("p4c0", 3)
        assert "L0" not in L.vm
        if o.get("own", 3) == 4:
            for sg in rows + [21]: s.row4(sg)
            spoll(L, "z2", [54], sleep=o.get("sleep", 2))
            stamp(L, diag, "Lz2ok")
            s.col4(20); s.col4(21)
            for sg in range(18, 22): s.adv4(sg)
            L("s_waitcnt vmcnt(%d)" % L.vmn(*nd(20)))
            stamp(L, diag, "Lz2ld")
            L("s_barrier")
            for sg in (22, 23): s.col4(sg); s.row4(sg); s.adv4(sg)
        elif o.get("own", 3) >= 2:
            ask = lambda: L("s_mov_b32 s57, 0\ns_atomic_add s57, s[54:55], 0 glc")
            got = lambda lab: L("s_waitcnt lgkmcnt(0)\ns_cmp_ge_u32 s57, 16\ns_cbranch_scc1 " + lab)
            bar = lambda m: L("s_waitcnt vmcnt(%d)\ns_barrier" % (L.vmn(*nd(m)) if any(t in L.vm for t in nd(m)) else 63))
            ask()
            for sg in (18, 19):
                if o.get("own", 3) == 2: s.col4(sg)
                if sg in rows: s.row4(sg)
            if nr0 == 3 and 20 in rows: s.row4(20); rows.remove(20)
            stamp(L, diag, "Lrow")
            def more():
                stamp(L, diag, "Lz2ok")
                s.col4(20)
                if 20 in rows: s.row4(20)
                s.col4(21); s.row4(21)
            got("L_g_r0"); vm0 = list(L.vm)
            ask(); bar(18); got("L_g_r1"); vm1 = list(L.vm)
            bar(19); spoll(L, "z2", [54], sleep=o.get("sleep", 2)); more(); L("s_branch L_g_jn"); vmj = list(L.vm)
            L.lab("L_g_r0"); L.vm = vm0; more(); bar(18); bar(19); L("s_branch L_g_jn"); assert L.vm == vmj
            L.lab("L_g_r1"); L.vm = vm1; more(); bar(19); assert L.vm == vmj
            L.lab("L_g_jn"); L.nbar -= 3
            for sg in range(18, 22): s.adv4(sg)
            s.col4(22); s.row4(22); s.adv4(22)
            L("s_waitcnt vmcnt(%d)" % L.vmn(*nd(20)))
            stamp(L, diag, "Lz2ld")
            L("s_barrier")
            s.col4(23); s.row4(23); s.adv4(23)
        elif o.get("own", 3):
            L("s_mov_b32 s57, 0\ns_atomic_add s57, s[54:55], 0 glc")
            while rows and rows[0] < 18 + nr0: s.row4(rows.pop(0))
            stamp(L, diag, "Lrow")
            def more():
                stamp(L, diag, "Lz2ok")
                s.col4(20)
                if 20 in rows: s.row4(20)
                s.col4(21); s.row4(21)
            b18 = lambda: L("s_waitcnt vmcnt(%d)\ns_barrier" % (L.vmn(("r", 18), ("r", 19)) if ("r", 19) in L.vm else 63))
            L("s_waitcnt lgkmcnt(0)\ns_cmp_ge_u32 s57, 16\ns_cbranch_scc1 L_g_rdy")
            vm0 = list(L.vm)
            b18(); spoll(L, "z2", [54], sleep=o.get("sleep", 2)); more()
            L("s_branch L_g_jn"); vm1 = list(L.vm); L.vm = vm0; L.nbar -= 1
            L.lab("L_g_rdy")
            more(); b18(); assert L.vm == vm1
            L.lab("L_g_jn")
            for sg in range(18, 22): s.adv4(sg)
            L("s_waitcnt vmcnt(%d)" % L.vmn(*nd(20)))
            stamp(L, diag, "Lz2ld")
            L("s_barrier")
            for sg in (22, 23): s.col4(sg); s.row4(sg); s.adv4(sg)
        else:
            while rows and rows[0] < 18 + nr0: s.row4(rows.pop(0))
            stamp(L, diag, "Lrow")
            spoll(L, "z2", [54], sleep=o.get("sleep", 2))
            stamp(L, diag, "Lz2ok")
            for sg in range(18, 18 + nc0): s.col4(sg)
        for m in range(21 if o.get("own", 3) else 18, 23):
            L("s_waitcnt vmcnt(%d)" % L.vmn(*nd(m)))
            if m == 18: stamp(L, diag, "Lz2ld")
            L("s_barrier")
            if m == 18:
                for sg in range(18, 21):
                    if sg >= 18 + nc0: s.col4(sg)
                    if sg in rows: s.row4(sg)
                    s.adv4(sg)
            s.col4(m+3); s.row4(m+3); s.adv4(m+3)
        L("s_mov_b32 s41, 6")
        L.lab("L_g_ll")
        for m in range(23, 27):
            n = L.vmn(*nd(m)); assert n == (16 if m % 2 == 0 else 17)
            L("s_waitcnt vmcnt(%d)\ns_barrier" % n)
            i0 = len(L.L)
            s.col4(m+3); s.row4(m+3); s.adv4(m+3)
            x = o.get("p4exp")
            if x == "none": L.L[i0:] = [l for l in L.L[i0:] if "buffer_load" not in l]
            if x == "norow": L.L[i0:] = [l for l in L.L[i0:] if WSP not in l]
            if x == "reg": L.L[i0:] = [l.replace("dwordx4 v", "dwordx4 v[100:103], v").replace(" lds", "") for l in L.L[i0:]]
        if o.get("nobar"):
            i0 = L.L.index("L_g_ll:"); L.L[i0:] = [l for l in L.L[i0:] if "s_barrier" not in l]
        L("s_sub_u32 s41, s41, 1\ns_cmp_lg_u32 s41, 0\ns_cbranch_scc1 L_g_ll")
        L.nbar += 20
        p5.at(46)
        NT = max(1, o.get("tail", 2))
        for m in range(27, 31 - NT):
            L.waitv(nd(m) if m < 30 - NT else nd(29)); L("s_barrier")
            p5.at(m + 20)
def gmlp(C, o, diag=None):
    ld = o.get("ld", ""); stf = o.get("st", "")
    A2, A1, FR, MR = 16, 88, 160, 248
    vZ1, vR0, vR1 = 2, 3, 0
    if o.get("p3R", 0): C("s_barrier")
    gmlp_coords(C, o)
    C("s_lshl_b32 s30, s%d, 12\ns_lshl_b32 s31, s23, 3\ns_lshl_b32 s33, s%d, 1\ns_add_u32 s31, s31, s33" % (sW, sW))
    C("s_lshl_b32 s32, s31, 10\ns_add_u32 s32, s32, s%d\ns_add_u32 s32, s32, 0x%x" % (sLB, WS_STB))
    C("v_add_u32 v%d, %d, v1\ns_add_u32 s33, s30, %d\nv_add_u32 v%d, s33, v1\nv_add_u32 v%d, s33, v%d" % (vZ1, 2*SLOT, ROWH, vR0, vR1, vZ1))
    C("s_lshr_b32 s34, s31, 1")
    C("s_lshl_b32 s35, s34, 12\ns_add_u32 s35, s35, s%d\ns_add_u32 s35, s35, 0x%x" % (sLB, WS_ZS))
    C("s_lshl_b32 s36, s24, 8\ns_add_u32 s36, s36, s35")
    C("s_lshl_b32 s38, s24, 6\ns_add_u32 s38, s38, s34\ns_mul_i32 s38, s38, 9216\ns_add_u32 s38, s38, s%d\ns_add_u32 s38, s38, 0x%x" % (sLB, WS_Z2))
    C("s_add_u32 s39, s38, 4096\ns_add_u32 s46, s38, 8192")
    c0 = -2*math.sqrt(2/math.pi)*math.log2(math.e)
    C("s_mov_b32 s40, 0x%x\ns_mov_b32 s42, 0x%x\ns_mov_b32 s44, 0x%x\ns_mov_b32 s45, 0x%x" % (f2u(c0), f2u(0.044715), f2u(1/2304), f2u(1e-5)))
    C("v_lshrrev_b32 v4, 1, v1")
    flag_addr(C, POL, F_P2, 23)
    edge(C, "d3", [POL], o, diag)
    C("s_barrier")
    stamp(C, diag, "p3Y")
    for i in range(4): C("buffer_load_dwordx2 %s, v4, %s, s32 offen offset:%d %s" % (vr(8+2*i, 2), WS, 512*i, ld))
    flag_addr(C, SIG, F_P4, 23)
    vG, vC, vG4 = FR+36, FR+38, FR+40
    MR1, KC1 = FR+80, FR+84
    def rowrd(sg, kk, own, tt, d):
        sl = sg % 4
        if sg < 18: return "ds_read_b128 %s, v%d offset:%d" % (vr(d), ((vR0, vR1)[sl//2] if own else vG + sl//2), (sl % 2)*SLOT + (2*tt + kk)*1024)
        return "ds_read_b128 %s, v%d offset:%d" % (vr(d), (8 if own else vG4) + kk + (sl & 2), (sl % 2)*SLOT + tt*2048)
    def colrd(sg, kk, ft, half, d):
        sl = sg % 4
        return "ds_read_b128 %s, v%d offset:%d" % (vr(d), vC + sl//2 if half else (1, vZ1)[sl//2], (sl % 2)*SLOT + (kk*9+ft)*1024)
    def reads(sg, kk):
        b = FR + kk*44
        if sg < 9: return [rowrd(sg, kk, 1, tt, b+4*tt) for tt in range(2)] + [colrd(sg, kk, ft, 0, b+8+4*ft) for ft in range(9)]
        return [rowrd(sg, kk, 0, tt, b+4*tt) for tt in range(2)] + [colrd(sg, kk, i, 1, b+8+4*i) for i in range(4)] + \
               [rowrd(sg, kk, 1, tt, b+24+4*tt) for tt in range(2)] + [colrd(sg, kk, 8, 0, b+32)]
    def mfmas(sg, kk, cinit=None):
        b = FR + kk*44; r_ = []
        z = 'z' if (sg in (0, 9) and kk == 0) else None
        for n in range(9):
            for tt in range(2):
                i = (n*2+tt)*4
                if sg < 9: r_.append(mfma(A2+i, b+4*tt, b+8+4*n, z))
                else: r_.append(mfma((A1 if sg < 18 else A2)+i, b+8+4*(n % 4) if n < 8 else b+32, b+4*tt+(24 if n >= 4 else 0), cinit[2*(n >= 4) + tt] if cinit else z))
        if sg >= 9 and o.get("ord4"):
            r_ = [r_[i] for c in range(4) for i in ((2*c, 2*c+1, 2*c+8, 2*c+9) if c % 2 == 0 or o["ord4"] == 1 else (2*c+9, 2*c+8, 2*c+1, 2*c))] + r_[16:]
        return r_
    late = [0]
    def stage(sg, nxt=True, x0=(), x1=(), p1=(), pre=(), cinit=None, bar=True):
        ex = [(-1, "s_waitcnt lgkmcnt(%d)" % ((5 if sg < 9 else (1 if o.get("ord4") else 3)) + late[0]))]; late[0] = len(p1) if nxt else 0
        for i, r_ in enumerate(reads(sg, 1)): ex.append((i, r_))
        ex.append((7, "s_waitcnt lgkmcnt(8)"))
        for s in interleave(mfmas(sg, 0, cinit), ex + list(x0)): C(s)
        ex = [(-1, "s_waitcnt lgkmcnt(0)")] + [(-1, s) for s in pre] + ([(-1, "s_barrier")] if bar else [])
        for i, r_ in enumerate((reads(sg+1, 0) if nxt else []) + list(p1)): ex.append((i, r_))
        for s in interleave(mfmas(sg, 1), ex + list(x1)): C(s)
        stamp(C, diag, "s%d" % sg)
    LITE = [9, 10, 11, 12, 13, 14, 15, 16, 17, 17]
    DENSE = {24: [1, 2, 3, 4, 5, 6, 8, 9, 9, 10, 10, 11, 11, 12, 12, 13, 13, 14, 14, 15, 15, 16, 16, 17],
             22: [1, 2, 3, 4, 5, 6, 8, 9, 10, 11, 11, 12, 12, 13, 13, 14, 14, 15, 15, 16, 16, 17]}[o.get("dense", 24)]
    C("s_barrier")
    stamp(C, diag, "p3B0")
    for s in reads(0, 0): C(s)
    M8, R8, C0, C1, SD, CS, SS = A1, A1+8, A1+16, A1+24, A1+32, A1+40, FR+44
    TP = FR + 60
    F = Filler()
    F.add([vQ(5), vR(6), "v_lshlrev_b32 v7, 2, v6", "s_lshl_b32 s33, s%d, 8" % sW, "s_add_u32 s33, s33, %d" % L_SC3, "v_add_u32 v4, s33, v7",
           "v_lshl_add_u32 v252, v5, 4, s33", "v_add_u32 v7, %d, v7" % L_CS3, "s_waitcnt vmcnt(0)"])
    F.add(row_stats([8, 12], [MR, MR+2], None))
    G = Filler()
    for i in range(8): G.add("v_rcp_f32 v%d, v%d\nv_mul_f32 v%d, s40, v%d\nv_mul_f32 v%d, v%d, v%d" % (SD+i, R8+i, C0+i, R8+i, C1+i, R8+i, R8+i))
    for i in range(8): G.add("v_mul_f32 v%d, s42, v%d" % (C1+i, C1+i))
    for i in range(8): G.add("v_mul_f32 v%d, v%d, v%d" % (C1+i, C1+i, C0+i))
    G.add("v_lshrrev_b32 v8, 2, v6\nv_lshlrev_b32 v8, 4, v8\nv_lshl_add_u32 v8, v5, 6, v8\nv_and_b32 v9, 3, v6\nv_cmp_eq_u32 vcc, 0, v9\nv_bfrev_b32 v10, 1")
    G.add("v_xor_b32 v4, 256, v4\nv_cndmask_b32 v8, v10, v8, vcc\nv_lshl_add_u32 v255, v5, 6, s33")
    mfix = lambda j: [(p, "v_fma_f32 v%d, -v%d, v%d, v%d" % (A2 + 4*t + j, M8 + 4*(t % 2) + j, CS + t//2, A2 + 4*t + j)) for p in range(18) for t in [(p + 9) % 18]]
    for sg in range(9):
        x0 = x1 = p1 = ()
        if sg == 0: x1 = F.take(LITE)
        elif sg <= 2: x0 = F.take(LITE); x1 = F.take(LITE)
        if sg == 1: p1 = ["ds_read2_b32 %s, v7 offset0:%d offset1:%d" % (vr(CS+2*i, 2), 32*i, 32*i+16) for i in range(5)]
        if sg == 3:
            assert not F.q
            p1 = ["ds_write2_b32 v4, v%d, v%d offset0:%d offset1:%d" % (MR+2*a, MR+2*a+1, 16*a, 32+16*a) for a in range(2)]
            p1 += ["ds_read_b128 %s, v252 offset:%d" % (vr(M8+4*i), 64*i) for i in range(4)]
        if 4 <= sg <= 6: x0 = G.take(LITE); x1 = G.take(LITE)
        if sg == 6: x1 = x1 + mfix(0)
        if sg == 7: x0 = mfix(1); x1 = mfix(2)
        if sg == 8:
            x0 = mfix(3)
            ad = ["s_xor_b32 s47, s30, 4096", "s_sub_u32 s47, s47, s30", "s_and_b32 s48, s30, 4096", "v_add_u32 v%d, s47, v%d" % (vG, vR0), "v_add_u32 v%d, s47, v%d" % (vG+1, vR1),
                  "v_add_u32 v%d, s48, v1" % vC, "v_add_u32 v%d, s48, v%d" % (vC+1, vZ1)]
            x1 = [(i//2, s) for i, s in enumerate(ad)] + [(4 + i, s) for i, s in enumerate(reads(9, 0))]
        stage(sg, nxt=(sg < 8), x0=x0, x1=x1, p1=p1)
    assert not F.q and not G.q
    stamp(C, diag, "pass1")
    C.lab("L_g_z2")
    p2 = lambda a: vr(a, 2)
    for ft in range(9):
        x = [A2 + ft*8 + 2*i for i in range(4)]; t = [TP + (ft % 2)*8 + 2*i for i in range(4)]
        for i in range(4): C("v_pk_mul_f32 %s, %s, %s" % (p2(t[i]), p2(x[i]), p2(x[i])))
        for i in range(4): C("v_pk_fma_f32 %s, %s, %s, %s" % (p2(t[i]), p2(t[i]), p2(C1+2*i), p2(C0+2*i)))
        for i in range(4): C("v_pk_mul_f32 %s, %s, %s" % (p2(t[i]), p2(t[i]), p2(x[i])))
        for i in range(8): C("v_exp_f32 v%d, v%d" % (t[0]+i, t[0]+i))
        for i in range(4): C("v_pk_fma_f32 %s, %s, %s, %s" % (p2(t[i]), p2(t[i]), p2(SD+2*i), p2(SD+2*i)))
        for i in range(8): C("v_rcp_f32 v%d, v%d" % (t[0]+i, t[0]+i))
        for i in range(4): C("v_pk_mul_f32 %s, %s, %s" % (p2(x[i]), p2(x[i]), p2(t[i])))
        for i in range(4):
            if ft == 0: C("v_pk_mul_f32 %s, %s, %s" % (p2(SS+4*i+2), p2(x[i]), p2(x[i])))
            else:
                C("v_pk_add_f32 %s, %s, %s" % (p2(SS+4*i), p2(SS+4*i) if ft > 1 else p2(A2+2*i), p2(x[i])))
                C("v_pk_fma_f32 %s, %s, %s, %s" % (p2(SS+4*i+2), p2(x[i]), p2(x[i]), p2(SS+4*i+2)))
    dpp = lambda d, s, ctl, bm: "v_add_f32_dpp v%d, v%d, v%d %s row_mask:0xf bank_mask:0x%x" % (d, s, s, ctl, bm)
    for i in range(8): C(dpp(SS+i, SS+i, "row_mirror", 0x3))
    for i in range(8): C(dpp(SS+i, SS+8+i, "row_mirror", 0xc))
    for i in range(4): C(dpp(SS+i, SS+i, "row_half_mirror", 0x5))
    for i in range(4): C(dpp(SS+i, SS+4+i, "row_half_mirror", 0xa))
    for i in range(4): C(dpp(SS+i, SS+i, "quad_perm:[1,0,3,2]", 0xf))
    for i in range(4): C(dpp((12, 14, 13, 15)[i], SS+i, "quad_perm:[2,3,0,1]", 0xf))
    C("buffer_store_dwordx4 v[12:15], v8, %s, s36 offen sc1" % WS)
    stamp(C, diag, "z2gelu")
    Q = [4, 8, 12, 252]
    def consts(f, mr, kc):
        f.add("v_mul_f32 v%d, s40, v%d\nv_mul_f32 v%d, s40, v%d\nv_mul_f32 v%d, v%d, v%d\nv_mul_f32 v%d, v%d, v%d" % (kc, mr+1, kc+2, mr+3, kc+1, mr+1, mr+1, kc+3, mr+3, mr+3))
        f.add("v_rcp_f32 v%d, v%d\nv_rcp_f32 v%d, v%d\nv_mul_f32 v%d, s42, v%d\nv_mul_f32 v%d, s42, v%d" % (mr+1, mr+1, mr+3, mr+3, kc+1, kc+1, kc+3, kc+3))
        f.add("v_mul_f32 v%d, v%d, v%d\nv_mul_f32 v%d, v%d, v%d" % (kc+1, kc+1, kc, kc+3, kc+3, kc+2))
    E = Filler(); consts(E, MR1, KC1)
    E.add([vR(vG4+2), "v_lshrrev_b32 v%d, 1, v%d" % (vG4, vG4+2), vQ(vG4+1), "v_xor_b32 v%d, v%d, v%d" % (vG4, vG4, vG4+1), "v_lshlrev_b32 v%d, 4, v%d" % (vG4, vG4),
           "v_lshl_add_u32 v%d, v%d, 7, v%d" % (vG4, vG4+2, vG4), "s_xor_b32 s33, s30, 4096", "s_add_u32 s33, s33, %d" % ROWH, "v_add_u32 v%d, s33, v%d" % (vG4, vG4),
           "v_xor_b32 v%d, 64, v%d" % (vG4+1, vG4), "v_add_u32 v%d, %d, v%d" % (vG4+2, 2*SLOT, vG4), "v_add_u32 v%d, %d, v%d" % (vG4+3, 2*SLOT, vG4+1)])
    H = Filler()
    def swp(ft, w):
        for i in range(2): H.add("v_permlane%s_swap_b32 v%d, v%d" % (w, A2+ft*8+i, A2+ft*8+2+i))
    zst = lambda ft: "buffer_store_dwordx4 %s, v1, %s, s%d offen offset:%d sc1" % (vr(A2+ft*8), WS, (38, 39, 46)[ft//4], (ft % 4)*1024)
    for ft in range(9):
        x = A2 + ft*8
        for i in range(8): H.add("v_fma_f32 v%d, v%d, v%d, -v%d" % (x+i, x+i, Q[i//2] + i % 2, Q[i//2] + 2 + i % 2))
        if ft: swp(ft-1, "32")
        for i in range(4): H.add("v_cvt_pk_bf16_f32 v%d, v%d, v%d" % (x+i, x+2*i, x+2*i+1))
        if ft: swp(ft-1, "16"); H.add(";ok %d" % (ft-1))
    H.add("s_nop 0"); swp(8, "32"); H.add("s_nop 0"); swp(8, "16"); H.add(";ok 8")
    consts(H, MR, 4)
    for i in range(4): H.add("v_subrev_u32 v%d, s47, v%d" % (8+i, vG4+i))
    H.add([vR(13), "s_lshl_b32 s33, s%d, 6" % sW, "s_add_u32 s33, s33, %d" % (L_CS3 + 1536), "v_lshl_add_u32 v13, v13, 1, s33", "v_xor_b32 v15, 64, v13"])
    st_ks, st_n = o.get("st_ks", 12), o.get("st_n", 3)
    rb_ = o.get("lrec", 11) + o.get("lrd", 1) + 1; h_go = 2*(rb_ - 9)
    assert o.get("zbar", 19) == 19 and o.get("own", 3) == 3
    CS1 = FR + 8; ready = []
    for sg in range(9, 18):
        x = [[], []]; p1 = ()
        for kk in range(2):
            ks = 2*(sg-9) + kk
            if 3 <= ks < h_go: x[kk] += E.take(LITE)
            if ks >= st_ks:
                for i in range(st_n):
                    if ready: x[kk].append((2 + i*(16//st_n), zst(ready.pop(0))))
            if ks >= h_go:
                t = H.take([p for p in DENSE if p > 7 or ks > h_go])
                ready += [int(s.split()[1]) for _, s in t if s.startswith(";ok")]
                x[kk] += t
        if sg == 9: p1 = ["ds_read2_b32 %s, v4 offset0:%d offset1:%d" % (vr(MR1+2*a, 2), 16*a, 32+16*a) for a in range(2)]
        if sg + 1 == rb_: p1 = ["ds_read_b128 %s, v255 offset:%d" % (vr(Q[i]), 1024 + 16*i) for i in range(4)]
        if sg == 17:
            assert not H.q and not E.q and not any(s.startswith(("v_", "s_")) for _, s in x[1])
            x[0] += [(11, "s_lshr_b32 s35, s48, 4"), (12, "v_lshrrev_b32 v%d, 4, v1" % vR1), (13, "v_and_b32 v%d, 48, v%d" % (vR1, vR1)), (14, "v_add_u32 v%d, %d, v%d" % (vR1, L_CS3 + 576, vR1)),
                     (15, "v_add_u32 v%d, s35, v%d" % (vG+1, vR1))]
            p1 = ["ds_read_b128 %s, v%d offset:%d" % (vr(CS1 + 4*i), vG+1, i*64) for i in range(4)] + ["ds_read_b128 %s, v%d offset:512" % (vr(CS1 + 16), vR1)]
            p1 += ["ds_read_u16 v12, v13", "ds_read_u16 v252, v13 offset:32", "ds_read_u16 v%d, v15" % FR, "ds_read_u16 v%d, v15 offset:32" % (FR+1)]
            x[1] += [(12, "s_lshr_b32 s35, s%d, 1" % sW), (12, "s_mul_i32 s35, s35, %d" % SLOT), (13, "s_and_b32 s34, s%d, 1" % sW), (13, "s_mul_i32 s34, s34, 9216"),
                     (14, "s_add_u32 s35, s35, s34"), (15, "v_add_u32 v3, s35, v%d" % vZ1)]
        stage(sg, nxt=(sg < 17), bar=(sg < 17), x0=x[0], x1=x[1], p1=p1)
    for ft in ready: C(zst(ft))
    stamp(C, diag, "pass2")
    C("s_waitcnt vmcnt(0)\ns_barrier")
    n1 = o.get("n1", 4); NP = o.get("peel", 8)
    BQ = (FR+72, FR+76, 12, 252)
    C("s_waitcnt lgkmcnt(0)")
    for i in (3, 2, 1, 0): C("v_lshlrev_b32 v%d, 16, v12\nv_lshlrev_b32 v%d, 16, v252\nv_lshlrev_b32 v%d, 16, v%d\nv_lshlrev_b32 v%d, 16, v%d" % (12+i, 252+i, BQ[0]+i, FR, BQ[1]+i, FR+1))
    C.lab("L_g_z1")
    mr = lambda n, a: (MR if n >= 4 else MR1) + 2*a
    kc = lambda n, a: (4 if n >= 4 else KC1) + 2*a
    for n in range(9):
        C("ds_write_b128 v3, %s offset:%d" % (vr(A2 + 8*n), 1024*n))
        cs = CS1 + 4*(n % 4 if n < 8 else 4)
        for i in range(4): C("v_pk_fma_f32 %s, %s, %s, %s op_sel_hi:[0,1,1] neg_lo:[1,0,0] neg_hi:[1,0,0]" % (p2(A1+n*8+2*i), p2(mr(n, i//2)), p2(cs+2*(i % 2)), p2(A1+n*8+2*i)))
    for n in range(n1):
        x = [A1 + n*8 + 2*i for i in range(4)]; t = [FR + 44 + 8*(n % 2) + 2*i for i in range(4)]
        if n == n1 - 1:
            C("s_waitcnt lgkmcnt(0)\ns_barrier"); stamp(C, diag, "p4B0")
            for s in reads(18, 0): C(s)
        for i in range(4): C("v_pk_mul_f32 %s, %s, %s" % (p2(t[i]), p2(x[i]), p2(x[i])))
        for i in range(4): C("v_pk_fma_f32 %s, %s, %s, %s op_sel:[0,1,0] op_sel_hi:[1,1,0]" % (p2(t[i]), p2(t[i]), p2(kc(n, i//2)), p2(kc(n, i//2))))
        for i in range(4): C("v_pk_mul_f32 %s, %s, %s" % (p2(t[i]), p2(t[i]), p2(x[i])))
        for i in range(8): C("v_exp_f32 v%d, v%d" % (t[0]+i, t[0]+i))
        for i in range(4): C("v_pk_fma_f32 %s, %s, %s, %s op_sel:[0,1,1] op_sel_hi:[1,1,1]" % (p2(t[i]), p2(t[i]), p2(mr(n, i//2)), p2(mr(n, i//2))))
        for i in range(8): C("v_rcp_f32 v%d, v%d" % (t[0]+i, t[0]+i))
        for i in range(4): C("v_pk_mul_f32 %s, %s, %s" % (p2(x[i]), p2(x[i]), p2(t[i])))
    stamp(C, diag, "z1gelu")
    J = Filler()
    tq = [12, 13, 14, 15, 252, 253, 254, 255]
    for n in range(n1, 9):
        x = A1 + n*8
        for i in range(8): J.add("v_mul_f32 v%d, v%d, v%d" % (tq[i], x+i, x+i))
        for i in range(8): J.add("v_fma_f32 v%d, v%d, v%d, v%d" % (tq[i], tq[i], kc(n, i//4)+1, kc(n, i//4)))
        for i in range(8): J.add("v_mul_f32 v%d, v%d, v%d" % (tq[i], tq[i], x+i))
        for i in range(8): J.add("v_exp_f32 v%d, v%d" % (tq[i], tq[i]))
        for i in range(8): J.add("v_fma_f32 v%d, v%d, v%d, v%d" % (tq[i], tq[i], mr(n, i//4)+1, mr(n, i//4)+1))
        for i in range(8): J.add("v_rcp_f32 v%d, v%d" % (tq[i], tq[i]))
        for i in range(8): J.add("v_mul_f32 v%d, v%d, v%d" % (x+i, x+i, tq[i]))
    J.add("s_mul_i32 s39, s31, 73728\ns_add_u32 s39, s39, s%d\ns_add_u32 s39, s39, 0x%x\ns_add_u32 s40, s39, 73728" % (sLB, WS_H))
    J.add("s_mul_i32 s36, s47, 36\ns_add_u32 s36, s36, s39\ns_add_u32 s37, s36, 73728")
    J.add("s_lshl_b32 s34, s24, 10\ns_lshl_b32 s33, s48, 3\ns_add_u32 s34, s34, s33\nv_add_u32 v13, s34, v1\nv_add_u32 v14, 16384, v13")
    J.add("s_lshr_b32 s35, s24, 1\ns_lshl_b32 s35, s35, 10\ns_and_b32 s33, s24, 1\ns_mul_i32 s33, s33, 73728\ns_add_u32 s35, s35, s33\ns_add_u32 s35, s35, 65536\nv_add_u32 v15, s35, v1")
    def jtake(lo=0):
        out = []
        for p in range(lo, 18):
            room = (1 if p <= 8 else 2) - (p in (0, 7, 17))
            while room > 0 and J.q:
                room -= 2 if J.q[0].startswith(("v_exp", "v_rcp")) else 1
                out.append((p, J.q.pop(0)))
        return out
    for sg in range(18, 18 + NP): stage(sg, x0=jtake() if sg > 18 else (), x1=jtake(3 if sg == 18 else 0), cinit=BQ if sg == 18 else None)
    while J.q: C(J.q.pop(0))
    C("s_mov_b32 s41, %d" % (7 - NP//4))
    C.lab("L_g_loop")
    for sg in range(18, 22): stage(sg, x1=[(16, "s_sub_u32 s41, s41, 1"), (17, "s_cmp_lg_u32 s41, 0")] if sg == 21 else ())
    C("s_cbranch_scc1 L_g_loop")
    C.nbar += 24 - NP
    assert o.get("tail", 2) == 2
    nk = 4; s0 = 20
    rq = lambda own, k, tt: FR + (44 if own else 0) + 8*k + 4*tt
    ring = [FR+32, MR1, KC1, MR, 4, 252, FR+76]
    zq = lambda j: ring[j % len(ring)]
    rrd = lambda own: [rowrd(s0 + k//2, k % 2, own, tt, rq(own, k, tt)) for k in range(nk) for tt in range(2)]
    zrd = [colrd(s0 + k//2, k % 2, n % 4 if n < 8 else 8, n < 8, zq(n*nk + k)) for n in range(9) for k in range(nk)]
    stage(18)
    n0 = 5
    stage(19, nxt=False, p1=rrd(0)[:2] + zrd[:1] + rrd(0)[2:] + zrd[1:n0])
    out = lambda u, tt: A1 + 16*u + (4 if u < 4 else 2)*tt
    def fin(n):
        r_ = []
        for tt in range(2):
            i = (n*2+tt)*4
            r_ += ["v_mul_f32 v%d, v%d, v%d" % (A2+i+j, A2+i+j, A1+i+j) for j in range(4)]
            r_ += ["v_cvt_pk_bf16_f32 v%d, v%d, v%d" % (out(n//2, tt) + 2*(n % 2) + p, A2+i+2*p, A2+i+2*p+1) for p in range(2)]
            if n == 8:
                if tt:
                    d = out(4, 0)
                    r_ += ["s_bitcmp0_b32 s24, 1", "s_cbranch_scc1 L_g_ns", "v_swap_b32 v%d, v%d" % (d, d+2), "v_swap_b32 v%d, v%d" % (d+1, d+3), "L_g_ns:"]
                    r_.append("buffer_store_dwordx4 %s, v15, %s, s39 offen %s" % (vr(d), WS, stf))
            elif n % 2: r_.append("buffer_store_dwordx4 %s, v%d, %s, s%d offen %s" % (vr(out(n//2, tt)), 13 + (n//2) % 2, WS, (39 if n >= 4 else 36) + tt, stf))
        return r_
    mm = [mfma(A2 + (n*2+tt)*4, zq(n*nk + k), rq(n >= 4, k, tt)) for n in range(9) for k in range(nk) for tt in range(2)]
    ex = []; nr = n0; T = Filler(); nf = 0; seq = []; own_r = rrd(1)
    for j in range(9*nk):
        if j == 0: ex.append((-1, "s_waitcnt lgkmcnt(0)"))
        elif j >= n0: ex.append((2*j - 1, "s_waitcnt lgkmcnt(%d)" % (len(seq) - 1 - seq.index(j))))
        c_ = 0
        if nr < 9*nk and nr < j + len(ring): ex.append((2*j, zrd[nr])); seq.append(nr); nr += 1; c_ += 1
        if own_r: ex.append((2*j + 1, own_r.pop(0))); seq.append(-1); c_ += 1
        if j == (nf + 1)*nk + 2: T.add(fin(nf)); nf += 1
        ex += T.take(sorted([2*j, 2*j+1] + ([2*j+1] if c_ < 2 else []) + ([2*j] if c_ == 0 else []) + ([2*j+1] if len(T.q) > 12 else [])))
    for s in interleave(mm, ex): C(s)
    stamp(C, diag, "p4loop")
    k_ = len(T.q)
    while T.q: C(T.q.pop(0))
    C("s_nop %d" % max(0, 6 - k_))
    for f in range(nf, 9):
        for s in fin(f): C(s)
    stamp(C, diag, "p4end")
    C.tail = getattr(C, "tail", [])
```

```python
import sys
from ph_prep import *
from ph_proj import *
from ph_attn import *
from ph_gmlp import *
HEADER = """; Generated by dev/gen.py (hand-written generator): LN+local attention / LN+gMLP x2 on gfx950.
; kernarg: x, wqkv, wo, (B_x unused), w_in, w_sp, b_sp, w_out, out, debug, ws"""
def mega(o={}, diag=None, name="mega_kernel"):
    o = dict(dict(ld="sc1", st="sc1", p1R=[7, 2]), **o)
    assert o.get("amap", 1) == o.get("pmap", 1) or o.get("unsafe")
    k = Kern(name, 256, 512, lds=163840, vgpr=256)
    k("s_cmp_ge_u32 s2, 256\ns_cbranch_scc1 L_end_m")
    stamp(k, diag, "start")
    k("s_load_dwordx16 s[36:51], s[0:1], 0\ns_load_dwordx4 s[56:59], s[0:1], %d\ns_load_dwordx2 s[24:25], s[0:1], %d" % (KA_OUT, KA_WS))
    if o.get("codepf", 1):
        k("s_getpc_b64 s[26:27]")
        k.lab("L_m_pc")
        k("s_sub_u32 s26, s26, L_m_pc-%s\ns_subb_u32 s27, s27, 0\nv_lshlrev_b32 v4, 4, v0\nv_mov_b32 v5, s27" % name)
        k("v_add_co_u32 v6, vcc, s26, v4\ns_lshr_b32 s28, s2, 3\ns_lshl_b32 s28, s28, 11\nv_addc_co_u32 v7, vcc, 0, v5, vcc")
        k("global_load_dwordx4 v[60:63], v[6:7], off")
        k("v_lshl_add_u32 v4, v0, 2, s28\nv_min_u32 v4, L_end_m-%s-4, v4" % name)
        k("v_add_co_u32 v6, vcc, s26, v4\ns_nop 1\nv_addc_co_u32 v7, vcc, 0, v5, vcc")
        k("global_load_dword v64, v[6:7], off")
    k("v_lshrrev_b32 v2, 6, v0\nv_and_b32 v1, 63, v0\nv_lshlrev_b32 v1, 4, v1\nv_readfirstlane_b32 s23, v2")
    k("s_mov_b32 s%d, 0\ns_mov_b32 s%d, 0\ns_and_b32 s%d, s23, 3" % (sLAY, sLB, sW))
    k("s_waitcnt lgkmcnt(0)")
    srd(k, 4, 24, WS_BYTES)
    k("s_cmp_ge_u32 s23, 4\ns_cbranch_scc1 L_ld_m")
    C, L = Stream(), Stream()
    def flush(st, slot, uid):
        if diag and (st is not L or any(x.startswith("L") for x in diag)):
            st("s_add_u32 s61, s%d, %d" % (sLAY, slot)); stamp_flush(st, diag, 61, uid, vt=16, wait=(st is L))
    nextlayer = "s_mov_b32 s%d, 1\ns_mov_b32 s%d, 0x%x" % (sLAY, sLB, LAYER_STRIDE)
    if o.get("cp", 0): C("s_setprio %d" % o["cp"])
    prep_C(C, o, diag)
    srd(C, 16, 56, 2048*1152)
    C("s_branch L_m_cl"); nC0 = len(C.L)
    C.lab("L_m_cl")
    attn(C, o, diag, prep_signal); n1 = C.nbar
    (proj if o.get('p2x', 0) else proj1)(C, 2, o, diag); gmlp(C, o, diag)
    fin = (proj if o.get('p5x', 1) else proj1)(C, 5, o, diag)
    stamp(C, diag, "drain"); flush(C, 0, "c0"); stamp(C, diag, "start")
    if o.get("p1R"): C("s_barrier"); C.nbar -= 1
    C(nextlayer + "\ns_branch L_m_cl")
    if diag: fin("s_waitcnt vmcnt(0)"); stamp(fin, diag, "drain"); flush(fin, 0, "c1")
    fin("s_endpgm")
    if o.get("lp", 0): L("s_setprio %d" % o.get("lp", 0))
    zero_counters(L)
    srd(L, 8, 46, 2048*4096); srd(L, 12, 48, 4096)
    L("v_mov_b32 v2, %d\nv_mov_b32 v4, 0\nv_mov_b32 v5, 0\nds_write2_b64 v2, v[4:5], v[4:5] offset0:0 offset1:1\ns_waitcnt lgkmcnt(0)" % L_PF)
    a0 = P1L(L, o)
    if o.get("p0y", 0) == 2:
        a0.setup(0); L("s_barrier\n"*6); a0.issue(a0.need(0)); L("s_waitcnt vmcnt(63)")
    prep_L(L, o, diag)
    L("s_branch L_m_l1"); nL0 = len(L.L); L.lab("L_m_l1")
    a0.setup(0); a0.main(lambda us: prep_L_store(L, o, us), (lambda: prep_L_tr(L)) if o.get('p0late', 1) else None); assert L.nbar == n1
    L.lab("L_m_ll"); L.vm = []
    p3, p5, a1 = P3L(L, o), P5L(L, o), P1L(L, o)
    p2_loader(L, o, diag, p3.pre)
    p3.main(diag, p5)
    sched = o.get("p1pre", {8: [0, 1]})
    def tail(m):
        if m == 6: a1.setup(1)
        if sched.get(m):
            assert 7 not in sched[m]
            assert not any(t[0] == "w" for t in L.vm)
            L("s_cmp_eq_u32 s%d, 1\ns_cbranch_scc1 L_m_t%d" % (sLAY, m))
            a1.issue([("g", g) for g in sched[m]])
            L.lab("L_m_t%d" % m)
    p5.main(diag, tail)
    L("s_cmp_eq_u32 s%d, 1\ns_cbranch_scc1 L_m_lfin" % sLAY)
    if o.get("xbar", 0): L("s_barrier")
    assert L.nbar == C.nbar, (L.nbar, C.nbar)
    flush(L, 2, "l0")
    if o.get("p1R"): L("s_barrier"); a1.issue([("g", g) for g in o["p1R"]])
    L(nextlayer + "\ns_barrier\ns_barrier")
    a1.issue([t for t in [("g", g) for g in range(8)] + ["cs"] if t not in o.get("p1post", [("g", 6)])])
    stamp(L, diag, "Lp1pre")
    a1.main()
    L("s_branch L_m_ll")
    L.lab("L_m_lfin")
    flush(L, 2, "l1")
    for lab, ph in o.get("phase", {}).items():
        st = C if lab + ":" in C.L else L; i = st.L.index(lab + ":")
        if lab == "L_g_loop": st.L[i:i] = ["    .p2align 3"] + ["    s_nop 0"]*ph
        else: st.L[i+1:i+1] = ["    .p2align 3"] + ["    s_nop 0"]*ph
    if o.get("pace"):
        t = []
        for l in L.L[nL0:]:
            if "buffer_load_dwordx4" in l: t.append("    s_waitcnt vmcnt(%d)" % o["pace"])
            t.append(l)
        L.L = L.L[:nL0] + t
    if o.get("jit"):
        role, wv, n, before, wgm = o["jit"]; cnt = [0]
        def jit(lines):
            out = []
            for l in lines:
                j = []
                if l.strip() == "s_barrier":
                    cnt[0] += 1; lab = "L_jit_%d" % cnt[0]
                    if wv is not None: j += ["    s_cmp_lg_u32 s%d, %d" % (sW, wv), "    s_cbranch_scc1 " + lab]
                    if wgm: j += ["    s_and_b32 s101, s2, %d" % wgm, "    s_cbranch_scc1 " + lab]
                    j += ["    s_sleep %d" % n, lab + ":"]
                out += (j + [l]) if before else ([l] + j)
            return out
        st, n0 = (C, nC0) if role == "C" else (L, nL0)
        a_, b_ = jit(st.L[:n0]), jit(st.L[n0:]); st.L = a_ + b_
        if role == "C": nC0 = len(a_)
        else: nL0 = len(a_)
    k.L += C.L[:nC0] + C.tail0
    k.lab("L_ld_m"); k.L += L.L[:nL0]
    k.L += C.L[nC0:] + fin.L + C.tail + L.L[nL0:]
    k.lab("L_end_m"); k("s_endpgm")
    if o.get("allsc1", 1):
        import re
        k.L = [re.sub(r"( lds)?\s*$", lambda m: " sc1" + (m.group(1) or ""), l, count=1) if ("buffer_load" in l and WS in l and "sc1" not in l) else l for l in k.L]
    if o.get("al8", 1):
        from align8 import align8
        k.L, left = align8(k.L, name, o.get("al8", 1) == 2)
        k.left = left
    return [k]
if __name__ == "__main__":
    out = sys.argv[1] if len(sys.argv) > 1 else "mega.s"
    o = eval(sys.argv[2]) if len(sys.argv) > 2 else {}
    NAME = "interleave_layers__sliding_local_dilated__mixer_gmlp__prompt_kernel"
    txt = build(mega(o, name=NAME, diag=o.get('diag', '').split() or None), HEADER)
    if not o.get("list"): txt = txt.replace("; @launch kernel=%s " % NAME, "; @launch ")
    open(out, "w").write(txt)
```

```python
from ph_sync import *
def proj_coords(k, o, b=23):
    k("s_and_b32 s%d, s2, 7\ns_lshr_b32 s26, s2, 3" % (b+2))
    if o.get("pmap", 1) == 0:
        k("s_lshl_b32 s%d, s%d, 2\ns_lshr_b32 s27, s26, 3\ns_add_u32 s%d, s%d, s27\ns_and_b32 s%d, s26, 7" % (b, b+2, b, b, b+1))
    else:
        k("s_lshr_b32 s%d, s%d, 1\ns_lshl_b32 s%d, s%d, 3\ns_lshr_b32 s27, s26, 2\ns_add_u32 s%d, s%d, s27" % (b, b+2, b, b, b, b))
        k("s_and_b32 s%d, s%d, 1\ns_lshl_b32 s%d, s%d, 2\ns_and_b32 s27, s26, 3\ns_add_u32 s%d, s%d, s27" % (b+1, b+2, b+1, b+1, b+1, b+1))
    k("s_add_u32 s%d, s%d, s%d\ns_and_b32 s%d, s%d, 3" % (b+2, b, b+1, b+2, b+2))
def dma_run(L, n, sm0, m0add, ssrc, srcadd, tag, fl=""):
    for j in range(n):
        if j % 4 == 0: L("s_add_u32 m0, s%d, %d\ns_add_u32 s33, s%d, %d" % (sm0, m0add + j*1024, ssrc, srcadd + j*1024))
        L("buffer_load_dwordx4 v1, %s, s33 offen offset:%d %s lds" % (WS, (j % 4)*1024, fl)); L.issue(tag)
def p2_loader(L, o, diag, after_y):
    proj_coords(L, o)
    L("s_mul_i32 s29, s24, %d\ns_add_u32 s29, s29, 0x%x" % (9*9216, WS_WO))
    L("s_mul_i32 s30, s%d, %d\ns_mul_i32 s31, s%d, %d\ns_add_u32 s31, s31, s29" % (sW, SLOT, sW, ROWH))
    n0 = o.get("p2n", 12)
    dma_run(L, n0, 30, ROWH, 31, 0, "w")
    stamp(L, diag, "Lp2pre")
    L("s_waitcnt vmcnt(%d)\ns_barrier" % n0)
    dma_run(L, 18 - n0, 30, ROWH + n0*1024, 31, n0*1024, "w")
    L("s_mul_i32 s30, s%d, 3072\ns_add_u32 s31, s30, s29" % sW)
    dma_run(L, 3, 30, TOP, 31, 8*9216, "w")
    L("s_or_b32 s44, s%d, s%d\ns_cbranch_scc1 L_p2_ns\ns_and_b32 s44, s2, 15" % (sW, sLAY))
    flag_addr(L, 44, F_P2, 44, back="prep"); ssignal(L, 44)
    L.lab("L_p2_ns")
    L("s_waitcnt vmcnt(0)\ns_barrier"); L.vm = []
    after_y()
def p5sched(o): return o.get("p5s", {47: [0], 48: [1], "R": [3], "X": [2]} if o.get("tail", 2) == 2 else {47: [0], 48: [1], 49: [2], "X": [3]})
WR = 76
class P5L:
    def __init__(s, L, o):
        s.L = L; s.o = o; s.done = []; s.nk = 0
        s.sched = p5sched(o)
    def setup(s):
        L = s.L
        proj_coords(L, s.o, 38)
        L("s_mul_i32 s42, s%d, 9216\ns_mul_i32 s43, s39, %d\ns_add_u32 s43, s43, s42\ns_add_u32 s43, s43, 0x%x" % (sW, 36*9216, WS_WU))

    def batch(s, tau, reg=False):
        L = s.L; s.done.append(tau)
        L("\n".join(hoist_sel(L, 32, tau, 8, 40, tau < 8 and s.o.get("hoist5", 0))))
        L("s_mul_i32 s32, s32, %d\ns_add_u32 s32, s32, s43" % SLOT)
        if not reg: dma_run(L, 9, 42, ((50 + tau) % 4)*SLOT, 32, 0, ("w", tau))
        else:
            for j in range(9):
                if j and j % 4 == 0: L("s_add_u32 s32, s32, 4096")
                L("buffer_load_dwordx4 %s, v1, %s, s32 offen offset:%d" % (vr(WR + ((tau-4)*9 + j)*4), WS, (j % 4)*1024)); L.issue(("w", tau))
    def keep(s, m):
        L = s.L; n = s.o.get("p5k", {6: 5, 7: 5, 8: 5, 9: 30, 48: 9}).get(m, 0)
        if not n: return
        lab = "L_p5_k%s" % m
        L("s_cmp_lg_u32 s%d, 0\ns_cbranch_scc1 %s" % (sLAY, lab))
        for i in range(s.nk, s.nk + n):
            t, j = 8 - i//9, i % 9
            if i == s.nk or j % 4 == 0: L("s_add_u32 s32, s43, %d" % (t*SLOT + (j//4)*4096))
            L("buffer_load_dwordx4 %s, v1, %s, s32 offen offset:%d" % (vr(WR + ((t-4)*9 + j)*4), WS, (j % 4)*1024)); L.issue("L0")
            if j == 8: s.done.append(t)
        s.nk += n
        L.lab(lab)
    def warm(s, what):
        L = s.L
        if what == "h":
            L("s_lshl_b32 s32, s38, 2\ns_add_u32 s32, s32, s%d\ns_mul_i32 s32, s32, 73728\ns_add_u32 s32, s32, s%d\ns_add_u32 s32, s32, 0x%x" % (sW, sLB, WS_H))
            L("s_lshl_b32 s33, s39, 10\ns_add_u32 s33, s33, s32\ns_add_u32 s33, s33, 65536\nbuffer_load_dwordx4 v[200:203], v1, %s, s33 offen sc1" % WS); L.issue("x")
            L("s_lshl_b32 s33, s39, 13\ns_add_u32 s32, s32, s33"); n = 8
        else:
            L("s_and_b32 s32, s38, 3\ns_lshl_b32 s32, s32, 2\ns_add_u32 s32, s32, s%d\ns_mul_i32 s32, s32, %d\ns_add_u32 s32, s32, s43\ns_sub_u32 s32, s32, s42\ns_add_u32 s32, s32, %d" % (sW, 11520, 4*SLOT)); n = 12
        for j in range(n):
            if j and j % 4 == 0: L("s_add_u32 s32, s32, 4096")
            L("buffer_load_dwordx4 v[200:203], v1, %s, s32 offen offset:%d sc1" % (WS, (j % 4)*1024)); L.issue("x")
    def at(s, point):
        if point in (46, 47, 48): s.keep(point)
        for t in s.sched.get(point, []):
            if isinstance(t, str): s.warm(t)
            elif t in s.done:
                s.waddr()
                if "L0" in s.L.vm: s.L("s_waitcnt vmcnt(%d)" % s.L.vmn("L0"))
                for j in range(9): s.L("ds_write_b128 v%d, %s offset:%d" % (12 + (50 + t) % 4, vr(WR + ((t-4)*9 + j)*4), j*1024))
            else: s.batch(t, t >= 4)
    def waddr(s):
        if not getattr(s, "wa", 0):
            s.wa = 1; s.L("v_add_u32 v12, s42, v1")
            for i in range(1, 4): s.L("v_add_u32 v%d, %d, v12" % (12+i, SLOT*i))
    def main(s, diag, tail):
        L = s.L
        if "R" in s.sched: L("s_barrier"); s.at("R")
        if s.o.get("top8", 1):
            L("s_lshl_b32 s33, s%d, 10\ns_add_u32 s33, s33, %d\nv_add_u32 v4, s33, v1" % (sW, TOP))
            for t in (4, 5, 6): L("ds_write_b128 v4, %s offset:%d" % (vr(WR + ((t-4)*9 + 8)*4), (t-4)*4096))
        L("s_barrier")
        s.at("X")
        stamp(L, diag, "Lp5pre")
        L("s_waitcnt vmcnt(%d) lgkmcnt(0)\ns_barrier" % L.vmn(("w", 0)))
        if s.o.get("split5", 0):
            L("s_barrier\ns_cmp_lg_u32 s%d, 0\ns_cbranch_scc1 L_p5_n2" % sW)
            flag_addr(L, 44, F_P4, 23)
            L("s_mov_b32 s56, 1\ns_atomic_add s56, s[44:45], 64")
            L.lab("L_p5_n2")
            L("s_lshr_b32 s48, s38, 1"); flag_addr(L, 46, F_P4, 48)
        s.at("Y")
        s.waddr()
        assert all(t in s.done for t in range(4))
        wq = []; nw = s.o.get("nw", [6]*7 if s.o.get("top8", 1) else [7, 7, 7, 6, 6, 6, 6]); issued = []
        for m in range(1, 9):
            if s.o.get("split5", 0) and m == 2*s.o.get("split5", 0) - 2:
                L("s_cmp_lg_u32 s%d, 0\ns_cbranch_scc1 L_pd_h2" % sW)
                spoll(L, "h2", [(46, 64)], sleep=2)
            assert not any(t <= m for t, _ in wq)
            if m < 4 or m not in issued: lg = 15
            else: lg = min(15, len([t for t in issued if t > m]))
            L("s_waitcnt vmcnt(%d) lgkmcnt(%d)\ns_barrier" % (L.vmn(("w", m)) if ("w", m) in L.vm else 63, lg))
            t = m + 3
            if t < 9 and t in s.done:
                if ("w", t) in L.vm: L("s_waitcnt vmcnt(%d)" % L.vmn(("w", t)))
                wq += [(t, j) for j in range(8 if (t < 7 and s.o.get("top8", 1)) else 9)]
            elif t < 9: s.batch(t)
            s.at(m)
            if t >= 9: tail(m)
            for i_ in range(nw[m-1] if m < 8 else 0):
                if i_ and s.o.get("wsplit") and i_ % s.o["wsplit"] == 0: L("s_waitcnt lgkmcnt(0)")
                if wq:
                    t, j = wq.pop(0); issued.append(t)
                    L("ds_write_b128 v%d, %s offset:%d" % (12 + (50 + t) % 4, vr(WR + ((t-4)*9 + j)*4), j*1024))
L_PF = 163808
def proj(C, kind, o, diag=None):
    p5 = kind == 5
    uid = "p%d" % kind
    npair = 36 if p5 else 9
    nst = 9 if p5 else 3
    ppst = lambda n: 4 if (p5 or n < 2) else 1
    ACT, RES = (WS_H, WS_XB) if p5 else (WS_O, WS_XA)
    rts = 73728 if p5 else 18432
    EX = 129024 if p5 else 3*SLOT
    ld = o.get("ld", ""); stf = o.get("st", "")
    ho = p5 and o.get("hoist5", 0)
    ACC = 24; WF = 64; AW = 124; RR = 220; T = 232
    RA = o.get('ra', 3); wb = lambda gp: (WF, WF+20, WF+40, 236)[gp % (RA+1)]
    if p5 and "R" in p5sched(o): C("s_barrier")
    proj_coords(C, o)
    C("s_lshl_b32 s30, s23, 2\ns_add_u32 s30, s30, s%d\ns_and_b32 s31, s%d, 1" % (sW, sW))
    C("s_mul_i32 s34, s30, 18432\ns_add_u32 s34, s34, s%d\ns_add_u32 s34, s34, 0x%x" % (sLB, RES))
    C("s_lshl_b32 s35, s24, 11")
    C("s_lshr_b32 s36, s24, 2\ns_lshl_b32 s36, s36, 10\ns_and_b32 s37, s24, 3\ns_lshl_b32 s37, s37, 8\ns_add_u32 s36, s36, s37\ns_add_u32 s36, s36, 16384")
    C(vR(2)); C(vQ(3))
    C("v_add_u32 v4, s35, v1\nv_lshrrev_b32 v0, 1, v3\nv_and_b32 v9, 1, v3")
    C("v_cmp_eq_u32 s[40:41], s31, v0\nv_bfrev_b32 v6, 1")
    C("v_lshlrev_b32 v5, 4, v2\nv_lshl_add_u32 v5, v9, 3, v5\nv_add_u32 v5, s36, v5\nv_cndmask_b32 v5, v6, v5, s[40:41]")
    for p in range(2): C("buffer_load_dwordx4 %s, v4, %s, s34 offen offset:%d %s" % (vr(RR+4*p), WS, 1024*p, ld))
    C("buffer_load_dwordx2 %s, v5, %s, s34 offen %s" % (vr(RR+8, 2), WS, ld))
    C("s_and_b32 s29, s30, 0xfffe\ns_mul_i32 s29, s29, %d\ns_add_u32 s29, s29, s%d\ns_lshl_b32 s37, s31, 10\ns_add_u32 s29, s29, s37\ns_add_u32 s29, s29, 0x%x" % (rts, sLB, ACT))
    C("s_mul_i32 s37, s31, %d\ns_sub_u32 s38, %d, s37" % (rts, rts))
    C("v_lshlrev_b32 v10, 3, v2")
    C("v_add_u32 v16, s37, v1\nv_add_u32 v17, s38, v1")
    if p5: C("v_mov_b32 v18, v1\nv_add_u32 v19, %d, v1" % rts)
    else: C("v_lshl_add_u32 v7, v3, 8, v10\nv_add_u32 v18, s37, v7\nv_add_u32 v19, s38, v7")
    C("s_lshl_b32 s37, s31, 12")
    for i in range(4): C("v_add_u32 v%d, %d, v1\nv_add_u32 v%d, s37, v%d" % (20+i, SLOT*i, 12+i, 20+i))
    C("s_add_u32 s34, s34, 0x%x" % ((LAYER_STRIDE + WS_XA - WS_XB) % (1 << 32) if p5 else (WS_XB - WS_XA)))
    C("s_lshl_b32 s39, s30, 10\ns_add_u32 s39, s39, s%d\ns_lshl_b32 s42, s24, 7\ns_add_u32 s39, s39, s42\ns_add_u32 s39, s39, 0x%x" % (sLB, LAYER_STRIDE + WS_STA if p5 else WS_STB))
    C("v_cmp_eq_u32 vcc, 0, v3\nv_mov_b32 v11, 0x3f803f80\ns_lshr_b32 s44, s23, 1\nv_cndmask_b32 v10, v6, v10, vcc")
    if p5:
        C("s_cmp_eq_u32 s%d, 0\ns_cbranch_scc1 L_p5_nf" % sLAY)
        C("v_mul_u32_u24 v8, 1152, v2\ns_mul_i32 s34, s30, %d\ns_mul_i32 s42, s24, 144\ns_add_u32 s34, s34, s42" % (16*1152))
        if o.get("fperm", 1):
            C("v_lshrrev_b32 v4, 6, v1\nv_bfe_u32 v5, v1, 4, 2\nv_lshlrev_b32 v10, 2, v4\nv_lshl_add_u32 v10, v5, 6, v10\nv_mul_u32_u24 v8, 1152, v4")
            C("v_lshrrev_b32 v11, 1, v5\nv_cmp_eq_u32 vcc, s31, v11\nv_lshl_add_u32 v4, v5, 4, v8\nv_and_b32 v5, 1, v5\nv_lshl_add_u32 v5, v5, 3, v8\nv_cndmask_b32 v5, v6, v5, vcc")
        else: C("v_lshl_add_u32 v4, v3, 4, v8\nv_lshl_add_u32 v5, v9, 3, v8\nv_cndmask_b32 v5, v6, v5, s[40:41]")
        C.lab("L_p5_nf")
    flag_addr(C, POL, F_P4 if p5 else F_P1, 44)
    def mid():
        C("s_mul_i32 s37, s%d, 4608\ns_add_u32 s37, s37, %d\ns_xor_b32 s38, s%d, 1\ns_mul_i32 s42, s38, 4608\ns_add_u32 s42, s42, %d" % (sW, EX, sW, EX))
        C("v_and_b32 v0, 0x1ff, v1\nv_add_u32 v2, s37, v1\nv_add_u32 v3, s37, v0\nv_add_u32 v7, s42, v1\nv_add_u32 v8, s42, v0")
        C("s_lshl_b32 s37, s%d, 2\ns_add_u32 s37, s37, %d\ns_xor_b32 s38, s37, 4\nv_mov_b32 v0, s37\nv_mov_b32 v6, s38" % (sW, L_PF))
        C("s_lshl_b32 s43, s%d, 1\ns_add_u32 s43, s43, %d\nv_mov_b32 v9, s43" % (sLAY, 2 if p5 else 1))
    sp = p5 and o.get("split5", 0)
    edge(C, "d%d" % kind, [POL], o, diag, mid, keep=3 + (9 - 2*sp if sp else 0)); C.vm = ["res"]*3
    def act_loads(tau):
        o_ = hoist_sel(C, 32, tau, 8, 25, tau < 8 and ho) + ["s_lshl_b32 s32, s32, 13", "s_add_u32 s32, s32, s29", "s_add_u32 s33, s32, 4096"]
        lds_ = []
        for pp in range(ppst(tau)):
            for st in range(2):
                d = AW + ((tau % 3)*8 + 2*pp + st)*4
                if tau + 1 < nst or p5: lds_.append(("buffer_load_dwordx4 %s, v%d, %s, s%d offen offset:%d %s" % (vr(d), (16 if tau + 1 < nst else 18)+st, WS, 32 + pp//2, (pp % 2)*2048, ld), ("a", tau, pp)))
                else:
                    for e in range(2): lds_.append(("buffer_load_dwordx2 %s, v%d, %s, s%d offen offset:%d %s" % (vr(d+2*e, 2), 18+st, WS, 32 + pp//2, (pp % 2)*2048 + e*(512 if p5 else 128), ld), ("a", tau, pp)))
        return o_, lds_
    def emit_act(tau):
        a, b = act_loads(tau)
        C("\n".join(a))
        for s, t in b: C(s); C.issue(t)
    def reads(gp):
        b = wb(gp)
        if p5: sl, off = (50 + gp//4) % 4, (gp % 4)*9216
        else: sl, off = (gp >> 1, ROWH + (gp & 1)*9216) if gp < 8 else (3, SLOT)
        return ["ds_read_b128 %s, v%d offset:%d" % (vr(b+4*j), 12 + sl, off + j*1024) for j in range(4)] + \
               ["ds_read_b128 %s, v%d offset:%d" % ((vr(b+16), 23, SLOT + (gp-16)*1024) if (p5 and 16 <= gp < 28 and o.get("top8", 1)) else (vr(b+16), 20 + sl, off + 8192))]
    C("s_barrier")
    stamp(C, diag, uid+"Y")
    emit_act(0)
    for s in sum([reads(i) for i in range(RA)], []): C(s)
    pend = []
    if p5 and o.get("p5lazy", 1):
        C("s_add_u32 s45, s29, 8192\ns_add_u32 s46, s29, 12288")
        pend = [(x.replace("s32", "s45").replace("s33", "s46"), y) for x, y in act_loads(1)[1]]
        for _ in range(o.get("p5n0", 2)): x, y = pend.pop(0); C(x); C.issue(y)
    else: emit_act(1)
    if not p5:
        emit_act(2)
        C("s_lshl_b32 s42, s23, 3\ns_add_u32 s42, s42, s24\ns_lshl_b32 s42, s42, 2\ns_add_u32 s42, s42, s%d\ns_lshl_b32 s42, s42, 8\ns_add_u32 s42, s42, s%d\ns_add_u32 s42, s42, 0x%x" % (sW, sLB, WS_ZS))
        C("v_mov_b32 v%d, -1.0\nv_lshrrev_b32 v%d, 2, v1\nbuffer_store_dword v%d, v%d, %s, s42 offen sc1" % (T, T+1, T, T+1, WS)); C.issue("zi")
    flag_addr(C, SIG, F_P5 if p5 else F_P2, 44)
    C("s_waitcnt vmcnt(%d)" % C.vmn("res"))
    if sp: C("s_barrier")
    for i in range(10):
        C("v_lshlrev_b32 v%d, 16, v%d\nv_and_b32 v%d, 0xffff0000, v%d" % (ACC+2*i, RR+i, ACC+2*i+1, RR+i))
    stamp(C, diag, uid+"iss")
    nl = 1
    xw = ["ds_write_b128 v2, %s offset:%d" % (vr(ACC+20+4*a), 1024*a) for a in range(4)]
    for gp in range(npair):
        tau, pp = gp // 4, gp % 4; b = wb(gp); aw = AW + ((tau % 3)*8 + 2*pp)*4
        if nl == 2 and gp == npair - 2:
            C("s_waitcnt vmcnt(%d) lgkmcnt(5)" % C.vmn(("a", tau, pp)))
            b2 = WF + ((gp+1) % 3)*20
            for a in range(5): C(mfma(ACC + 20 + 4*a, b + 4*a, aw + 4))
            C("s_waitcnt vmcnt(%d) lgkmcnt(0)" % C.vmn(("a", tau, pp+1)))
            for a in range(5): C(mfma(ACC + 20 + 4*a, b2 + 4*a, aw + 12))
            mm = [mfma(ACC + 4*a, b + 4*a, aw) for a in range(5)] + [mfma(ACC + 4*a, b2 + 4*a, aw + 8) for a in range(5)]
            for s in interleave(mm, [(3 + i + i//2, x) for i, x in enumerate(xw)]): C(s)
            xw = []
            break
        order = [(a, st) for a in range(5) for st in (1, 0)] if gp + 1 < npair else [(a, st) for st in (1, 0) for a in range(5)]
        mm = [mfma(ACC + 20*st + 4*a, b + 4*a, aw + 4*st, 'z' if (gp == 0 and st == 1) else None) for a, st in order]
        newstage = p5 and gp + RA < npair and (gp + RA) % 4 == 0
        n = C.vmn(("a", tau, pp))
        if newstage: ex = [(-1, "s_waitcnt vmcnt(%d) lgkmcnt(0)" % n), (-1, "s_barrier")]
        else: ex = [(-1, "s_waitcnt vmcnt(%d) lgkmcnt(%d)" % (n, 5*min(RA - 1, npair - 1 - gp)))]
        if gp + RA < npair:
            for i, s in enumerate(reads(gp+RA)): ex.append((i, s))
        if p5 and 31 <= gp < 35:
            a2 = AW + (2*8 + 2*(gp-31))*4
            ex += [(5, "s_waitcnt vmcnt(%d)" % C.vmn(("a", 8, gp-31))), (6, "v_swap_b32 v%d, v%d" % (a2+2, a2+4)), (7, "v_swap_b32 v%d, v%d" % (a2+3, a2+5))]
        for pos in (1, 3):
            if pend: x, y = pend.pop(0); ex.append((pos, x)); C.issue(y)
        if p5 and tau + 2 < nst:
            a, bl = act_loads(tau + 2)
            if pp == 0:
                for s in a: ex.append((0, s))
            m_ = len(bl)//4
            for i, (s, t) in enumerate(bl[m_*pp:m_*pp+m_]): ex.append((5 + (4//m_)*i, s)); C.issue(t)
        for s in interleave(mm, ex): C(s)
        stamp(C, diag, uid+"g%d" % gp)
    stamp(C, diag, uid+"gemm")
    for s in xw: C(s)
    xb = o.get("xbar", 0)
    C("s_mov_b64 exec, s[40:41]\nds_write_b128 v3, %s offset:4096\ns_mov_b64 exec, -1" % vr(ACC+36))
    if xb: C("s_waitcnt lgkmcnt(0)\ns_barrier")
    else:
        C("ds_write_b32 v0, v9\ns_mov_b32 s60, %d" % (SPIN*16))
        C.lab("L_px_" + uid)
        C("ds_read_b32 v%d, v6" % T)
    for a in range(4): C("ds_read_b128 %s, v7 offset:%d" % (vr(WF+4*a), 1024*a))
    C("ds_read_b128 %s, v8 offset:4096" % vr(WF+16))
    if not xb: C("s_waitcnt lgkmcnt(5)\nv_cmp_ne_u32 vcc, s43, v%d\ns_sub_u32 s60, s60, 1\ns_cbranch_scc1 L_py_%s\ns_cbranch_vccnz L_px_%s" % (T, uid, uid))
    C.lab("L_py_" + uid)
    for a in range(5):
        C("s_waitcnt lgkmcnt(%d)" % (4-a))
        for p in range(2): C("v_pk_add_f32 %s, %s, %s" % (vr(ACC+4*a+2*p, 2), vr(ACC+4*a+2*p, 2), vr(WF+4*a+2*p, 2)))
        for p in range(2): C("v_cvt_pk_bf16_f32 v%d, v%d, v%d" % (RR+2*a+p, ACC+4*a+2*p, ACC+4*a+2*p+1))
    lab = "L_fin_" + uid
    if p5: C("s_cmp_eq_u32 s%d, 1\ns_cbranch_scc1 %s" % (sLAY, lab))
    for p in range(2): C("buffer_store_dwordx4 %s, v4, %s, s34 offen offset:%d %s" % (vr(RR+4*p), WS, 1024*p, stf))
    C("buffer_store_dwordx2 %s, v5, %s, s34 offen %s" % (vr(RR+8, 2), WS, stf))
    C("v_cndmask_b32 v%d, 0, v%d, s[40:41]\nv_cndmask_b32 v%d, 0, v%d, s[40:41]" % (T+2, RR+8, T+3, RR+9))
    for i in range(10):
        r_ = RR+i if i < 8 else T+2+(i-8)
        C("v_dot2_f32_bf16 v%d, v%d, v11, %s\nv_dot2_f32_bf16 v%d, v%d, v%d, %s" % (T, r_, "v%d" % T if i else "0", T+1, r_, r_, "v%d" % (T+1) if i else "0"))
    C("s_nop 2")
    xsum_q_multi(C, [T, T+1], [T+2, T+3])
    C("buffer_store_dwordx2 %s, v10, %s, s39 offen %s" % (vr(T, 2), WS, stf))
    stamp(C, diag, uid+"end")
    if p5:
        C = Stream()
        C.lab(lab)
        if o.get("fperm", 1):
            for i in range(10): C("ds_bpermute_b32 v%d, v10, v%d" % (RR+i, RR+i))
        for p in range(2): C("s_waitcnt lgkmcnt(%d)\nbuffer_store_dwordx4 %s, v4, %s, s34 offen offset:%d %s" % (6 - 4*p, vr(RR+4*p), OUT, 64*p, o.get("stout", "")))
        C("s_waitcnt lgkmcnt(0)")
        C("buffer_store_dwordx2 %s, v5, %s, s34 offen offset:128 %s" % (vr(RR+8, 2), OUT, o.get("stout", "")))
        stamp(C, diag, uid+"end")
        return C
def proj1(C, kind, o, diag=None):
    assert kind == 2
    p5 = kind == 5
    uid = "p%d" % kind
    npair = 36 if p5 else 9
    nst = 9 if p5 else 3
    ppst = lambda n: 4 if (p5 or n < 2) else 1
    ACT, RES = (WS_H, WS_XB) if p5 else (WS_O, WS_XA)
    rts = 73728 if p5 else 18432
    ld = o.get("ld", ""); stf = o.get("st", "")
    ho = p5 and o.get("hoist5", 0)
    ACC = 16; WF = 40; AW = 112; RR = 208; T = 220
    if p5 and "R" in p5sched(o): C("s_barrier")
    proj_coords(C, o)
    C("s_lshl_b32 s30, s23, 2\ns_add_u32 s30, s30, s%d" % sW)
    C("s_mul_i32 s29, s30, %d\ns_add_u32 s29, s29, s%d\ns_add_u32 s29, s29, 0x%x" % (rts, sLB, ACT))
    C("s_mul_i32 s34, s30, 18432\ns_add_u32 s34, s34, s%d\ns_add_u32 s34, s34, 0x%x" % (sLB, RES))
    C("s_lshl_b32 s35, s24, 11")
    C("s_lshr_b32 s36, s24, 2\ns_lshl_b32 s36, s36, 10\ns_and_b32 s37, s24, 3\ns_lshl_b32 s37, s37, 8\ns_add_u32 s36, s36, s37\ns_add_u32 s36, s36, 16384")
    C(vR(2)); C(vQ(3))
    C("v_add_u32 v4, s35, v1")
    C("v_lshlrev_b32 v5, 4, v2\nv_lshl_add_u32 v5, v3, 3, v5\nv_add_u32 v5, s36, v5")
    C("v_cmp_gt_u32 s[40:41], 2, v3\nv_bfrev_b32 v6, 1")
    for i in range(4): C("v_add_u32 v%d, %d, v1" % (12+i, SLOT*i))
    C("v_cndmask_b32 v5, v6, v5, s[40:41]")
    for p in range(2): C("buffer_load_dwordx4 %s, v4, %s, s34 offen offset:%d %s" % (vr(RR+4*p), WS, 1024*p, ld))
    C("buffer_load_dwordx2 %s, v5, %s, s34 offen %s" % (vr(RR+8, 2), WS, ld))
    C("s_add_u32 s34, s34, 0x%x" % ((LAYER_STRIDE + WS_XA - WS_XB) % (1 << 32) if p5 else (WS_XB - WS_XA)))
    C("s_lshl_b32 s39, s30, 10\ns_add_u32 s39, s39, s%d\ns_lshl_b32 s42, s24, 7\ns_add_u32 s39, s39, s42\ns_add_u32 s39, s39, 0x%x" % (sLB, LAYER_STRIDE + WS_STA if p5 else WS_STB))
    C("v_cmp_eq_u32 vcc, 0, v3\nv_lshlrev_b32 v10, 3, v2\nv_mov_b32 v11, 0x3f803f80")
    if p5: C("v_lshrrev_b32 v7, 1, v1")
    else: C("v_lshl_add_u32 v7, v3, 8, v10")
    C("v_cndmask_b32 v10, v6, v10, vcc")
    if p5:
        C("s_cmp_eq_u32 s%d, 0\ns_cbranch_scc1 L_p5_nf" % sLAY)
        C("v_mul_u32_u24 v9, 1152, v2\ns_mul_i32 s34, s30, %d\ns_mul_i32 s42, s24, 144\ns_add_u32 s34, s34, s42" % (16*1152))
        C("v_lshl_add_u32 v4, v3, 4, v9\nv_lshl_add_u32 v5, v3, 3, v9\nv_cndmask_b32 v5, v6, v5, s[40:41]")
        C.lab("L_p5_nf")
    C("s_lshr_b32 s44, s23, 1")
    flag_addr(C, POL, F_P4 if p5 else F_P1, 44)
    def mid():
        for i in range(10):
            C("v_lshlrev_b32 v%d, 16, v%d\nv_and_b32 v%d, 0xffff0000, v%d" % (ACC+2*i, RR+i, ACC+2*i+1, RR+i))
    rl = o.get("reslate", 1); sp = p5 and o.get("split5", 0)
    edge(C, "d%d" % kind, [POL], o, diag, None if rl else mid, keep=(3 if rl else 0) + (10 - 2*sp if sp else 0))
    if rl: C.vm = ["res"]*3
    def act_loads(tau):
        o_ = hoist_sel(C, 32, tau, 8, 25, tau < 8 and ho) + ["s_lshl_b32 s32, s32, 13", "s_add_u32 s32, s32, s29", "s_add_u32 s33, s32, 4096"]
        lds_ = []
        for j in range(2*ppst(tau)):
            d = AW + ((tau % 3)*8 + j)*4
            if tau + 1 < nst: lds_.append(("buffer_load_dwordx4 %s, v1, %s, s%d offen offset:%d %s" % (vr(d), WS, 32 + j//4, (j % 4)*1024, ld), ("a", tau, j//2)))
            else:
                for e in range(2): lds_.append(("buffer_load_dwordx2 %s, v7, %s, s%d offen offset:%d %s" % (vr(d+2*e, 2), WS, 32 + j//4, (j % 4)*1024 + e*(512 if p5 else 128), ld), ("a", tau, j//2)))
        return o_, lds_
    def emit_act(tau):
        a, b = act_loads(tau)
        C("\n".join(a))
        for s, t in b: C(s); C.issue(t)
    def reads(gp):
        b = WF + (gp % 2)*36
        if p5: sl, off = (50 + gp//4) % 4, (gp % 4)*9216
        else: sl, off = (gp >> 1, ROWH + (gp & 1)*9216) if gp < 8 else (3, SLOT)
        return ["ds_read_b128 %s, v%d offset:%d" % (vr(b+4*j), 12 + sl, off + j*1024) for j in (0,1,2,3,8,4,5,6,7)]
    C("s_barrier")
    stamp(C, diag, uid+"Y")
    emit_act(0)
    for s in reads(0): C(s)
    lazy = (not p5) and o.get("p2lazy", 1)
    if not lazy: emit_act(1)
    pend = []
    if not p5:
        if lazy:
            C("s_add_u32 s45, s29, 8192\ns_add_u32 s46, s29, 12288\ns_add_u32 s47, s29, 16384")
            pend = [(x.replace("s32", "s45").replace("s33", "s46"), y) for x, y in act_loads(1)[1]] + [(x.replace("s32", "s47"), y) for x, y in act_loads(2)[1]]
            for _ in range(o.get("p2n0", 2)): x, y = pend.pop(0); C(x); C.issue(y)
        else: emit_act(2)
        C("s_lshl_b32 s42, s23, 3\ns_add_u32 s42, s42, s24\ns_lshl_b32 s42, s42, 2\ns_add_u32 s42, s42, s%d\ns_lshl_b32 s42, s42, 8\ns_add_u32 s42, s42, s%d\ns_add_u32 s42, s42, 0x%x" % (sW, sLB, WS_ZS))
        C("v_mov_b32 v%d, -1.0\nv_lshrrev_b32 v%d, 2, v1\nbuffer_store_dword v%d, v%d, %s, s42 offen sc1" % (T, T+1, T, T+1, WS)); C.issue("zi")
    flag_addr(C, SIG, F_P5 if p5 else F_P2, 44)
    if rl:
        C("s_waitcnt vmcnt(%d)" % C.vmn("res"))
        if sp: C("s_barrier")
        mid()
    stamp(C, diag, uid+"iss")
    for gp in range(npair):
        tau, pp = gp // 4, gp % 4; b = WF + (gp % 2)*36; aw = AW + ((tau % 3)*8 + 2*pp)*4
        mm = []
        for e in range(2):
            for a in range(4): mm.append(mfma(ACC+4*a, b+16*e+4*a, aw+4*e))
            mm.append(mfma(ACC+16+4*e, b+32, aw+4*e, 'z' if (gp == 0 and e == 1) else None))
        ex = []
        newstage = p5 and gp + 1 < npair and (gp + 1) % 4 == 0
        n = C.vmn(("a", tau, pp))
        if newstage: ex += [(-1, "s_waitcnt vmcnt(%d) lgkmcnt(0)" % n), (-1, "s_barrier")]
        else: ex += [(-1, "s_waitcnt vmcnt(%d) lgkmcnt(4)" % n)]
        if gp + 1 < npair:
            for i, s in enumerate(reads(gp+1)): ex.append((i, s))
            if not newstage: ex.append((4, "s_waitcnt lgkmcnt(5)"))
        else: ex.append((4, "s_waitcnt lgkmcnt(0)"))
        for pos in (1, 4, 7):
            if pend: x, y = pend.pop(0); ex.append((pos, x)); C.issue(y)
        if p5 and tau + 2 < nst:
            a, bl = act_loads(tau + 2)
            if pp == 0:
                for s in a: ex.append((0, s))
            m_ = len(bl)//4
            for i, (s, t) in enumerate(bl[m_*pp:m_*pp+m_]): ex.append((2 + (8//m_)*i, s)); C.issue(t)
        for s in interleave(mm, ex): C(s)
        stamp(C, diag, uid+"g%d" % gp)
    stamp(C, diag, uid+"gemm")
    C("s_nop 3")
    for i in range(8): C("v_cvt_pk_bf16_f32 v%d, v%d, v%d" % (RR+i, ACC+2*i, ACC+2*i+1))
    lab = "L_fin_" + uid
    def half():
        for j in range(4): C("v_permlane32_swap_b32 v%d, v%d" % (ACC+20+j, T+j))
        C("v_pk_add_f32 %s, %s, %s\nv_pk_add_f32 %s, %s, %s" % (vr(ACC+16,2), vr(ACC+16,2), vr(T,2), vr(ACC+18,2), vr(ACC+18,2), vr(T+2,2)))
        for i in (8, 9): C("v_cvt_pk_bf16_f32 v%d, v%d, v%d" % (RR+i, ACC+2*i, ACC+2*i+1))
    if p5: C("s_cmp_eq_u32 s%d, 1\ns_cbranch_scc1 %s" % (sLAY, lab))
    for p in range(2): C("buffer_store_dwordx4 %s, v4, %s, s34 offen offset:%d %s" % (vr(RR+4*p), WS, 1024*p, stf))
    half()
    C("buffer_store_dwordx2 %s, v5, %s, s34 offen %s" % (vr(RR+8, 2), WS, stf))
    stamp(C, diag, uid+"e1")
    C("v_cndmask_b32 v%d, 0, v%d, s[40:41]\nv_cndmask_b32 v%d, 0, v%d, s[40:41]" % (T+2, RR+8, T+3, RR+9))
    nd_ = o.get("ndot", 2)
    for i in range(10):
        r_ = RR+i if i < 8 else T+2+(i-8); d = T + 4*(i % nd_)
        C("v_dot2_f32_bf16 v%d, v%d, v11, %s\nv_dot2_f32_bf16 v%d, v%d, v%d, %s" % (d, r_, "v%d" % d if i >= nd_ else "0", d+1, r_, r_, "v%d" % (d+1) if i >= nd_ else "0"))
    C("s_nop 2")
    if nd_ == 2: C("v_pk_add_f32 %s, %s, %s" % (vr(T, 2), vr(T, 2), vr(T+4, 2)))
    stamp(C, diag, uid+"e2")
    xsum_q_multi(C, [T, T+1], [T+2, T+3])
    C("buffer_store_dwordx2 %s, v10, %s, s39 offen %s" % (vr(T, 2), WS, stf))
    stamp(C, diag, uid+"end")
    if p5:
        fin = Stream(); Cs = C; C = fin
        C.lab(lab)
        for p in range(2): C("buffer_store_dwordx4 %s, v4, %s, s34 offen offset:%d %s" % (vr(RR+4*p), OUT, 64*p, o.get("stout", "")))
        half()
        C("buffer_store_dwordx2 %s, v5, %s, s34 offen offset:128 %s" % (vr(RR+8, 2), OUT, o.get("stout", "")))
        stamp(C, diag, uid+"end")
        return fin
```
